```python
import torch

def _softmax(x, axis=-1):
    return torch.softmax(x, dim=axis)

def _gelu(x):
    return torch.nn.functional.gelu(x, approximate='tanh')

def _silu(x):
    return torch.nn.functional.silu(x)

def _sigmoid(x):
    return torch.sigmoid(x)

def _layernorm(x, axis=-1, eps=1e-05):
    m = x.mean(dim=axis, keepdim=True)
    v = x.var(dim=axis, keepdim=True, unbiased=False)
    return (x - m) / torch.sqrt(v + eps)

def _scatter_add(tgt, idx, src, axis=0):
    return tgt.clone().index_add_(axis, idx, src)

def _segment_sum(src, seg, n):
    out = torch.zeros((n,) + src.shape[1:], dtype=src.dtype)
    return out.index_add_(0, seg, src)

def _pad(x, pw):
    flat = tuple((v for pair in reversed(pw) for v in pair))
    return torch.nn.functional.pad(x, flat)
kernel_name = 'recurrent_scan__mha_block_cached__mixer_gmlp__prompt'

def setup_inputs():

    _w = lambda a: (lambda t: t.to(torch.bfloat16) if t.is_floating_point() else t)(torch.as_tensor(a))

    def _A_setup():
        B, Sq, D = (1, 2048, 448)
        H, Sk, Dh = (16, 2048, 256)
        return {'x': _w((lambda *s: torch.randn(*s, dtype=torch.bfloat16) * 0.05)(B, Sq, D)), 'k_cache': _w((lambda *s: torch.randn(*s, dtype=torch.bfloat16) * 0.8)(B, H, Sk, Dh)), 'v_cache': _w((lambda *s: torch.randn(*s, dtype=torch.bfloat16) * 0.2)(B, H, Sk, Dh)), 'wq': _w((lambda *s: torch.randn(*s, dtype=torch.bfloat16) * 0.8)(D, H * Dh) * D ** (-0.5)), 'wo': _w((lambda *s: torch.randn(*s, dtype=torch.bfloat16) * 0.2)(H * Dh, D) * (H * Dh) ** (-0.5))}
    _A_in = _A_setup()

    def _B_setup():
        B, S, D, F = (1, 2048, 448, 1792)
        Fh = F // 2
        return {'x': _w((lambda *s: torch.randn(*s, dtype=torch.bfloat16) * 0.05)(B, S, D)), 'w_in': _w((lambda *s: torch.randn(*s, dtype=torch.bfloat16) * 0.4)(D, 2 * Fh)), 'w_sp': _w(0.01 * (lambda *s: torch.randn(*s, dtype=torch.bfloat16) * 0.4)(S, S)), 'b_sp': _w(1.0 + 0.01 * (lambda *s: torch.randn(*s, dtype=torch.bfloat16) * 0.1)(S)), 'w_out': _w((lambda *s: torch.randn(*s, dtype=torch.bfloat16) * 0.1)(Fh, D))}
    _B_in = _B_setup()
    return {'A_x': _A_in['x'], 'A_k_cache': _A_in['k_cache'], 'A_v_cache': _A_in['v_cache'], 'A_wq': _A_in['wq'], 'A_wo': _A_in['wo'], 'B_x': _B_in['x'], 'B_w_in': _B_in['w_in'], 'B_w_sp': _B_in['w_sp'], 'B_b_sp': _B_in['b_sp'], 'B_w_out': _B_in['w_out']}

def reference(A_x, A_k_cache, A_v_cache, A_wq, A_wo, B_x, B_w_in, B_w_sp, B_b_sp, B_w_out):

    def _A_ref(x, k_cache, v_cache, wq, wo):
        B, Sq, D = x.shape
        H, Dh = (16, 256)
        q = (lambda x, *d: x.permute(*d))((x @ wq).reshape(B, Sq, H, Dh), 0, 2, 1, 3)
        scores = torch.einsum('bhqd,bhkd->bhqk', q, k_cache) * Dh ** (-0.5)
        p = _softmax(scores, axis=-1)
        o = torch.einsum('bhqk,bhkd->bhqd', p, v_cache)
        return (lambda x, *d: x.permute(*d))(o, 0, 2, 1, 3).reshape(B, Sq, H * Dh) @ wo

    def _B_ref(x, w_in, w_sp, b_sp, w_out):
        B, S, D = x.shape
        F = w_in.shape[-1]
        Fh = F // 2
        z = _gelu(torch.einsum('bsd,df->bsf', x, w_in))
        z1 = z[..., :Fh].clone()
        z2 = _layernorm(z[..., Fh:], axis=-1)
        g = torch.einsum('ts,bsf->btf', w_sp, z2) + b_sp[None, :, None]
        return torch.einsum('bsf,fd->bsd', z1 * g, w_out)
    x = A_x
    xn = _layernorm(x, axis=-1)
    s = _A_ref(xn, A_k_cache, A_v_cache, A_wq, A_wo)
    g = _silu(_B_ref(xn, B_w_in, B_w_sp, B_b_sp, B_w_out))
    return x + s * g
```

```python
import re


class Asm:
    def __init__(self):
        self.lines = []
        self.lds_q = []
        self.uid = 0

    def e(self, s):
        for ln in s.split("\n"):
            ln = ln.strip()
            if ln:
                self.lines.append("    " + ln if not ln.endswith(":") else ln)

    def label(self, name):
        self.lines.append(name + ":")

    def comment(self, s):
        self.lines.append("    ; " + s)

    def newlabel(self, base):
        self.uid += 1
        return f"{base}_{self.uid}"

    def text(self):
        return "\n".join(self.lines) + "\n"

    def lds_op(self, s, dest=()):
        self.e(s)
        self.lds_q.append(set(dest))

    def lds_need(self, regs):
        regs = set(regs)
        last = -1
        for i, d in enumerate(self.lds_q):
            if d & regs:
                last = i
        if last < 0:
            return
        n_after = len(self.lds_q) - 1 - last
        n = min(n_after, 15)
        self.e(f"s_waitcnt lgkmcnt({n})")
        self.lds_q = self.lds_q[len(self.lds_q) - n:] if n > 0 else []

    def lds_drained(self):
        self.lds_q = []


def vr(base, n=1, p="v"):
    if n == 1:
        return f"{p}{base}"
    return f"{p}[{base}:{base + n - 1}]"


def regs(base, n, p="v"):
    return [f"{p}{base + i}" for i in range(n)]


def kernel_header(name):
    return f""".globl {name}
.p2align 8
.type {name},@function
{name}:
"""


def kernel_desc(name, vgpr, accum, sgpr=96):
    return f""".amdhsa_kernel {name}
  .amdhsa_next_free_vgpr {vgpr}
  .amdhsa_next_free_sgpr {sgpr}
  .amdhsa_accum_offset {accum}
  .amdhsa_group_segment_fixed_size 0
  .amdhsa_kernarg_size 104
  .amdhsa_user_sgpr_count 2
  .amdhsa_user_sgpr_kernarg_segment_ptr 1
  .amdhsa_system_sgpr_workgroup_id_x 1
.end_amdhsa_kernel
"""
```

```python
import sys
from asmlib import *
HEADER = open('recurrent_scan__mha_block_cached__mixer_gmlp__prompt.s.ref').read().split('; Override launch')[0]

def assemble(kernels, path):
    out = HEADER
    for (name, grid, block, lds, body, desc) in kernels:
        out += f"; @launch kernel={name} grid=({grid},1,1) block=({block},1,1) lds={lds}\n"
    out += '.amdgcn_target "amdgcn-amd-amdhsa--gfx950"\n.text\n'
    seen = set()
    for (name, grid, block, lds, body, desc) in kernels:
        if name in seen: continue
        seen.add(name)
        out += kernel_header(name) + body
    out += '.section .rodata,"a"\n'
    seen = set()
    for (name, grid, block, lds, body, desc) in kernels:
        if name in seen: continue
        seen.add(name)
        out += '.p2align 6\n' + desc
    open(path, 'w').write(out)
```

```python
from asmlib import *
import math

WS_XN = 0x0
WS_Z1 = 0x200000
WS_Z2 = 0x600000
WS_Z2T = 0xA00000
WS_O = 0x1000000
WS_HM = 0x2000000

LOG2E = 1.4426950408889634
SCALE = LOG2E / 16.0
THR = 8.0


def f32hex(x):
    import struct
    return "0x%08x" % struct.unpack("<I", struct.pack("<f", x))[0]


def gen_attn(name="attn_kernel", drop=(), stamp=False):
    a = Asm()
    e0 = a.e
    state = {"loop": False}
    def e(sx):
        if state["loop"]:
            if "dma" in drop and ("lds" in sx and "buffer_load" in sx): return
            if "exp" in drop and sx.startswith("v_exp"): return
            if "valu" in drop and (sx.startswith("v_exp") or sx.startswith("v_fma") or sx.startswith("v_cvt") or sx.startswith("v_add_f32") or sx.startswith("v_max")): return
            if "barrier" in drop and sx.startswith("s_barrier"): return
            if "vm" in drop and sx.startswith("s_waitcnt vmcnt"): sx = "s_waitcnt lgkmcnt(0)"
        e0(sx)
    lds_op0 = a.lds_op
    def lds_op(sx, d=()):
        if state["loop"]:
            if "vread" in drop and "tr_b16" in sx: return
            if "kread" in drop and "b128" in sx: return
        lds_op0(sx, d)
    a.lds_op = lds_op
    SK, SV, SW, SX, SO = 4, 8, 12, 16, 20
    sWave, sHead, sQb, sWB, sKoff, sVoff, sTrip, sC, sT0, sT1 = 24, 25, 26, 27, 28, 29, 30, 31, 32, 33
    sWoff = 36
    vLane = 1
    vT0, vT1, vT2, vT3 = 2, 3, 40, 41
    vKd, vVd, vWd = 4, 8, 12
    vKa, vVa, vWa = 16, 24, 28
    vMc, vMthr, vL, vMax, vM, vAl = 32, 33, 34, 35, 36, 37
    vOoff = 38
    vS = [48, 64]
    vE = 80
    vP = 96
    vKf = 104
    vVf = 168
    aO = 0
    aQ = 128
    aX = 128
    VRING = 65536

    e("s_cmp_ge_u32 s2, 256")
    e("s_cbranch_scc1 L_attn_end")
    if stamp:
        e("s_memtime s[60:61]")
        e("s_memrealtime s[62:63]")
    e("s_load_dwordx4 s[40:43], s[0:1], 8")
    e("s_load_dwordx2 s[44:45], s[0:1], 24")
    e("s_load_dwordx2 s[46:47], s[0:1], 96")
    e(f"s_and_b32 s{sT0}, s2, 7")
    e(f"s_lshl_b32 s{sT0}, s{sT0}, 1")
    e(f"s_lshr_b32 s{sT1}, s2, 3")
    e(f"s_and_b32 s{sHead}, s{sT1}, 1")
    e(f"s_add_u32 s{sHead}, s{sHead}, s{sT0}")
    e(f"s_lshr_b32 s{sQb}, s2, 4")
    e(f"v_lshrrev_b32 v{vT0}, 6, v0")
    e(f"v_and_b32 v{vLane}, 63, v0")
    e(f"v_readfirstlane_b32 s{sWave}, v{vT0}")
    e(f"s_mov_b32 s{sC}, {f32hex(SCALE)}")
    e("s_waitcnt lgkmcnt(0)")
    e(f"s_lshl_b32 s{sT0}, s{sHead}, 20")
    e(f"s_add_u32 s{SK}, s40, s{sT0}")
    e(f"s_addc_u32 s{SK+1}, s41, 0")
    e(f"s_mov_b32 s{SK+2}, 0x100000")
    e(f"s_mov_b32 s{SK+3}, 0x20000")
    e(f"s_add_u32 s{SV}, s42, s{sT0}")
    e(f"s_addc_u32 s{SV+1}, s43, 0")
    e(f"s_mov_b32 s{SV+2}, 0x100000")
    e(f"s_mov_b32 s{SV+3}, 0x20000")
    e(f"s_lshl_b32 s{sT0}, s{sHead}, 9")
    e(f"s_add_u32 s{SW}, s44, s{sT0}")
    e(f"s_addc_u32 s{SW+1}, s45, 0")
    e(f"s_sub_u32 s{SW+2}, {448*8192}, s{sT0}")
    e(f"s_mov_b32 s{SW+3}, 0x20000")
    e(f"s_add_u32 s{SX}, s46, {WS_XN}")
    e(f"s_addc_u32 s{SX+1}, s47, 0")
    e(f"s_mov_b32 s{SX+2}, {2048*896}")
    e(f"s_mov_b32 s{SX+3}, 0x20000")
    e(f"s_add_u32 s{SO}, s46, {WS_O}")
    e(f"s_addc_u32 s{SO+1}, s47, 0")
    e(f"s_mov_b32 s{SO+2}, {2048*8192}")
    e(f"s_mov_b32 s{SO+3}, 0x20000")
    e(f"s_lshl_b32 s{sWB}, s{sWave}, 12")

    e(f"v_lshrrev_b32 v{vT0}, 5, v{vLane}")
    e(f"v_and_b32 v{vT1}, 31, v{vLane}")
    e(f"s_lshl_b32 s{sT0}, s{sWave}, 3")
    for t in range(4):
        e(f"v_add_u32 v{vT2}, {2*t}, v{vT0}")
        e(f"v_add_u32 v{vT2}, s{sT0}, v{vT2}")
        e(f"v_and_b32 v{vT3}, 15, v{vT2}")
        e(f"v_xor_b32 v{vT3}, v{vT3}, v{vT1}")
        e(f"v_lshlrev_b32 v{vT3}, 4, v{vT3}")
        e(f"v_lshl_add_u32 v{vKd+t}, v{vT2}, 9, v{vT3}")
        e(f"v_and_b32 v{vT3}, 3, v{vT2}")
        e(f"v_lshlrev_b32 v{vT3}, 2, v{vT3}")
        e(f"v_xor_b32 v{vT3}, v{vT3}, v{vT1}")
        e(f"v_lshlrev_b32 v{vT3}, 4, v{vT3}")
        e(f"v_lshl_add_u32 v{vVd+t}, v{vT2}, 9, v{vT3}")
        e(f"v_lshl_add_u32 v{vWd+t}, v{vT2}, 13, v{vT3}")
    for i in range(8):
        e(f"v_add_u32 v{vT2}, {2*i}, v{vT0}")
        e(f"v_and_b32 v{vT3}, 15, v{vT1}")
        e(f"v_xor_b32 v{vT2}, v{vT2}, v{vT3}")
        e(f"v_lshlrev_b32 v{vT2}, 4, v{vT2}")
        e(f"v_lshl_add_u32 v{vKa+i}, v{vT1}, 9, v{vT2}")
    vR, vG, vCq = 42, 43, 44
    e(f"v_bfe_u32 v{vR}, v{vLane}, 2, 2")
    e(f"v_bfe_u32 v{vG}, v{vLane}, 4, 1")
    e(f"v_and_b32 v{vCq}, 3, v{vLane}")
    for d in range(4):
        e(f"v_lshrrev_b32 v{vT2}, 1, v{vCq}")
        e(f"v_lshl_add_u32 v{vT2}, v{vG}, 1, v{vT2}")
        e(f"v_add_u32 v{vT2}, {4*d}, v{vT2}")
        e(f"v_lshlrev_b32 v{vT3}, 2, v{vR}")
        e(f"v_xor_b32 v{vT2}, v{vT2}, v{vT3}")
        e(f"v_lshlrev_b32 v{vT2}, 4, v{vT2}")
        e(f"v_and_b32 v{vT3}, 1, v{vCq}")
        e(f"v_lshl_add_u32 v{vT2}, v{vT3}, 3, v{vT2}")
        e(f"v_lshl_add_u32 v{vT3}, v{vT0}, 2, v{vR}")
        e(f"v_lshl_add_u32 v{vT2}, v{vT3}, 9, v{vT2}")
        e(f"v_add_u32 v{vVa+d}, {VRING}, v{vT2}")
        e(f"v_and_b32 v{vT2}, 1, v{vCq}")
        e(f"v_lshl_add_u32 v{vT2}, v{vG}, 1, v{vT2}")
        e(f"v_add_u32 v{vT2}, {4*d}, v{vT2}")
        e(f"v_lshlrev_b32 v{vT3}, 2, v{vR}")
        e(f"v_xor_b32 v{vT2}, v{vT2}, v{vT3}")
        e(f"v_lshlrev_b32 v{vT2}, 4, v{vT2}")
        e(f"v_lshrrev_b32 v{vT3}, 1, v{vCq}")
        e(f"v_lshl_add_u32 v{vT2}, v{vT3}, 3, v{vT2}")
        e(f"v_lshl_add_u32 v{vT3}, v{vT0}, 3, v{vR}")
        e(f"v_lshl_add_u32 v{vT2}, v{vT3}, 9, v{vT2}")
        e(f"v_add_u32 v{vWa+d}, {VRING}, v{vT2}")
    e(f"s_lshl_b32 s{sT0}, s{sQb}, 7")
    e(f"s_lshl_b32 s{sT1}, s{sWave}, 5")
    e(f"s_add_u32 s{sT0}, s{sT0}, s{sT1}")
    e(f"v_add_u32 v{vT2}, s{sT0}, v{vT1}")
    e(f"s_movk_i32 s{sT1}, 896")
    e(f"v_mul_lo_u32 v{vT3}, v{vT2}, s{sT1}")
    e(f"v_lshl_add_u32 v{vT3}, v{vT0}, 4, v{vT3}")
    e(f"v_lshlrev_b32 v{vOoff}, 13, v{vT2}")
    e(f"v_lshl_add_u32 v{vOoff}, v{vT0}, 4, v{vOoff}")
    e(f"s_lshl_b32 s{sT0}, s{sHead}, 9")
    e(f"v_add_u32 v{vOoff}, s{sT0}, v{vOoff}")

    def dma(srd, voff, soff, ldsbase):
        out = []
        for t in range(4):
            out.append((f"s_add_u32 m0, s{sWB}, {ldsbase + t*1024}",
                        f"buffer_load_dwordx4 v{voff+t}, s[{srd}:{srd+3}], {soff} offen lds"))
        return out

    def emit_dma(lst):
        for m, l in lst:
            e(m)
            e("s_nop 0")
            e(l)

    for j in range(4):
        e(f"s_mov_b32 s{sKoff}, {j*16384}")
        emit_dma(dma(SK, vKd, f"s{sKoff}", j * 16384))
    for ks in range(28):
        e(f"buffer_load_dwordx4 a[{aX+4*ks}:{aX+4*ks+3}], v{vT3}, s[{SX}:{SX+3}], 0 offen offset:{ks*32}")
    wslot = lambda ci: (ci + 2) % 4
    for ci in range(4):
        e(f"s_mov_b32 s{sWoff}, {ci*262144}")
        emit_dma(dma(SW, vWd, f"s{sWoff}", VRING + wslot(ci) * 16384))

    def w_reads(ci, fbase):
        out = []
        for m in range(2):
            for db in range(8):
                f = m * 8 + db
                for s in range(2):
                    off = wslot(ci) * 16384 + (16 * m + 4 * s) * 512 + (db >> 2) * 256
                    d = fbase + 4 * f + 2 * s
                    out.append((f"ds_read_b64_tr_b16 v[{d}:{d+1}], v{vWa + (db & 3)} offset:{off}", regs(d, 2)))
        return out

    fb = [vKf, vVf]
    e("s_waitcnt vmcnt(12)")
    e("s_barrier")
    for ins, d in w_reads(0, fb[0]):
        a.lds_op(ins, d)
    for ci in range(14):
        last_issued = min(ci + 3, 16)
        n_younger = 4 * max(0, last_issued - (ci + 1))
        e(f"s_waitcnt vmcnt({n_younger}) lgkmcnt(0)")
        a.lds_drained()
        e("s_barrier")
        fillers = []
        nxt = ci + 4
        if nxt <= 13:
            e(f"s_mov_b32 s{sWoff}, {nxt*262144}")
            dl = dma(SW, vWd, f"s{sWoff}", VRING + wslot(nxt) * 16384)
        elif nxt <= 16:
            e(f"s_mov_b32 s{sVoff}, {(nxt-14)*16384}")
            dl = dma(SV, vVd, f"s{sVoff}", VRING + ((nxt - 14) % 4) * 16384)
        else:
            dl = []
        rd = w_reads(ci + 1, fb[(ci + 1) % 2]) if ci + 1 <= 13 else []
        cur = fb[ci % 2]
        gi = 0
        for m in range(2):
            for db in range(8):
                f = m * 8 + db
                ks = 2 * ci + m
                c = f"a[{aO+16*db}:{aO+16*db+15}]" if not (ci == 0 and m == 0) else "0"
                e(f"v_mfma_f32_32x32x16_bf16 a[{aO+16*db}:{aO+16*db+15}], v[{cur+4*f}:{cur+4*f+3}], a[{aX+4*ks}:{aX+4*ks+3}], {c}")
                for k in range(2):
                    if rd:
                        ins, d = rd.pop(0)
                        a.lds_op(ins, d)
                if gi >= 2 and gi % 2 == 0 and dl:
                    m0i, ld = dl.pop(0)
                    e(m0i)
                    e("s_nop 0")
                    e(ld)
                gi += 1
        assert not rd and not dl
    e("s_nop 15")
    e("s_nop 7")
    for db in range(8):
        for r in range(0, 16, 2):
            e(f"v_accvgpr_read_b32 v{vT2}, a{aO+16*db+r}")
            e(f"v_accvgpr_read_b32 v{vT3}, a{aO+16*db+r+1}")
            e(f"v_cvt_pk_bf16_f32 v{vT2}, v{vT2}, v{vT3}")
            e(f"v_accvgpr_write_b32 a{aQ+8*db+r//2}, v{vT2}")
    for r in range(128):
        e(f"v_accvgpr_write_b32 a{aO+r}, 0")

    def k_reads(slot):
        out = []
        for ks in range(16):
            d = vKf + 4 * ks
            off = slot * 16384 + (ks >> 3) * 256
            out.append((f"ds_read_b128 v[{d}:{d+3}], v{vKa + (ks & 7)} offset:{off}", regs(d, 4)))
        return out

    def v_reads(slot):
        out = []
        for m in range(2):
            for db in range(8):
                f = m * 8 + db
                for s in range(2):
                    off = slot * 16384 + (16 * m + 8 * s) * 512 + (db >> 2) * 256
                    d = vVf + 4 * f + 2 * s
                    out.append((f"ds_read_b64_tr_b16 v[{d}:{d+1}], v{vVa + (db & 3)} offset:{off}", regs(d, 2)))
        return out

    def qk_mfma(S, ks):
        c = f"v[{S}:{S+15}]" if ks else "0"
        return f"v_mfma_f32_32x32x16_bf16 v[{S}:{S+15}], v[{vKf+4*ks}:{vKf+4*ks+3}], a[{aQ+4*ks}:{aQ+4*ks+3}], {c}"

    def max_ops(S):
        ops = [f"v_max3_f32 v{vMax}, v{S}, v{S+1}, v{S+2}"]
        for i in range(3, 15, 2):
            ops.append(f"v_max3_f32 v{vMax}, v{vMax}, v{S+i}, v{S+i+1}")
        ops.append(f"v_max_f32 v{vMax}, v{vMax}, v{S+15}")
        return ops

    for ins, d in k_reads(0):
        a.lds_op(ins, d)
    for ks in range(16):
        a.lds_need(regs(vKf + 4 * ks, 4))
        e(qk_mfma(vS[0], ks))
    e("s_barrier")
    e(f"s_mov_b32 s{sKoff}, {4*16384}")
    emit_dma(dma(SK, vKd, f"s{sKoff}", 0))
    for ins, d in k_reads(1):
        a.lds_op(ins, d)
    e("s_nop 7")
    for o in max_ops(vS[0]):
        e(o)
    e(f"v_mov_b32 v{vT2}, v{vMax}")
    e("s_nop 1")
    e(f"v_permlane32_swap_b32 v{vT2}, v{vMax}")
    e("s_nop 1")
    e(f"v_max_f32 v{vM}, v{vT2}, v{vMax}")
    e(f"v_mul_f32 v{vMc}, s{sC}, v{vM}")
    e(f"v_add_f32 v{vMthr}, {f32hex(THR/SCALE)}, v{vM}")
    e(f"v_mov_b32 v{vL}, 0")
    e(f"s_mov_b32 s{sKoff}, {5*16384}")
    e(f"s_mov_b32 s{sVoff}, {3*16384}")
    e(f"s_mov_b32 s{sTrip}, 0")
    e("s_waitcnt vmcnt(12)")

    if stamp:
        e("s_memtime s[64:65]")
        e("s_memrealtime s[66:67]")
        e("s_waitcnt lgkmcnt(0)")
    a.label("L_attn_loop")
    state["loop"] = True
    for u in range(4):
        Sc, Sn = vS[u % 2], vS[(u + 1) % 2]
        e("s_waitcnt vmcnt(16) lgkmcnt(0)")
        a.lds_drained()
        e("s_barrier")
        vr_ = v_reads(u)
        for g in range(16):
            e(qk_mfma(Sn, g))
            for k in range(2):
                ins, d = vr_.pop(0)
                a.lds_op(ins, d)
            e(f"v_fma_f32 v{vE+g}, v{Sc+g}, s{sC}, -v{vMc}")
            if g >= 1:
                e(f"v_exp_f32 v{vE+g-1}, v{vE+g-1}")
            if g >= 3 and g % 2 == 1:
                k = (g - 3) // 2
                e(f"v_cvt_pk_bf16_f32 v{vP+k}, v{vE+2*k}, v{vE+2*k+1}")
        kr = k_reads((u + 2) % 4)
        dl = dma(SV, vVd, f"s{sVoff}", VRING + ((u + 3) % 4) * 16384) + dma(SK, vKd, f"s{sKoff}", ((u + 1) % 4) * 16384)
        mx = max_ops(Sn)
        pend_ld = None
        for g in range(16):
            m, db = g // 8, g % 8
            f = g
            a.lds_need(regs(vVf + 4 * f, 4))
            e(f"v_mfma_f32_32x32x16_bf16 a[{aO+16*db}:{aO+16*db+15}], v[{vVf+4*f}:{vVf+4*f+3}], v[{vP+4*m}:{vP+4*m+3}], a[{aO+16*db}:{aO+16*db+15}]")
            if pend_ld:
                e(pend_ld)
                pend_ld = None
            if g == 0:
                e(f"v_exp_f32 v{vE+15}, v{vE+15}")
            if g == 2:
                e(f"v_cvt_pk_bf16_f32 v{vP+7}, v{vE+14}, v{vE+15}")
            if g < 8:
                for k in range(2):
                    ins, d = kr.pop(0)
                    a.lds_op(ins, d)
            if g >= 1:
                e(f"v_add_f32 v{vL}, v{vL}, v{vE+g-1}")
            if 5 <= g < 13:
                e(mx.pop(0))
            if g >= 7 and dl:
                m0i, ld = dl.pop(0)
                e(m0i)
                pend_ld = ld
            if g == 13:
                e(f"v_cmp_gt_f32 vcc, v{vMax}, v{vMthr}")
        if pend_ld:
            e(pend_ld)
        assert not dl and not mx and not kr
        e(f"v_add_f32 v{vL}, v{vL}, v{vE+15}")
        e(f"s_add_u32 s{sKoff}, s{sKoff}, 16384")
        e(f"s_add_u32 s{sVoff}, s{sVoff}, 16384")
        e(f"s_cbranch_vccnz L_attn_rare{u}")
        a.label(f"L_attn_back{u}")
    e(f"s_add_u32 s{sTrip}, s{sTrip}, 1")
    e(f"s_cmp_lt_u32 s{sTrip}, 16")
    e("s_cbranch_scc1 L_attn_loop")

    state["loop"] = False
    if stamp:
        e("s_memtime s[68:69]")
        e("s_memrealtime s[70:71]")
        e("s_waitcnt lgkmcnt(0)")
    e("s_nop 15")
    e(f"v_mov_b32 v{vT2}, v{vL}")
    e("s_nop 1")
    e(f"v_permlane32_swap_b32 v{vT2}, v{vL}")
    e("s_nop 1")
    e(f"v_add_f32 v{vL}, v{vT2}, v{vL}")
    e(f"v_rcp_f32 v{vAl}, v{vL}")
    e("s_nop 0")
    tb = 48
    for db in range(8):
        for gp in range(2):
            t = tb + 16 * ((db * 2 + gp) % 4)
            for i in range(8):
                e(f"v_accvgpr_read_b32 v{t+8+i}, a{aO+16*db+8*gp+i}")
            for i in range(8):
                e(f"v_mul_f32 v{t+8+i}, v{t+8+i}, v{vAl}")
            for i in range(4):
                e(f"v_cvt_pk_bf16_f32 v{t+i}, v{t+8+2*i}, v{t+8+2*i+1}")
            e("s_nop 1")
            e(f"v_permlane32_swap_b32 v{t}, v{t+2}")
            e(f"v_permlane32_swap_b32 v{t+1}, v{t+3}")
            e("s_nop 0")
            e(f"buffer_store_dwordx4 v[{t}:{t+3}], v{vOoff}, s[{SO}:{SO+3}], 0 offen offset:{(32*db+16*gp)*2}")
    e("s_waitcnt vmcnt(0)")
    if stamp:
        e("s_memtime s[72:73]")
        e("s_memrealtime s[74:75]")
        e("s_load_dwordx2 s[76:77], s[0:1], 96")
        e("s_waitcnt lgkmcnt(0)")
        e("s_add_u32 s76, s76, 0x8000000")
        e("s_addc_u32 s77, s77, 0")
        e("s_mov_b32 s78, 0x1000000")
        e("s_mov_b32 s79, 0x20000")
        e("v_lshrrev_b32 v2, 6, v0")
        e("s_lshl_b32 s80, s2, 2")
        e("v_add_u32 v2, s80, v2")
        e("v_lshlrev_b32 v2, 6, v2")
        for i in range(16):
            e(f"v_mov_b32 v3, s{60+i}")
            e(f"buffer_store_dword v3, v2, s[76:79], 0 offen offset:{4*i}")
        e("s_waitcnt vmcnt(0)")
    a.label("L_attn_end")
    e("s_endpgm")

    for u in range(4):
        a.label(f"L_attn_rare{u}")
        if u == 3:
            e(f"s_cmp_eq_u32 s{sTrip}, 15")
            e(f"s_cbranch_scc1 L_attn_back{u}")
        e("s_nop 15")
        e(f"v_mov_b32 v{vT2}, v{vMax}")
        e("s_nop 1")
        e(f"v_permlane32_swap_b32 v{vT2}, v{vMax}")
        e("s_nop 1")
        e(f"v_max3_f32 v{vT2}, v{vT2}, v{vMax}, v{vM}")
        e(f"v_sub_f32 v{vAl}, v{vM}, v{vT2}")
        e(f"v_mul_f32 v{vAl}, s{sC}, v{vAl}")
        e(f"v_exp_f32 v{vAl}, v{vAl}")
        e(f"v_mov_b32 v{vM}, v{vT2}")
        e(f"v_mul_f32 v{vMc}, s{sC}, v{vM}")
        e(f"v_add_f32 v{vMthr}, {f32hex(THR/SCALE)}, v{vM}")
        e(f"v_mul_f32 v{vL}, v{vL}, v{vAl}")
        for r in range(0, 128, 4):
            for i in range(4):
                e(f"v_accvgpr_read_b32 v{vT2+i if i < 2 else 42+i-2}, a{aO+r+i}")
            for i in range(4):
                rr = vT2 + i if i < 2 else 42 + i - 2
                e(f"v_mul_f32 v{rr}, v{rr}, v{vAl}")
            for i in range(4):
                rr = vT2 + i if i < 2 else 42 + i - 2
                e(f"v_accvgpr_write_b32 a{aO+r+i}, v{rr}")
        e("s_nop 1")
        e(f"s_branch L_attn_back{u}")
    return a.text(), kernel_desc(name, 232 + 240, 232, 96)


if __name__ == "__main__":
    body, desc = gen_attn()
    print(body[:2000])
```

```python
from asmlib import *
from gen_attn import f32hex, WS_XN, WS_Z1, WS_Z2, WS_Z2T, WS_O, WS_HM

WS_S = 0x2800000
WS_Z2N = WS_Z2T


class G:
    pass


def srd(e, s, lo, hi, off, size):
    e(f"s_add_u32 s{s}, s{lo}, {off}")
    e(f"s_addc_u32 s{s+1}, s{hi}, 0")
    e(f"s_mov_b32 s{s+2}, {size}")
    e(f"s_mov_b32 s{s+3}, 0x20000")


def gemm_core(a, pfx, MT, NT, WM, WN, K, KC, NST, SX, SW, xstride, wstride, sRow0, sCol0, sWave,
              vbase, sbase, unroll_all=False):
    e = a.e
    RM, CN = MT // WM, NT // WN
    nbm, nbn = RM // 32, CN // 32
    RBX = KC * 2
    RBW = NT * 2
    XB, WB = MT * RBX, KC * RBW
    STG = XB + WB
    nks = KC // 16
    nX, nW = XB // 4096, WB // 4096
    nst_total = K // KC
    assert STG * NST <= 163840
    sT0, sT1, sXo, sWo, sWBx, sWBw, sTrip, sWm, sWn = [sbase + i for i in range(9)]
    vLane = vbase
    vT0, vT1, vT2, vT3, vR, vG, vCq, vH = [vbase + 1 + i for i in range(8)]
    p = vbase + 9
    vXd = p; p += nX
    vWd = p; p += nW
    nhalf = 2 if STG * NST > 65536 else 1
    vXa = p; p += nks * nhalf
    vWa = p; p += nbn * nhalf
    p = (p + 3) // 4 * 4
    vXf = p; p += 4 * nbm * nks
    vWf = p; p += 4 * nbn * nks
    p = (p + 15) // 16 * 16
    vAcc = p; p += 16 * nbm * nbn
    g = G()
    g.vAcc, g.nbm, g.nbn, g.vend, g.vLane, g.vH = vAcc, nbm, nbn, p, vLane, vH
    g.sWm, g.sWn, g.RM, g.CN = sWm, sWn, RM, CN
    g.tmp = [vT0, vT1, vT2, vT3, vR, vG, vCq]
    g.vfree0 = vXf
    g.vfreeN = vAcc - vXf

    e(f"v_and_b32 v{vLane}, 63, v0")
    e(f"v_lshrrev_b32 v{vH}, 5, v{vLane}")
    if WN == 1:
        e(f"s_mov_b32 s{sWm}, s{sWave}")
        e(f"s_mov_b32 s{sWn}, 0")
    else:
        assert WN == 2
        e(f"s_lshr_b32 s{sWm}, s{sWave}, 1")
        e(f"s_and_b32 s{sWn}, s{sWave}, 1")
    cpr = RBX // 16
    rpi = 64 // cpr
    lc = {4: 2, 8: 3, 16: 4, 32: 5}[cpr]

    def fx(dst, row):
        if cpr == 8:
            e(f"v_bfe_u32 v{dst}, v{row}, 1, 3")
        elif cpr == 16 or cpr == 32:
            e(f"v_and_b32 v{dst}, 15, v{row}")
        else:
            e(f"v_bfe_u32 v{dst}, v{row}, 2, 2")

    e(f"s_mul_i32 s{sT0}, s{sWave}, {nX*rpi}")
    e(f"v_lshrrev_b32 v{vT0}, {lc}, v{vLane}")
    e(f"v_and_b32 v{vT1}, {cpr-1}, v{vLane}")
    e(f"s_mov_b32 s{sT1}, {xstride}")
    for t in range(nX):
        e(f"v_add_u32 v{vT2}, {t*rpi}, v{vT0}")
        e(f"v_add_u32 v{vT2}, s{sT0}, v{vT2}")
        fx(vT3, vT2)
        e(f"v_xor_b32 v{vT3}, v{vT3}, v{vT1}")
        e(f"v_lshlrev_b32 v{vT3}, 4, v{vT3}")
        e(f"v_add_u32 v{vT2}, s{sRow0}, v{vT2}")
        e(f"v_mul_lo_u32 v{vT2}, v{vT2}, s{sT1}")
        e(f"v_add_u32 v{vXd+t}, v{vT2}, v{vT3}")
    cprw = RBW // 16
    rpiw = 64 // cprw
    lcw = {8: 3, 16: 4, 32: 5}[cprw]

    def fw(dst, row):
        if cprw == 8:
            e(f"v_bfe_u32 v{dst}, v{row}, 1, 1")
            e(f"v_lshlrev_b32 v{dst}, 2, v{dst}")
        else:
            e(f"v_and_b32 v{dst}, 3, v{row}")
            e(f"v_lshlrev_b32 v{dst}, 2, v{dst}")

    e(f"s_mul_i32 s{sT0}, s{sWave}, {nW*rpiw}")
    e(f"v_lshrrev_b32 v{vT0}, {lcw}, v{vLane}")
    e(f"v_and_b32 v{vT1}, {cprw-1}, v{vLane}")
    e(f"s_mov_b32 s{sT1}, {wstride}")
    e(f"s_lshl_b32 s{sXo}, s{sCol0}, 1")
    for t in range(nW):
        e(f"v_add_u32 v{vT2}, {t*rpiw}, v{vT0}")
        e(f"v_add_u32 v{vT2}, s{sT0}, v{vT2}")
        fw(vT3, vT2)
        e(f"v_xor_b32 v{vT3}, v{vT3}, v{vT1}")
        e(f"v_lshlrev_b32 v{vT3}, 4, v{vT3}")
        e(f"v_mul_lo_u32 v{vT2}, v{vT2}, s{sT1}")
        e(f"v_add3_u32 v{vWd+t}, v{vT2}, v{vT3}, s{sXo}")
    e(f"s_mul_i32 s{sWBx}, s{sWave}, {nX*1024}")
    e(f"s_mul_i32 s{sWBw}, s{sWave}, {nW*1024}")
    e(f"s_add_u32 s{sWBw}, s{sWBw}, {XB}")
    e(f"v_and_b32 v{vT0}, 31, v{vLane}")
    e(f"s_mul_i32 s{sT0}, s{sWm}, {RM}")
    e(f"v_add_u32 v{vT0}, s{sT0}, v{vT0}")
    fx(vT1, vT0)
    for ks in range(nks):
        e(f"v_add_u32 v{vT2}, {2*ks}, v{vH}")
        e(f"v_xor_b32 v{vT2}, v{vT2}, v{vT1}")
        e(f"v_lshlrev_b32 v{vT2}, 4, v{vT2}")
        e(f"v_mul_u32_u24 v{vT3}, {RBX}, v{vT0}")
        e(f"v_add_u32 v{vXa+ks}, v{vT2}, v{vT3}")
        if nhalf == 2:
            e(f"v_add_u32 v{vXa+nks+ks}, 0x10000, v{vXa+ks}")
    e(f"v_bfe_u32 v{vR}, v{vLane}, 2, 2")
    e(f"v_bfe_u32 v{vG}, v{vLane}, 4, 1")
    e(f"v_and_b32 v{vCq}, 3, v{vLane}")
    fw(vT1, vR)
    e(f"s_mul_i32 s{sT0}, s{sWn}, {nbn}")
    for bn in range(nbn):
        e(f"v_lshrrev_b32 v{vT2}, 1, v{vCq}")
        e(f"v_lshl_add_u32 v{vT2}, v{vG}, 1, v{vT2}")
        e(f"s_add_u32 s{sT1}, s{sT0}, {bn}")
        e(f"s_lshl_b32 s{sT1}, s{sT1}, 2")
        e(f"v_add_u32 v{vT2}, s{sT1}, v{vT2}")
        e(f"v_xor_b32 v{vT2}, v{vT2}, v{vT1}")
        e(f"v_lshlrev_b32 v{vT2}, 4, v{vT2}")
        e(f"v_and_b32 v{vT3}, 1, v{vCq}")
        e(f"v_lshl_add_u32 v{vT2}, v{vT3}, 3, v{vT2}")
        e(f"v_lshl_add_u32 v{vT3}, v{vH}, 3, v{vR}")
        e(f"v_mul_u32_u24 v{vT3}, {RBW}, v{vT3}")
        e(f"v_add3_u32 v{vWa+bn}, v{vT2}, v{vT3}, {XB}" if XB <= 64 else f"v_add_u32 v{vT2}, v{vT2}, v{vT3}\nv_add_u32 v{vWa+bn}, {XB}, v{vT2}")
        if nhalf == 2:
            e(f"v_add_u32 v{vWa+nbn+bn}, 0x10000, v{vWa+bn}")

    def dma_stage(slot):
        out = []
        for t in range(nX):
            out.append((f"s_add_u32 m0, s{sWBx}, {slot*STG + t*1024}",
                        f"buffer_load_dwordx4 v{vXd+t}, s[{SX}:{SX+3}], s{sXo} offen lds"))
        for t in range(nW):
            out.append((f"s_add_u32 m0, s{sWBw}, {slot*STG + t*1024}",
                        f"buffer_load_dwordx4 v{vWd+t}, s[{SW}:{SW+3}], s{sWo} offen lds"))
        return out

    def adv():
        e(f"s_add_u32 s{sXo}, s{sXo}, {KC*2}")
        e(f"s_add_u32 s{sWo}, s{sWo}, {KC*wstride}")

    e(f"s_mov_b32 s{sXo}, 0")
    e(f"s_mov_b32 s{sWo}, 0")
    for st in range(NST - 1):
        for m0i, ld in dma_stage(st):
            e(m0i)
            e("s_nop 0")
            e(ld)
        adv()
    for i in range(16 * nbm * nbn):
        e(f"v_mov_b32 v{vAcc+i}, 0")

    def stage(slot):
        e(f"s_waitcnt vmcnt({(NST-2)*(nX+nW)}) lgkmcnt(0)")
        a.lds_drained()
        e("s_barrier")
        base = slot * STG
        hx = 1 if (nhalf == 2 and base + XB > 65536 - 0 and base >= 65536) else 0
        def xaddr(ks, bm):
            off = base + bm * 32 * RBX
            if off >= 65536:
                return vXa + nks + ks, off - 65536
            return vXa + ks, off

        def waddr(bn, ks, s):
            off = base + (16 * ks + 4 * s) * RBW
            if off + XB >= 65536 and nhalf == 2 and off >= 65536:
                return vWa + nbn + bn, off - 65536
            return vWa + bn, off
        reads = []
        for ks in range(nks):
            for bm in range(nbm):
                r, off = xaddr(ks, bm)
                d = vXf + 4 * (ks * nbm + bm)
                reads.append((f"ds_read_b128 v[{d}:{d+3}], v{r} offset:{off}", regs(d, 4)))
            for bn in range(nbn):
                for s in range(2):
                    r, off = waddr(bn, ks, s)
                    assert off < 65536
                    d = vWf + 4 * (ks * nbn + bn) + 2 * s
                    reads.append((f"ds_read_b64_tr_b16 v[{d}:{d+1}], v{r} offset:{off}", regs(d, 2)))
        dl = dma_stage((slot + NST - 1) % NST)
        for ins, d in reads:
            a.lds_op(ins, d)
        nm = nks * nbm * nbn
        per = (len(dl) + nm - 1) // nm
        i = 0
        for ks in range(nks):
            for bm in range(nbm):
                for bn in range(nbn):
                    xf = vXf + 4 * (ks * nbm + bm)
                    wf = vWf + 4 * (ks * nbn + bn)
                    a.lds_need(regs(xf, 4) + regs(wf, 4))
                    acc = vAcc + 16 * (bm * nbn + bn)
                    e(f"v_mfma_f32_32x32x16_bf16 v[{acc}:{acc+15}], v[{wf}:{wf+3}], v[{xf}:{xf+3}], v[{acc}:{acc+15}]")
                    for _ in range(per):
                        if dl:
                            m0i, ld = dl.pop(0)
                            e(m0i)
                            e("s_nop 0")
                            e(ld)
                    i += 1
        adv()

    if unroll_all:
        for st in range(nst_total):
            stage(st % NST)
    else:
        assert nst_total % NST == 0
        e(f"s_mov_b32 s{sTrip}, 0")
        a.label(f"L_{pfx}_loop")
        for u in range(NST):
            stage(u)
        e(f"s_add_u32 s{sTrip}, s{sTrip}, 1")
        e(f"s_cmp_lt_u32 s{sTrip}, {nst_total // NST}")
        e(f"s_cbranch_scc1 L_{pfx}_loop")
    e("s_waitcnt vmcnt(0)")
    e("s_nop 15")
    return g


def out_offsets(a, g, sRow0, sCol0, stride, vdst, sT):
    e = a.e
    t0 = g.tmp[0]
    e(f"v_and_b32 v{t0}, 31, v{g.vLane}")
    e(f"s_mul_i32 s{sT}, s{g.sWm}, {g.RM}")
    e(f"s_add_u32 s{sT}, s{sT}, s{sRow0}")
    e(f"v_add_u32 v{t0}, s{sT}, v{t0}")
    e(f"s_mov_b32 s{sT}, {stride}")
    e(f"v_mul_lo_u32 v{vdst}, v{t0}, s{sT}")
    e(f"s_mul_i32 s{sT}, s{g.sWn}, {g.CN}")
    e(f"s_add_u32 s{sT}, s{sT}, s{sCol0}")
    e(f"s_lshl_b32 s{sT}, s{sT}, 1")
    e(f"v_add_u32 v{vdst}, s{sT}, v{vdst}")
    e(f"v_lshl_add_u32 v{vdst}, v{g.vH}, 4, v{vdst}")


def to_rowmajor16(a, src16, tmp):
    pass


def gen_k3(name="gs_kernel"):
    a = Asm()
    e = a.e
    e("s_cmp_ge_u32 s2, 224")
    e("s_cbranch_scc1 L_k3_end")
    e("s_load_dwordx2 s[40:41], s[0:1], 56")
    e("s_load_dwordx2 s[42:43], s[0:1], 64")
    e("s_load_dwordx2 s[44:45], s[0:1], 32")
    e("s_load_dwordx2 s[46:47], s[0:1], 96")
    e("v_lshrrev_b32 v1, 6, v0")
    e("s_and_b32 s50, s2, 7")
    e("s_lshr_b32 s51, s2, 3")
    e("v_readfirstlane_b32 s24, v1")
    e("s_waitcnt lgkmcnt(0)")
    e("s_cmp_ge_u32 s51, 14")
    e("s_cbranch_scc1 L_k3_s")
    e("s_cmp_ge_u32 s51, 7")
    e("s_cselect_b32 s52, 1, 0")
    e("s_mul_i32 s53, s52, 7")
    e("s_sub_u32 s53, s51, s53")
    e("s_lshl_b32 s54, s50, 1")
    e("s_add_u32 s54, s54, s52")
    e("s_lshl_b32 s25, s54, 7")
    e("s_lshl_b32 s26, s53, 7")
    srd(e, 4, 40, 41, 0, 2048 * 4096)
    srd(e, 8, 46, 47, WS_Z2N, 2048 * 1792)
    srd(e, 12, 46, 47, WS_Z1, 2048 * 1792)
    srd(e, 16, 46, 47, WS_HM, 2048 * 1792)
    srd(e, 20, 42, 43, 0, 4096)
    g = gemm_core(a, "k3g", 128, 128, 2, 2, 2048, 64, 4, 4, 8, 4096, 1792, 25, 26, 24, 2, 60)
    vOff = g.tmp[1]
    out_offsets(a, g, 25, 26, 1792, vOff, 55)
    f = g.vfree0
    vB = g.tmp[2]
    t0 = g.tmp[0]
    for bm in range(g.nbm):
        e(f"v_lshlrev_b32 v{g.tmp[3]}, 1, v{t0}")
        e(f"buffer_load_ushort v{vB+0 if bm == 0 else g.tmp[4]}, v{g.tmp[3]}, s[20:23], 0 offen offset:{bm*64}")
    idx = 0
    zl = {}
    for bm in range(g.nbm):
        for bn in range(g.nbn):
            for gp in range(2):
                d = f + 4 * idx
                zl[(bm, bn, gp)] = d
                e(f"s_mov_b32 s56, {bm*32*1792}")
                e(f"buffer_load_dwordx4 v[{d}:{d+3}], v{vOff}, s[12:15], s56 offen offset:{(32*bn+16*gp)*2}")
                idx += 1
    e("s_waitcnt vmcnt(0)")
    e(f"v_lshlrev_b32 v{vB}, 16, v{vB}")
    e(f"v_lshlrev_b32 v{g.tmp[4]}, 16, v{g.tmp[4]}")
    w = f + 4 * idx
    w = (w + 3) // 4 * 4
    for bm in range(g.nbm):
        bb = vB if bm == 0 else g.tmp[4]
        for bn in range(g.nbn):
            acc = g.vAcc + 16 * (bm * g.nbn + bn)
            for gp in range(2):
                s8 = acc + 8 * gp
                for i in range(4):
                    e(f"v_cvt_pk_bf16_f32 v{w+i}, v{s8+2*i}, v{s8+2*i+1}")
                e("s_nop 1")
                e(f"v_permlane32_swap_b32 v{w}, v{w+2}")
                e(f"v_permlane32_swap_b32 v{w+1}, v{w+3}")
                z = zl[(bm, bn, gp)]
                for i in range(4):
                    lo, hi = s8 + 2 * i, s8 + 2 * i + 1
                    e(f"v_lshlrev_b32 v{lo}, 16, v{w+i}")
                    e(f"v_and_b32 v{hi}, 0xffff0000, v{w+i}")
                    e(f"v_add_f32 v{lo}, v{lo}, v{bb}")
                    e(f"v_add_f32 v{hi}, v{hi}, v{bb}")
                    e(f"v_cvt_pk_bf16_f32 v{w+i}, v{lo}, v{hi}")
                    e(f"v_lshlrev_b32 v{lo}, 16, v{w+i}")
                    e(f"v_and_b32 v{hi}, 0xffff0000, v{w+i}")
                    e(f"v_lshlrev_b32 v{w+4}, 16, v{z+i}")
                    e(f"v_and_b32 v{w+5}, 0xffff0000, v{z+i}")
                    e(f"v_mul_f32 v{lo}, v{lo}, v{w+4}")
                    e(f"v_mul_f32 v{hi}, v{hi}, v{w+5}")
                    e(f"v_cvt_pk_bf16_f32 v{z+i}, v{lo}, v{hi}")
                e(f"s_mov_b32 s56, {bm*32*1792}")
                e(f"buffer_store_dwordx4 v[{z}:{z+3}], v{vOff}, s[16:19], s56 offen offset:{(32*bn+16*gp)*2}")
    e("s_waitcnt vmcnt(0)")
    e("s_endpgm")
    vmax = g.vend
    a.label("L_k3_s")
    e("s_sub_u32 s51, s51, 14")
    e("s_cmp_ge_u32 s51, 7")
    e("s_cselect_b32 s52, 1, 0")
    e("s_mul_i32 s53, s52, 7")
    e("s_sub_u32 s53, s51, s53")
    e("s_lshl_b32 s54, s50, 1")
    e("s_add_u32 s54, s54, s52")
    e("s_lshl_b32 s25, s54, 7")
    e("s_lshl_b32 s26, s53, 6")
    srd(e, 4, 46, 47, WS_O, 2048 * 8192)
    srd(e, 8, 44, 45, 0, 4096 * 896)
    srd(e, 16, 46, 47, WS_S, 2048 * 896)
    g = gemm_core(a, "k3s", 128, 64, 2, 2, 4096, 64, 4, 4, 8, 8192, 896, 25, 26, 24, 2, 60)
    vOff = g.tmp[1]
    out_offsets(a, g, 25, 26, 896, vOff, 55)
    f = g.vfree0
    k = 0
    for bm in range(g.nbm):
        for bn in range(g.nbn):
            acc = g.vAcc + 16 * (bm * g.nbn + bn)
            for gp in range(2):
                w = f + 4 * k
                k += 1
                s8 = acc + 8 * gp
                for i in range(4):
                    e(f"v_cvt_pk_bf16_f32 v{w+i}, v{s8+2*i}, v{s8+2*i+1}")
                e("s_nop 1")
                e(f"v_permlane32_swap_b32 v{w}, v{w+2}")
                e(f"v_permlane32_swap_b32 v{w+1}, v{w+3}")
                e(f"s_mov_b32 s56, {bm*32*896}")
                e(f"buffer_store_dwordx4 v[{w}:{w+3}], v{vOff}, s[16:19], s56 offen offset:{(32*bn+16*gp)*2}")
    e("s_waitcnt vmcnt(0)")
    a.label("L_k3_end")
    e("s_endpgm")
    vmax = max(vmax, g.vend)
    vmax = (vmax + 7) // 8 * 8
    return a.text(), kernel_desc(name, vmax, vmax, 96), 131072


def gen_k4(name="fin_kernel"):
    a = Asm()
    e = a.e
    e("s_cmp_ge_u32 s2, 224")
    e("s_cbranch_scc1 L_k4_end")
    e("s_load_dwordx2 s[40:41], s[0:1], 72")
    e("s_load_dwordx2 s[42:43], s[0:1], 0")
    e("s_load_dwordx2 s[44:45], s[0:1], 80")
    e("s_load_dwordx2 s[46:47], s[0:1], 96")
    e("v_lshrrev_b32 v1, 6, v0")
    e("s_and_b32 s50, s2, 7")
    e("s_lshr_b32 s51, s2, 3")
    e("v_readfirstlane_b32 s24, v1")
    e("s_mul_i32 s52, s51, 37")
    e("s_lshr_b32 s52, s52, 8")
    e("s_mul_i32 s53, s52, 7")
    e("s_sub_u32 s53, s51, s53")
    e("s_lshl_b32 s54, s50, 2")
    e("s_add_u32 s54, s54, s52")
    e("s_lshl_b32 s25, s54, 6")
    e("s_lshl_b32 s26, s53, 6")
    e("s_waitcnt lgkmcnt(0)")
    srd(e, 4, 46, 47, WS_HM, 2048 * 1792)
    srd(e, 8, 40, 41, 0, 896 * 896)
    srd(e, 12, 46, 47, WS_S, 2048 * 896)
    srd(e, 16, 44, 45, 0, 2048 * 896)
    srd(e, 20, 42, 43, 0, 2048 * 896)
    g = gemm_core(a, "k4", 64, 64, 2, 2, 896, 64, 4, 4, 8, 1792, 896, 25, 26, 24, 2, 60, unroll_all=True)
    vOff = g.tmp[1]
    out_offsets(a, g, 25, 26, 896, vOff, 55)
    f = g.vfree0
    acc = g.vAcc
    for gp in range(2):
        e(f"buffer_load_dwordx4 v[{f+4*gp}:{f+4*gp+3}], v{vOff}, s[12:15], 0 offen offset:{32*gp}")
        e(f"buffer_load_dwordx4 v[{f+8+4*gp}:{f+8+4*gp+3}], v{vOff}, s[20:23], 0 offen offset:{32*gp}")
    w = f + 16
    e(f"s_mov_b32 s57, {f32hex(-1.4426950408889634)}")
    e("s_waitcnt vmcnt(0)")
    for gp in range(2):
        s8 = acc + 8 * gp
        for i in range(4):
            e(f"v_cvt_pk_bf16_f32 v{w+i}, v{s8+2*i}, v{s8+2*i+1}")
        e("s_nop 1")
        e(f"v_permlane32_swap_b32 v{w}, v{w+2}")
        e(f"v_permlane32_swap_b32 v{w+1}, v{w+3}")
        sv, xv = f + 4 * gp, f + 8 + 4 * gp
        for i in range(4):
            for hh in range(2):
                y = s8 + 2 * i + hh
                t = w + 4 + hh
                if hh == 0:
                    e(f"v_lshlrev_b32 v{y}, 16, v{w+i}")
                else:
                    e(f"v_and_b32 v{y}, 0xffff0000, v{w+i}")
                e(f"v_mul_f32 v{t}, s57, v{y}")
                e(f"v_exp_f32 v{t}, v{t}")
                e("s_nop 0")
                e(f"v_add_f32 v{t}, 1.0, v{t}")
                e(f"v_rcp_f32 v{t}, v{t}")
                e("s_nop 0")
                e(f"v_mul_f32 v{y}, v{y}, v{t}")
            lo, hi = s8 + 2 * i, s8 + 2 * i + 1
            e(f"v_cvt_pk_bf16_f32 v{w+i}, v{lo}, v{hi}")
            e(f"v_lshlrev_b32 v{lo}, 16, v{w+i}")
            e(f"v_and_b32 v{hi}, 0xffff0000, v{w+i}")
            e(f"v_lshlrev_b32 v{w+4}, 16, v{sv+i}")
            e(f"v_and_b32 v{w+5}, 0xffff0000, v{sv+i}")
            e(f"v_mul_f32 v{lo}, v{lo}, v{w+4}")
            e(f"v_mul_f32 v{hi}, v{hi}, v{w+5}")
            e(f"v_cvt_pk_bf16_f32 v{w+i}, v{lo}, v{hi}")
            e(f"v_lshlrev_b32 v{lo}, 16, v{w+i}")
            e(f"v_and_b32 v{hi}, 0xffff0000, v{w+i}")
            e(f"v_lshlrev_b32 v{w+4}, 16, v{xv+i}")
            e(f"v_and_b32 v{w+5}, 0xffff0000, v{xv+i}")
            e(f"v_add_f32 v{lo}, v{lo}, v{w+4}")
            e(f"v_add_f32 v{hi}, v{hi}, v{w+5}")
            e(f"v_cvt_pk_bf16_f32 v{sv+i}, v{lo}, v{hi}")
        e(f"buffer_store_dwordx4 v[{sv}:{sv+3}], v{vOff}, s[16:19], 0 offen offset:{32*gp}")
    e("s_waitcnt vmcnt(0)")
    a.label("L_k4_end")
    e("s_endpgm")
    vmax = (g.vend + 7) // 8 * 8
    return a.text(), kernel_desc(name, vmax, vmax, 96), 65536


def gen_ln2(name="ln2_kernel"):
    a = Asm()
    e = a.e
    e("s_cmp_ge_u32 s2, 256")
    e("s_cbranch_scc1 L_ln2_end")
    e("s_load_dwordx2 s[46:47], s[0:1], 96")
    e("v_lshrrev_b32 v1, 5, v0")
    e("v_and_b32 v2, 31, v0")
    e("s_lshl_b32 s3, s2, 3")
    e("v_add_u32 v1, s3, v1")
    e("s_movk_i32 s3, 1792")
    e("v_mul_lo_u32 v1, v1, s3")
    e("v_lshl_add_u32 v1, v2, 2, v1")
    e("s_waitcnt lgkmcnt(0)")
    srd(e, 4, 46, 47, WS_Z2, 2048 * 1792)
    srd(e, 8, 46, 47, WS_Z2N, 2048 * 1792)
    for t in range(14):
        e(f"buffer_load_dword v{8+t}, v1, s[4:7], 0 offen offset:{128*t}")
    e("v_mov_b32 v4, 0")
    e("v_mov_b32 v5, 0")
    e("s_mov_b32 s12, 0x3f803f80")
    e("v_mov_b32 v6, s12")
    e("s_waitcnt vmcnt(0)")
    for t in range(14):
        e(f"v_dot2_f32_bf16 v4, v{8+t}, v6, v4")
        e(f"v_dot2_f32_bf16 v5, v{8+t}, v{8+t}, v5")
    for x in (1, 2, 4, 8, 16):
        e(f"ds_swizzle_b32 v2, v4 offset:{(x << 10) | 0x1f}")
        e(f"ds_swizzle_b32 v3, v5 offset:{(x << 10) | 0x1f}")
        e("s_waitcnt lgkmcnt(0)")
        e("v_add_f32 v4, v4, v2")
        e("v_add_f32 v5, v5, v3")
    ln_stats(e, 4, 5, 2, 3, 896)
    for t in range(14):
        e(f"v_lshlrev_b32 v2, 16, v{8+t}")
        e(f"v_and_b32 v3, 0xffff0000, v{8+t}")
        e("v_sub_f32 v2, v2, v4")
        e("v_sub_f32 v3, v3, v4")
        e("v_cvt_pk_bf16_f32 v2, v2, v3")
        e("v_and_b32 v3, 0xffff0000, v2")
        e("v_lshlrev_b32 v2, 16, v2")
        e("v_mul_f32 v2, v2, v5")
        e("v_mul_f32 v3, v3, v5")
        e(f"v_cvt_pk_bf16_f32 v{8+t}, v2, v3")
        e(f"buffer_store_dword v{8+t}, v1, s[8:11], 0 offen offset:{128*t}")
    e("s_waitcnt vmcnt(0)")
    a.label("L_ln2_end")
    e("s_endpgm")
    return a.text(), kernel_desc(name, 32, 32, 64), 0


def ln_stats(e, vS, vQ, t0, t1, n):
    e(f"v_mul_f32 v{vS}, {f32hex(1.0/n)}, v{vS}")
    e(f"v_mul_f32 v{vQ}, {f32hex(1.0/n)}, v{vQ}")
    e(f"v_fma_f32 v{vQ}, -v{vS}, v{vS}, v{vQ}")
    e(f"v_max_f32 v{vQ}, 0, v{vQ}")
    e(f"v_cvt_pk_bf16_f32 v{t0}, v{vS}, v{vQ}")
    e(f"v_lshlrev_b32 v{vS}, 16, v{t0}")
    e(f"v_and_b32 v{vQ}, 0xffff0000, v{t0}")
    e(f"v_add_f32 v{vQ}, {f32hex(1e-5)}, v{vQ}")
    e(f"v_cvt_pk_bf16_f32 v{t0}, v{vQ}, v{vQ}")
    e(f"v_lshlrev_b32 v{vQ}, 16, v{t0}")
    e(f"v_sqrt_f32 v{vQ}, v{vQ}")
    e("s_nop 0")
    e(f"v_cvt_pk_bf16_f32 v{t0}, v{vQ}, v{vQ}")
    e(f"v_lshlrev_b32 v{vQ}, 16, v{t0}")
    e(f"v_rcp_f32 v{vQ}, v{vQ}")
    e("s_nop 0")


def gen_k1(name="pre_kernel"):
    a = Asm()
    e = a.e
    e("s_cmp_ge_u32 s2, 224")
    e("s_cbranch_scc1 L_k1_end")
    e("s_load_dwordx2 s[40:41], s[0:1], 0")
    e("s_load_dwordx2 s[42:43], s[0:1], 48")
    e("s_load_dwordx2 s[46:47], s[0:1], 96")
    e("v_lshrrev_b32 v1, 6, v0")
    e("s_and_b32 s50, s2, 7")
    e("s_lshr_b32 s51, s2, 3")
    e("v_readfirstlane_b32 s24, v1")
    e("s_cmp_ge_u32 s51, 14")
    e("s_cselect_b32 s52, 1, 0")
    e("s_mul_i32 s53, s52, 14")
    e("s_sub_u32 s53, s51, s53")
    e("s_lshl_b32 s54, s50, 1")
    e("s_add_u32 s54, s54, s52")
    e("s_lshl_b32 s25, s54, 7")
    e("s_lshl_b32 s26, s53, 7")
    e("s_waitcnt lgkmcnt(0)")
    srd(e, 4, 40, 41, 0, 2048 * 896)
    srd(e, 8, 42, 43, 0, 448 * 3584)
    srd(e, 12, 46, 47, WS_XN, 2048 * 896)
    e("s_cmp_ge_u32 s53, 7")
    e(f"s_mov_b32 s55, {WS_Z1}")
    e(f"s_cselect_b32 s55, {WS_Z2}, s55")
    e("s_cselect_b32 s56, 896, 0")
    e("s_sub_u32 s27, s26, s56")
    srd(e, 16, 46, 47, "s55", 2048 * 1792)
    vLane, vH, vT0, vT1, vT2, vT3, vR, vG, vCq = 1, 2, 3, 4, 5, 6, 7, 8, 9
    vXo, vSum, vSq, vOne, vZo = 10, 11, 12, 13, 14
    vWd = 16
    vWa = 20
    vX = 32
    vWf = 144
    vAcc = 208
    vAcc = 144
    vWf = 208
    e(f"v_and_b32 v{vLane}, 63, v0")
    e(f"v_lshrrev_b32 v{vH}, 5, v{vLane}")
    e(f"v_lshrrev_b32 v{vT0}, 4, v{vLane}")
    e(f"v_and_b32 v{vT1}, 15, v{vLane}")
    e("s_lshl_b32 s57, s24, 4")
    e("s_movk_i32 s58, 3584")
    e("s_lshl_b32 s59, s26, 1")
    for t in range(4):
        e(f"v_add_u32 v{vT2}, {4*t}, v{vT0}")
        e(f"v_add_u32 v{vT2}, s57, v{vT2}")
        e(f"v_and_b32 v{vT3}, 3, v{vT2}")
        e(f"v_lshlrev_b32 v{vT3}, 2, v{vT3}")
        e(f"v_xor_b32 v{vT3}, v{vT3}, v{vT1}")
        e(f"v_lshlrev_b32 v{vT3}, 4, v{vT3}")
        e(f"v_mul_lo_u32 v{vT2}, v{vT2}, s58")
        e(f"v_add3_u32 v{vWd+t}, v{vT2}, v{vT3}, s59")
    e(f"v_and_b32 v{vT0}, 31, v{vLane}")
    e("s_lshl_b32 s57, s24, 5")
    e("s_add_u32 s57, s57, s25")
    e(f"v_add_u32 v{vT0}, s57, v{vT0}")
    e("s_movk_i32 s58, 896")
    e(f"v_mul_lo_u32 v{vXo}, v{vT0}, s58")
    e(f"v_lshl_add_u32 v{vXo}, v{vH}, 4, v{vXo}")
    e("s_movk_i32 s58, 1792")
    e(f"v_mul_lo_u32 v{vZo}, v{vT0}, s58")
    e(f"v_lshl_add_u32 v{vZo}, v{vH}, 4, v{vZo}")
    e("s_lshl_b32 s58, s27, 1")
    e(f"v_add_u32 v{vZo}, s58, v{vZo}")
    for ks in range(28):
        e(f"buffer_load_dwordx4 v[{vX+4*ks}:{vX+4*ks+3}], v{vXo}, s[4:7], 0 offen offset:{ks*32}")
    e("s_lshl_b32 s57, s24, 12")
    for ci in range(7):
        e(f"s_mov_b32 s58, {ci*64*3584}")
        for t in range(4):
            e(f"s_add_u32 m0, s57, {ci*16384 + t*1024}")
            e("s_nop 0")
            e(f"buffer_load_dwordx4 v{vWd+t}, s[8:11], s58 offen lds")
    e(f"v_bfe_u32 v{vR}, v{vLane}, 2, 2")
    e(f"v_bfe_u32 v{vG}, v{vLane}, 4, 1")
    e(f"v_and_b32 v{vCq}, 3, v{vLane}")
    for bn in range(4):
        e(f"v_lshrrev_b32 v{vT2}, 1, v{vCq}")
        e(f"v_lshl_add_u32 v{vT2}, v{vG}, 1, v{vT2}")
        e(f"v_add_u32 v{vT2}, {4*bn}, v{vT2}")
        e(f"v_lshlrev_b32 v{vT3}, 2, v{vR}")
        e(f"v_xor_b32 v{vT2}, v{vT2}, v{vT3}")
        e(f"v_lshlrev_b32 v{vT2}, 4, v{vT2}")
        e(f"v_and_b32 v{vT3}, 1, v{vCq}")
        e(f"v_lshl_add_u32 v{vT2}, v{vT3}, 3, v{vT2}")
        e(f"v_lshl_add_u32 v{vT3}, v{vH}, 3, v{vR}")
        e(f"v_lshl_add_u32 v{vWa+bn}, v{vT3}, 8, v{vT2}")
        e(f"v_add_u32 v{vWa+4+bn}, 0x10000, v{vWa+bn}")
    e("s_mov_b32 s58, 0x3f803f80")
    e(f"v_mov_b32 v{vOne}, s58")
    e(f"v_mov_b32 v{vSum}, 0")
    e(f"v_mov_b32 v{vSq}, 0")
    e("s_waitcnt vmcnt(28)")
    for i in range(112):
        e(f"v_dot2_f32_bf16 v{vSum}, v{vX+i}, v{vOne}, v{vSum}")
        e(f"v_dot2_f32_bf16 v{vSq}, v{vX+i}, v{vX+i}, v{vSq}")
    e(f"v_mov_b32 v{vT0}, v{vSum}")
    e(f"v_mov_b32 v{vT1}, v{vSq}")
    e("s_nop 1")
    e(f"v_permlane32_swap_b32 v{vT0}, v{vSum}")
    e(f"v_permlane32_swap_b32 v{vT1}, v{vSq}")
    e("s_nop 1")
    e(f"v_add_f32 v{vSum}, v{vSum}, v{vT0}")
    e(f"v_add_f32 v{vSq}, v{vSq}, v{vT1}")
    ln_stats(e, vSum, vSq, vT0, vT1, 448)
    for i in range(112):
        x = vX + i
        e(f"v_lshlrev_b32 v{vT0}, 16, v{x}")
        e(f"v_and_b32 v{vT1}, 0xffff0000, v{x}")
        e(f"v_sub_f32 v{vT0}, v{vT0}, v{vSum}")
        e(f"v_sub_f32 v{vT1}, v{vT1}, v{vSum}")
        e(f"v_cvt_pk_bf16_f32 v{vT0}, v{vT0}, v{vT1}")
        e(f"v_and_b32 v{vT1}, 0xffff0000, v{vT0}")
        e(f"v_lshlrev_b32 v{vT0}, 16, v{vT0}")
        e(f"v_mul_f32 v{vT0}, v{vT0}, v{vSq}")
        e(f"v_mul_f32 v{vT1}, v{vT1}, v{vSq}")
        e(f"v_cvt_pk_bf16_f32 v{x}, v{vT0}, v{vT1}")
    e("s_cmp_lg_u32 s53, 0")
    e("s_cbranch_scc1 L_k1_noxn")
    for ks in range(28):
        e(f"buffer_store_dwordx4 v[{vX+4*ks}:{vX+4*ks+3}], v{vXo}, s[12:15], 0 offen offset:{ks*32}")
    e("s_waitcnt vmcnt(0)")
    a.label("L_k1_noxn")
    e("s_waitcnt vmcnt(0)")
    e("s_barrier")
    for ks in range(28):
        fb = vWf + 16 * (ks % 3)
        for bn in range(4):
            for s in range(2):
                off = (16 * ks + 4 * s) * 256
                r = vWa + bn
                if off >= 65536:
                    off -= 65536
                    r += 4
                d = fb + 4 * bn + 2 * s
                a.lds_op(f"ds_read_b64_tr_b16 v[{d}:{d+1}], v{r} offset:{off}", regs(d, 2))
        if ks >= 1:
            k0 = ks - 1
            f0 = vWf + 16 * (k0 % 3)
            for bn in range(4):
                a.lds_need(regs(f0 + 4 * bn, 4))
                c = f"v[{vAcc+16*bn}:{vAcc+16*bn+15}]" if k0 else "0"
                e(f"v_mfma_f32_32x32x16_bf16 v[{vAcc+16*bn}:{vAcc+16*bn+15}], v[{f0+4*bn}:{f0+4*bn+3}], v[{vX+4*k0}:{vX+4*k0+3}], {c}")
    k0 = 27
    f0 = vWf + 16 * (k0 % 3)
    for bn in range(4):
        a.lds_need(regs(f0 + 4 * bn, 4))
        e(f"v_mfma_f32_32x32x16_bf16 v[{vAcc+16*bn}:{vAcc+16*bn+15}], v[{f0+4*bn}:{f0+4*bn+3}], v[{vX+4*k0}:{vX+4*k0+3}], v[{vAcc+16*bn}:{vAcc+16*bn+15}]")
    e("s_nop 15")
    c1 = -2.0 * 1.4426950408889634 * 0.7978845608028654
    c2 = c1 * 0.044715
    e(f"s_mov_b32 s57, {f32hex(c1)}")
    e(f"s_mov_b32 s58, {f32hex(c2)}")
    e(f"v_mov_b32 v{vOne}, s57")
    w = vX
    k = 0
    for bn in range(4):
        for gp in range(2):
            s8 = vAcc + 16 * bn + 8 * gp
            o = w + 4 * (k % 8)
            k += 1
            for i in range(4):
                lo, hi = s8 + 2 * i, s8 + 2 * i + 1
                e(f"v_cvt_pk_bf16_f32 v{vT0}, v{lo}, v{hi}")
                e(f"v_lshlrev_b32 v{lo}, 16, v{vT0}")
                e(f"v_and_b32 v{hi}, 0xffff0000, v{vT0}")
                for y, t in ((lo, vT1), (hi, vT2)):
                    e(f"v_mul_f32 v{t}, v{y}, v{y}")
                    e(f"v_fma_f32 v{t}, v{t}, s58, v{vOne}")
                    e(f"v_mul_f32 v{t}, v{t}, v{y}")
                    e(f"v_exp_f32 v{t}, v{t}")
                for y, t in ((lo, vT1), (hi, vT2)):
                    e(f"v_add_f32 v{t}, 1.0, v{t}")
                    e(f"v_rcp_f32 v{t}, v{t}")
                e("s_nop 0")
                for y, t in ((lo, vT1), (hi, vT2)):
                    e(f"v_mul_f32 v{y}, v{y}, v{t}")
                e(f"v_cvt_pk_bf16_f32 v{o+i}, v{lo}, v{hi}")
            e("s_nop 1")
            e(f"v_permlane32_swap_b32 v{o}, v{o+2}")
            e(f"v_permlane32_swap_b32 v{o+1}, v{o+3}")
            e("s_nop 0")
            e(f"buffer_store_dwordx4 v[{o}:{o+3}], v{vZo}, s[16:19], 0 offen offset:{(32*bn+16*gp)*2}")
    e("s_waitcnt vmcnt(0)")
    a.label("L_k1_end")
    e("s_endpgm")
    return a.text(), kernel_desc(name, 256, 256, 96), 114688
```

```python
from build import *
from gen_attn import *
from gen_gemm import *
import sys
out = sys.argv[1] if len(sys.argv) > 1 else "recurrent_scan__mha_block_cached__mixer_gmlp__prompt.s"
b1, d1, l1 = gen_k1()
b2, d2, l2 = gen_ln2()
ba, da = gen_attn()
b3, d3, l3 = gen_k3()
b4, d4, l4 = gen_k4()
assemble([("pre_kernel", 224, 256, l1, b1, d1),
          ("ln2_kernel", 256, 256, l2, b2, d2),
          ("attn_kernel", 256, 256, 131072, ba, da),
          ("gs_kernel", 224, 256, l3, b3, d3),
          ("fin_kernel", 224, 256, l4, b4, d4)], out)
```

```python
import re


class Asm:
    def __init__(self):
        self.lines = []
        self.lds_q = []
        self.uid = 0

    def e(self, s):
        for ln in s.split("\n"):
            ln = ln.strip()
            if ln:
                self.lines.append("    " + ln if not ln.endswith(":") else ln)

    def label(self, name):
        self.lines.append(name + ":")

    def comment(self, s):
        self.lines.append("    ; " + s)

    def newlabel(self, base):
        self.uid += 1
        return f"{base}_{self.uid}"

    def text(self):
        return "\n".join(self.lines) + "\n"

    def lds_op(self, s, dest=()):
        self.e(s)
        self.lds_q.append(set(dest))

    def lds_need(self, regs):
        regs = set(regs)
        last = -1
        for i, d in enumerate(self.lds_q):
            if d & regs:
                last = i
        if last < 0:
            return
        n_after = len(self.lds_q) - 1 - last
        n = min(n_after, 15)
        self.e(f"s_waitcnt lgkmcnt({n})")
        self.lds_q = self.lds_q[len(self.lds_q) - n:] if n > 0 else []

    def lds_drained(self):
        self.lds_q = []


def vr(base, n=1, p="v"):
    if n == 1:
        return f"{p}{base}"
    return f"{p}[{base}:{base + n - 1}]"


def regs(base, n, p="v"):
    return [f"{p}{base + i}" for i in range(n)]


def kernel_header(name):
    return f""".globl {name}
.p2align 8
.type {name},@function
{name}:
"""


def kernel_desc(name, vgpr, accum, sgpr=96):
    return f""".amdhsa_kernel {name}
  .amdhsa_next_free_vgpr {vgpr}
  .amdhsa_next_free_sgpr {sgpr}
  .amdhsa_accum_offset {accum}
  .amdhsa_group_segment_fixed_size 0
  .amdhsa_kernarg_size 104
  .amdhsa_user_sgpr_count 2
  .amdhsa_user_sgpr_kernarg_segment_ptr 1
  .amdhsa_system_sgpr_workgroup_id_x 1
.end_amdhsa_kernel
"""


class Stamper:
    def __init__(self, a, on, kidx, sbase=64):
        self.a, self.on, self.kidx, self.sb, self.n = a, on, kidx, sbase, 0

    def __call__(self):
        if not self.on:
            return
        r = self.sb + 2 * self.n
        self.a.e(f"s_memrealtime s[{r}:{r+1}]")
        self.n += 1

    def dump(self, vtmp=2):
        if not self.on:
            return
        e = self.a.e
        self()
        e("s_load_dwordx2 s[92:93], s[0:1], 96")
        e("s_waitcnt lgkmcnt(0)")
        e(f"s_add_u32 s92, s92, {0x9000000 + self.kidx*0x40000}")
        e("s_addc_u32 s93, s93, 0")
        e("s_mov_b32 s94, 0x40000")
        e("s_mov_b32 s95, 0x20000")
        e(f"v_lshrrev_b32 v{vtmp}, 6, v0")
        e("s_lshl_b32 s91, s2, 2")
        e(f"v_add_u32 v{vtmp}, s91, v{vtmp}")
        e(f"v_lshlrev_b32 v{vtmp}, 7, v{vtmp}")
        for i in range(2 * self.n):
            e(f"v_mov_b32 v{vtmp+1}, s{self.sb+i}")
            e(f"buffer_store_dword v{vtmp+1}, v{vtmp}, s[92:95], 0 offen offset:{4*i}")
        e("s_waitcnt vmcnt(0)")
```

```python
from asmlib import *
from gen_attn import f32hex, WS_XN, WS_Z1, WS_Z2, WS_Z2T, WS_O, WS_HM
from gen_gemm import ln_stats, srd, WS_Z2N

LOG2E = 1.4426950408889634
SCALE = LOG2E / 16.0
THR = 8.0


def gen_attn2(name="attn_kernel", stamp=False, use_dot=True, prefetch=True):
    a = Asm()
    e = a.e
    st = Stamper(a, stamp, 1, 70)
    SK, SV, SW, SX, SO, SI, SZ = 4, 8, 12, 16, 20, 48, 52
    sWave, sHead, sQb, sWB, sKoff, sVoff, sTrip, sC, sT0, sT1 = 24, 25, 26, 27, 28, 29, 30, 31, 32, 33
    sWoff, sThr, sMask, sG1, sG2 = 36, 37, 38, 39, 56
    vLane = 1
    vT0, vT1, vT2, vT3 = 2, 3, 40, 41
    vKd, vVd, vWd = 4, 8, 12
    vKa, vVa, vWa = 16, 24, 28
    vOne, vZo, vL, vMax, vM, vAl = 32, 33, 34, 35, 36, 37
    vOoff = 38
    vC1 = 39
    vId = 232
    vIa = 236
    vS = [48, 64]
    vNM = 80
    vP = 96
    vKf = 104
    vVf = 168
    vX = 48
    vZ = [48, 64, 80, 240]
    aO, aQ, aX = 0, 128, 128
    VRING = 65536

    e("s_cmp_ge_u32 s2, 256")
    e("s_cbranch_scc1 L_attn_end")
    st()
    e("s_load_dwordx4 s[40:43], s[0:1], 8")
    e("s_load_dwordx2 s[44:45], s[0:1], 24")
    e("s_load_dwordx2 s[46:47], s[0:1], 96")
    e("s_load_dwordx2 s[58:59], s[0:1], 0")
    e("s_load_dwordx2 s[60:61], s[0:1], 48")
    e(f"s_and_b32 s{sT0}, s2, 7")
    e(f"s_lshl_b32 s{sT0}, s{sT0}, 1")
    e(f"s_lshr_b32 s{sT1}, s2, 3")
    e(f"s_and_b32 s{sHead}, s{sT1}, 1")
    e(f"s_add_u32 s{sHead}, s{sHead}, s{sT0}")
    e(f"s_lshr_b32 s{sQb}, s2, 4")
    e(f"v_lshrrev_b32 v{vT0}, 6, v0")
    e(f"v_and_b32 v{vLane}, 63, v0")
    e(f"v_readfirstlane_b32 s{sWave}, v{vT0}")
    e(f"s_mov_b32 s{sC}, {f32hex(SCALE)}")
    e(f"s_mov_b32 s{sThr}, {f32hex(THR)}")
    e(f"s_mov_b32 s{sMask}, 0xffff0000")
    e(f"v_lshrrev_b32 v{vT0}, 5, v{vLane}")
    e(f"v_and_b32 v{vT1}, 31, v{vLane}")
    e(f"s_lshl_b32 s{sT0}, s{sQb}, 7")
    e(f"s_lshl_b32 s{sT1}, s{sWave}, 5")
    e(f"s_add_u32 s{sT0}, s{sT0}, s{sT1}")
    e(f"v_add_u32 v{vT2}, s{sT0}, v{vT1}")
    e(f"s_movk_i32 s{sT1}, 896")
    e(f"v_mul_lo_u32 v{vT3}, v{vT2}, s{sT1}")
    e(f"v_lshl_add_u32 v{vT3}, v{vT0}, 4, v{vT3}")
    e("s_waitcnt lgkmcnt(0)")
    srd(e, SX, 58, 59, 0, 2048 * 896)
    for ks in range(28):
        e(f"buffer_load_dwordx4 v[{vX+4*ks}:{vX+4*ks+3}], v{vT3}, s[{SX}:{SX+3}], 0 offen offset:{ks*32}")
    e(f"v_lshlrev_b32 v{vOoff}, 13, v{vT2}")
    e(f"v_lshl_add_u32 v{vOoff}, v{vT0}, 4, v{vOoff}")
    e(f"s_lshl_b32 s{sT0}, s{sHead}, 9")
    e(f"v_add_u32 v{vOoff}, s{sT0}, v{vOoff}")
    e(f"s_movk_i32 s{sT1}, 1792")
    e(f"v_mul_lo_u32 v{vZo}, v{vT2}, s{sT1}")
    e(f"v_lshl_add_u32 v{vZo}, v{vT0}, 4, v{vZo}")
    e(f"s_and_b32 s{sT0}, s{sHead}, 7")
    e(f"s_mul_i32 s{sT0}, s{sT0}, 224")
    e(f"v_add_u32 v{vZo}, s{sT0}, v{vZo}")
    e(f"s_lshl_b32 s{sT0}, s{sHead}, 20")
    srd(e, SK, 40, 41, f"s{sT0}", 0x100000)
    srd(e, SV, 42, 43, f"s{sT0}", 0x100000)
    e(f"s_lshl_b32 s{sT0}, s{sHead}, 9")
    e(f"s_add_u32 s{SW}, s44, s{sT0}")
    e(f"s_addc_u32 s{SW+1}, s45, 0")
    e(f"s_sub_u32 s{SW+2}, {448*8192}, s{sT0}")
    e(f"s_mov_b32 s{SW+3}, 0x20000")
    srd(e, SO, 46, 47, WS_O, 2048 * 8192)
    srd(e, SI, 60, 61, 0, 448 * 3584)
    e(f"s_mov_b32 s{sT0}, {WS_Z1}")
    e(f"s_cmp_ge_u32 s{sHead}, 8")
    e(f"s_cselect_b32 s{sT0}, {WS_Z2}, s{sT0}")
    srd(e, SZ, 46, 47, f"s{sT0}", 2048 * 1792)
    e(f"s_lshl_b32 s{sWB}, s{sWave}, 12")
    e(f"v_lshrrev_b32 v42, 4, v{vLane}")
    e(f"v_and_b32 v43, 15, v{vLane}")
    e(f"s_lshl_b32 s{sT0}, s{sWave}, 4")
    e(f"s_movk_i32 s{sT1}, 3584")
    e(f"s_mul_i32 s{sG1}, s{sHead}, 224")
    for t in range(4):
        e(f"v_add_u32 v{vT2}, {4*t}, v42")
        e(f"v_add_u32 v{vT2}, s{sT0}, v{vT2}")
        e(f"v_and_b32 v{vT3}, 3, v{vT2}")
        e(f"v_lshlrev_b32 v{vT3}, 2, v{vT3}")
        e(f"v_xor_b32 v{vT3}, v{vT3}, v43")
        e(f"v_lshlrev_b32 v{vT3}, 4, v{vT3}")
        e(f"v_mul_lo_u32 v{vT2}, v{vT2}, s{sT1}")
        e(f"v_add3_u32 v{vId+t}, v{vT2}, v{vT3}, s{sG1}")

    def dma(srd_, voff, soff, ldsbase):
        out = []
        for t in range(4):
            out.append((f"s_add_u32 m0, s{sWB}, {ldsbase + t*1024}",
                        f"buffer_load_dwordx4 v{voff+t}, s[{srd_}:{srd_+3}], {soff} offen lds"))
        return out

    def emit_dma(lst):
        for m, l in lst:
            e(m)
            e("s_nop 0")
            e(l)

    cslot = lambda c: (c + 3) % 4

    def chunk_dma(c):
        if c <= 6:
            return [f"s_mov_b32 s{sWoff}, {c*64*3584}"], dma(SI, vId, f"s{sWoff}", VRING + cslot(c) * 16384)
        if c <= 20:
            return [f"s_mov_b32 s{sWoff}, {(c-7)*262144}"], dma(SW, vWd, f"s{sWoff}", VRING + cslot(c) * 16384)
        if c <= 23:
            return [f"s_mov_b32 s{sVoff}, {(c-21)*16384}"], dma(SV, vVd, f"s{sVoff}", VRING + cslot(c) * 16384)
        return [], []

    for c in range(4):
        su, dl = chunk_dma(c)
        for s_ in su: e(s_)
        emit_dma(dl)

    e(f"s_lshl_b32 s{sT0}, s{sWave}, 3")
    for t in range(4):
        e(f"v_add_u32 v{vT2}, {2*t}, v{vT0}")
        e(f"v_add_u32 v{vT2}, s{sT0}, v{vT2}")
        e(f"v_and_b32 v{vT3}, 15, v{vT2}")
        e(f"v_xor_b32 v{vT3}, v{vT3}, v{vT1}")
        e(f"v_lshlrev_b32 v{vT3}, 4, v{vT3}")
        e(f"v_lshl_add_u32 v{vKd+t}, v{vT2}, 9, v{vT3}")
        e(f"v_and_b32 v{vT3}, 3, v{vT2}")
        e(f"v_lshlrev_b32 v{vT3}, 2, v{vT3}")
        e(f"v_xor_b32 v{vT3}, v{vT3}, v{vT1}")
        e(f"v_lshlrev_b32 v{vT3}, 4, v{vT3}")
        e(f"v_lshl_add_u32 v{vVd+t}, v{vT2}, 9, v{vT3}")
        e(f"v_lshl_add_u32 v{vWd+t}, v{vT2}, 13, v{vT3}")
    for i in range(8):
        e(f"v_add_u32 v{vT2}, {2*i}, v{vT0}")
        e(f"v_and_b32 v{vT3}, 15, v{vT1}")
        e(f"v_xor_b32 v{vT2}, v{vT2}, v{vT3}")
        e(f"v_lshlrev_b32 v{vT2}, 4, v{vT2}")
        e(f"v_lshl_add_u32 v{vKa+i}, v{vT1}, 9, v{vT2}")
    vR, vG, vCq = 42, 43, 44
    e(f"v_bfe_u32 v{vR}, v{vLane}, 2, 2")
    e(f"v_bfe_u32 v{vG}, v{vLane}, 4, 1")
    e(f"v_and_b32 v{vCq}, 3, v{vLane}")
    for d in range(4):
        e(f"v_lshrrev_b32 v{vT2}, 1, v{vCq}")
        e(f"v_lshl_add_u32 v{vT2}, v{vG}, 1, v{vT2}")
        e(f"v_add_u32 v{vT2}, {4*d}, v{vT2}")
        e(f"v_lshlrev_b32 v{vT3}, 2, v{vR}")
        e(f"v_xor_b32 v{vT2}, v{vT2}, v{vT3}")
        e(f"v_lshlrev_b32 v{vT2}, 4, v{vT2}")
        e(f"v_and_b32 v{vT3}, 1, v{vCq}")
        e(f"v_lshl_add_u32 v{vT2}, v{vT3}, 3, v{vT2}")
        e(f"v_lshl_add_u32 v{vT3}, v{vT0}, 2, v{vR}")
        e(f"v_lshl_add_u32 v45, v{vT3}, 9, v{vT2}")
        e(f"v_add_u32 v{vVa+d}, {VRING}, v45")
        e(f"v_lshl_add_u32 v{vT3}, v{vT0}, 3, v{vR}")
        e(f"v_lshl_add_u32 v45, v{vT3}, 8, v{vT2}")
        e(f"v_add_u32 v{vIa+d}, {VRING}, v45")
        e(f"v_and_b32 v{vT2}, 1, v{vCq}")
        e(f"v_lshl_add_u32 v{vT2}, v{vG}, 1, v{vT2}")
        e(f"v_add_u32 v{vT2}, {4*d}, v{vT2}")
        e(f"v_lshlrev_b32 v{vT3}, 2, v{vR}")
        e(f"v_xor_b32 v{vT2}, v{vT2}, v{vT3}")
        e(f"v_lshlrev_b32 v{vT2}, 4, v{vT2}")
        e(f"v_lshrrev_b32 v{vT3}, 1, v{vCq}")
        e(f"v_lshl_add_u32 v{vT2}, v{vT3}, 3, v{vT2}")
        e(f"v_lshl_add_u32 v{vT3}, v{vT0}, 3, v{vR}")
        e(f"v_lshl_add_u32 v{vT2}, v{vT3}, 9, v{vT2}")
        e(f"v_add_u32 v{vWa+d}, {VRING}, v{vT2}")

    vSum, vSq, vS2, vQ2 = 160, 161, 162, 163
    vTP = 168
    e(f"s_mov_b32 s{sT0}, 0x3f803f80")
    e(f"v_mov_b32 v{vOne}, s{sT0}")
    for r in (vSum, vSq, vS2, vQ2):
        e(f"v_mov_b32 v{r}, 0")
    st()
    e("s_waitcnt vmcnt(16)")
    st()
    for i in range(0, 112, 2):
        e(f"v_dot2_f32_bf16 v{vSum}, v{vX+i}, v{vOne}, v{vSum}")
        e(f"v_dot2_f32_bf16 v{vSq}, v{vX+i}, v{vX+i}, v{vSq}")
        e(f"v_dot2_f32_bf16 v{vS2}, v{vX+i+1}, v{vOne}, v{vS2}")
        e(f"v_dot2_f32_bf16 v{vQ2}, v{vX+i+1}, v{vX+i+1}, v{vQ2}")
    e("s_nop 3")
    e(f"v_add_f32 v{vSum}, v{vSum}, v{vS2}")
    e(f"v_add_f32 v{vSq}, v{vSq}, v{vQ2}")
    e(f"v_mov_b32 v{vT2}, v{vSum}")
    e(f"v_mov_b32 v{vT3}, v{vSq}")
    e("s_nop 1")
    e(f"v_permlane32_swap_b32 v{vT2}, v{vSum}")
    e(f"v_permlane32_swap_b32 v{vT3}, v{vSq}")
    e("s_nop 1")
    e(f"v_add_f32 v{vSum}, v{vSum}, v{vT2}")
    e(f"v_add_f32 v{vSq}, v{vSq}, v{vT3}")
    ln_stats(e, vSum, vSq, vT2, vT3, 448)
    kd = []
    for j in range(4):
        kd.append((f"s_mov_b32 s{sKoff}, {j*16384}", None))
        kd += dma(SK, vKd, f"s{sKoff}", j * 16384)
    for g4 in range(28):
        xs = [vX + 4 * g4 + i for i in range(4)]
        ts = [vTP + 2 * i for i in range(4)]
        for x, t in zip(xs, ts): e(f"v_lshlrev_b32 v{t}, 16, v{x}")
        for x, t in zip(xs, ts): e(f"v_and_b32 v{t+1}, s{sMask}, v{x}")
        for x, t in zip(xs, ts): e(f"v_sub_f32 v{t}, v{t}, v{vSum}")
        for x, t in zip(xs, ts): e(f"v_sub_f32 v{t+1}, v{t+1}, v{vSum}")
        for x, t in zip(xs, ts): e(f"v_cvt_pk_bf16_f32 v{x}, v{t}, v{t+1}")
        for x, t in zip(xs, ts): e(f"v_lshlrev_b32 v{t}, 16, v{x}")
        for x, t in zip(xs, ts): e(f"v_and_b32 v{t+1}, s{sMask}, v{x}")
        for x, t in zip(xs, ts): e(f"v_mul_f32 v{t}, v{t}, v{vSq}")
        for x, t in zip(xs, ts): e(f"v_mul_f32 v{t+1}, v{t+1}, v{vSq}")
        for x, t in zip(xs, ts): e(f"v_cvt_pk_bf16_f32 v{x}, v{t}, v{t+1}")
        for i, x in enumerate(xs): e(f"v_accvgpr_write_b32 a{aX+4*g4+i}, v{x}")
        if kd and g4 >= 4:
            m0i, ld = kd.pop(0)
            e(m0i)
            if ld:
                e("s_nop 0")
                e(ld)
    while kd:
        m0i, ld = kd.pop(0)
        e(m0i)
        if ld:
            e("s_nop 0")
            e(ld)
    st()

    def c_reads(c, fbase):
        out = []
        if c <= 6:
            for ks in range(4):
                for bn in range(4):
                    f = ks * 4 + bn
                    for s_ in range(2):
                        off = cslot(c) * 16384 + (16 * ks + 4 * s_) * 256
                        d = fbase + 4 * f + 2 * s_
                        out.append((f"ds_read_b64_tr_b16 v[{d}:{d+1}], v{vIa + bn} offset:{off}", regs(d, 2)))
        elif c <= 20:
            for m in range(2):
                for db in range(8):
                    f = m * 8 + db
                    for s_ in range(2):
                        off = cslot(c) * 16384 + (16 * m + 4 * s_) * 512 + (db >> 2) * 256
                        d = fbase + 4 * f + 2 * s_
                        out.append((f"ds_read_b64_tr_b16 v[{d}:{d+1}], v{vWa + (db & 3)} offset:{off}", regs(d, 2)))
        return out

    def c_mfmas(c, fbase):
        out = []
        if c <= 6:
            for ks in range(4):
                for bn in range(4):
                    f = ks * 4 + bn
                    kk = 4 * c + ks
                    z = vZ[bn]
                    cc = f"v[{z}:{z+15}]" if kk else "0"
                    out.append(f"v_mfma_f32_32x32x16_bf16 v[{z}:{z+15}], v[{fbase+4*f}:{fbase+4*f+3}], a[{aX+4*kk}:{aX+4*kk+3}], {cc}")
        else:
            ci = c - 7
            for m in range(2):
                for db in range(8):
                    f = m * 8 + db
                    kk = 2 * ci + m
                    cc = f"a[{aO+16*db}:{aO+16*db+15}]" if kk else "0"
                    out.append(f"v_mfma_f32_32x32x16_bf16 a[{aO+16*db}:{aO+16*db+15}], v[{fbase+4*f}:{fbase+4*f+3}], a[{aX+4*kk}:{aX+4*kk+3}], {cc}")
        return out

    c1 = -2.0 * LOG2E * 0.7978845608028654
    c2 = c1 * 0.044715
    gel = [f"s_mov_b32 s{sG1}, {f32hex(c1)}", f"s_mov_b32 s{sG2}, {f32hex(c2)}", f"v_mov_b32 v{vC1}, s{sG1}"]
    tt = 96
    osets = [232, 236]
    k = 0
    nzstores = 0
    for bn in range(4):
        for gp in range(2):
            if bn == 3 and gp == 1:
                continue
            s8 = vZ[bn] + 8 * gp
            o = osets[k % 2]
            k += 1
            for i in range(4): gel.append(f"v_cvt_pk_bf16_f32 v{o+i}, v{s8+2*i}, v{s8+2*i+1}")
            for i in range(4):
                gel.append(f"v_lshlrev_b32 v{s8+2*i}, 16, v{o+i}")
                gel.append(f"v_and_b32 v{s8+2*i+1}, s{sMask}, v{o+i}")
            for i in range(8): gel.append(f"v_mul_f32 v{tt+i}, v{s8+i}, v{s8+i}")
            for i in range(8): gel.append(f"v_fma_f32 v{tt+i}, v{tt+i}, s{sG2}, v{vC1}")
            for i in range(8): gel.append(f"v_mul_f32 v{tt+i}, v{tt+i}, v{s8+i}")
            for i in range(8): gel.append(f"v_exp_f32 v{tt+i}, v{tt+i}")
            for i in range(8): gel.append(f"v_add_f32 v{tt+i}, 1.0, v{tt+i}")
            for i in range(8): gel.append(f"v_rcp_f32 v{tt+i}, v{tt+i}")
            for i in range(8): gel.append(f"v_mul_f32 v{s8+i}, v{s8+i}, v{tt+i}")
            for i in range(4): gel.append(f"v_cvt_pk_bf16_f32 v{o+i}, v{s8+2*i}, v{s8+2*i+1}")
            gel.append("s_nop 1")
            gel.append(f"v_permlane32_swap_b32 v{o}, v{o+2}")
            gel.append(f"v_permlane32_swap_b32 v{o+1}, v{o+3}")
            gel.append("s_nop 0")
            gel.append(("ST", f"buffer_store_dwordx4 v[{o}:{o+3}], v{vZo}, s[{SZ}:{SZ+3}], 0 offen offset:{(32*bn+16*gp)*2} sc0 sc1"))
            nzstores += 1

    fb = [vKf, vVf]
    vq = ["c0"] * 4 + ["c1"] * 4 + ["c2"] * 4 + ["c3"] * 4 + ["k"] * 16

    def wait_chunk(c):
        tag = f"c{c}"
        last = max(i for i, t in enumerate(vq) if t == tag)
        n = len(vq) - 1 - last
        return n

    e(f"s_waitcnt vmcnt({wait_chunk(0)})")
    e("s_barrier")
    for ins, d in c_reads(0, fb[0]):
        a.lds_op(ins, d)
    for c in range(21):
        n = wait_chunk(c + 1) if c + 1 <= 20 else 63
        e(f"s_waitcnt vmcnt({min(n,63)}) lgkmcnt(0)")
        a.lds_drained()
        e("s_barrier")
        su, dl = chunk_dma(c + 4)
        for s_ in su: e(s_)
        rd = c_reads(c + 1, fb[(c + 1) % 2]) if c + 1 <= 20 else []
        ms = c_mfmas(c, fb[c % 2])
        for gi, mi in enumerate(ms):
            e(mi)
            for _ in range(2):
                if rd:
                    ins, d = rd.pop(0)
                    a.lds_op(ins, d)
            if gi >= 2 and gi % 2 == 0 and dl:
                m0i, ld = dl.pop(0)
                e(m0i)
                e("s_nop 0")
                e(ld)
                vq.append(f"c{c+4}")
            if c >= 8:
                for _ in range(3):
                    if gel:
                        g_ = gel.pop(0)
                        if isinstance(g_, tuple):
                            e(g_[1])
                            vq.append("z")
                        else:
                            e(g_)
        assert not rd and not dl
    assert not gel, len(gel)
    st()
    e("s_nop 15")
    e("s_nop 7")
    tq = 48
    for db in range(8):
        for i in range(16): e(f"v_accvgpr_read_b32 v{tq+i}, a{aO+16*db+i}")
        for i in range(16): e(f"v_mul_f32 v{tq+i}, s{sC}, v{tq+i}")
        for i in range(8): e(f"v_cvt_pk_bf16_f32 v{tq+16+i}, v{tq+2*i}, v{tq+2*i+1}")
        for i in range(8): e(f"v_accvgpr_write_b32 a{aQ+8*db+i}, v{tq+16+i}")
        for i in range(16): e(f"v_accvgpr_write_b32 a{aO+16*db+i}, 0")

    def k_reads(slot):
        out = []
        for ks in range(16):
            d = vKf + 4 * ks
            off = slot * 16384 + (ks >> 3) * 256
            out.append((f"ds_read_b128 v[{d}:{d+3}], v{vKa + (ks & 7)} offset:{off}", regs(d, 4)))
        return out

    def v_reads(slot):
        out = []
        for m in range(2):
            for db in range(8):
                f = m * 8 + db
                for s_ in range(2):
                    off = slot * 16384 + (16 * m + 8 * s_) * 512 + (db >> 2) * 256
                    d = vVf + 4 * f + 2 * s_
                    out.append((f"ds_read_b64_tr_b16 v[{d}:{d+1}], v{vVa + (db & 3)} offset:{off}", regs(d, 2)))
        return out

    def qk_mfma(S, ks, c0):
        c = f"v[{S}:{S+15}]" if ks else c0
        return f"v_mfma_f32_32x32x16_bf16 v[{S}:{S+15}], v[{vKf+4*ks}:{vKf+4*ks+3}], a[{aQ+4*ks}:{aQ+4*ks+3}], {c}"

    def max_ops(S):
        ops = [f"v_max3_f32 v{vMax}, v{S}, v{S+1}, v{S+2}"]
        for i in range(3, 15, 2):
            ops.append(f"v_max3_f32 v{vMax}, v{vMax}, v{S+i}, v{S+i+1}")
        ops.append(f"v_max_f32 v{vMax}, v{vMax}, v{S+15}")
        return ops

    for ins, d in k_reads(0):
        a.lds_op(ins, d)
    for ks in range(16):
        a.lds_need(regs(vKf + 4 * ks, 4))
        e(qk_mfma(vS[0], ks, "0"))
    lastz = max(i for i, t in enumerate(vq) if t in ("z", "c21"))
    e(f"s_waitcnt vmcnt({len(vq) - 1 - lastz})")
    e("s_barrier")
    e(f"s_mov_b32 s{sKoff}, {4*16384}")
    emit_dma(dma(SK, vKd, f"s{sKoff}", 0))
    e(f"s_cmp_lt_u32 s{sHead}, 8")
    e("s_cbranch_scc1 L_attn_nosig")
    e(f"s_cmp_lg_u32 s{sWave}, 0")
    e("s_cbranch_scc1 L_attn_nosig")
    e("s_load_dwordx2 s[62:63], s[0:1], 88")
    e(f"v_mov_b32 v{vT2}, 1")
    e(f"s_lshl_b32 s{sT0}, s{sQb}, 2")
    e(f"v_mov_b32 v{vT3}, s{sT0}")
    e("s_waitcnt lgkmcnt(0)")
    e("s_mov_b64 s[64:65], exec")
    e("s_mov_b64 exec, 1")
    e(f"global_atomic_add v{vT3}, v{vT2}, s[62:63] sc1")
    e("s_mov_b64 exec, s[64:65]")
    a.label("L_attn_nosig")
    for ins, d in k_reads(1):
        a.lds_op(ins, d)
    e("s_nop 7")
    for o in max_ops(vS[0]):
        e(o)
    e(f"v_mov_b32 v{vT2}, v{vMax}")
    e("s_nop 1")
    e(f"v_permlane32_swap_b32 v{vT2}, v{vMax}")
    e("s_nop 1")
    e(f"v_max_f32 v{vM}, v{vT2}, v{vMax}")
    for i in range(16):
        e(f"v_sub_f32 v{vS[0]+i}, v{vS[0]+i}, v{vM}")
        e(f"v_sub_f32 v{vNM+i}, 0, v{vM}")
    e(f"v_mov_b32 v{vL}, 0")
    e(f"s_mov_b32 s{sKoff}, {5*16384}")
    e(f"s_mov_b32 s{sVoff}, {3*16384}")
    e(f"s_mov_b32 s{sTrip}, 0")
    st()

    a.label("L_attn_loop")
    for u in range(4):
        Sc, Sn = vS[u % 2], vS[(u + 1) % 2]
        e("s_waitcnt vmcnt(15) lgkmcnt(0)")
        a.lds_drained()
        e("s_barrier")
        vr_ = v_reads(u)
        for g in range(16):
            e(qk_mfma(Sn, g, f"v[{vNM}:{vNM+15}]"))
            for k in range(2):
                ins, d = vr_.pop(0)
                a.lds_op(ins, d)
            e(f"v_exp_f32 v{Sc+g}, v{Sc+g}")
            if g >= 2 and g % 2 == 0:
                k = (g - 2) // 2
                e(f"v_cvt_pk_bf16_f32 v{vP+k}, v{Sc+2*k}, v{Sc+2*k+1}")
        kr = k_reads((u + 2) % 4)
        dl = dma(SV, vVd, f"s{sVoff}", VRING + ((u + 3) % 4) * 16384) + dma(SK, vKd, f"s{sKoff}", ((u + 1) % 4) * 16384)
        mx = max_ops(Sn)
        pend_ld = None
        for g in range(16):
            m, db = g // 8, g % 8
            f = g
            a.lds_need(regs(vVf + 4 * f, 4))
            e(f"v_mfma_f32_32x32x16_bf16 a[{aO+16*db}:{aO+16*db+15}], v[{vVf+4*f}:{vVf+4*f+3}], v[{vP+4*m}:{vP+4*m+3}], a[{aO+16*db}:{aO+16*db+15}]")
            if pend_ld:
                e(pend_ld)
                pend_ld = None
            if g == 0:
                e(f"v_cvt_pk_bf16_f32 v{vP+7}, v{Sc+14}, v{Sc+15}")
            if g < 8:
                for k in range(2):
                    ins, d = kr.pop(0)
                    a.lds_op(ins, d)
            if use_dot:
                if g % 2 == 1:
                    e(f"v_dot2_f32_bf16 v{vL}, v{vP+g//2}, v{vOne}, v{vL}")
            else:
                e(f"v_add_f32 v{vL}, v{vL}, v{Sc+g}")
            if 5 <= g < 13:
                e(mx.pop(0))
            if g >= 7 and dl:
                m0i, ld = dl.pop(0)
                e(m0i)
                pend_ld = ld
            if g == 13:
                e(f"v_cmp_lt_f32 vcc, s{sThr}, v{vMax}")
        if pend_ld:
            e(pend_ld)
        assert not dl and not mx and not kr
        e(f"s_add_u32 s{sKoff}, s{sKoff}, 16384")
        e(f"s_add_u32 s{sVoff}, s{sVoff}, 16384")
        e(f"s_cbranch_vccnz L_attn_rare{u}")
        a.label(f"L_attn_back{u}")
    e(f"s_add_u32 s{sTrip}, s{sTrip}, 1")
    e(f"s_cmp_lt_u32 s{sTrip}, 16")
    e("s_cbranch_scc1 L_attn_loop")
    st()

    e("s_nop 15")
    e(f"v_mov_b32 v{vT2}, v{vL}")
    e("s_nop 1")
    e(f"v_permlane32_swap_b32 v{vT2}, v{vL}")
    e("s_nop 1")
    e(f"v_add_f32 v{vL}, v{vT2}, v{vL}")
    e(f"v_rcp_f32 v{vAl}, v{vL}")
    e("s_nop 0")
    tb = 104
    for db in range(8):
        t = tb + 24 * (db % 4)
        for i in range(16):
            e(f"v_accvgpr_read_b32 v{t+8+i}, a{aO+16*db+i}")
        for i in range(16):
            e(f"v_mul_f32 v{t+8+i}, v{t+8+i}, v{vAl}")
        for i in range(8):
            e(f"v_cvt_pk_bf16_f32 v{t+i}, v{t+8+2*i}, v{t+8+2*i+1}")
        e("s_nop 1")
        for gp in range(2):
            e(f"v_permlane32_swap_b32 v{t+4*gp}, v{t+4*gp+2}")
            e(f"v_permlane32_swap_b32 v{t+4*gp+1}, v{t+4*gp+3}")
        e("s_nop 0")
        for gp in range(2):
            e(f"buffer_store_dwordx4 v[{t+4*gp}:{t+4*gp+3}], v{vOoff}, s[{SO}:{SO+3}], 0 offen offset:{(32*db+16*gp)*2}")
    st()
    e("s_load_dwordx2 s[62:63], s[0:1], 88")
    e(f"s_lshl_b32 s{sT0}, s{sQb}, 2")
    e(f"v_mov_b32 v{vT3}, s{sT0}")
    e("s_waitcnt lgkmcnt(0)")
    a.label("L_attn_poll")
    e(f"global_load_dword v{vT2}, v{vT3}, s[62:63] sc0 sc1")
    e("s_waitcnt vmcnt(0)")
    e(f"v_readfirstlane_b32 s{sT1}, v{vT2}")
    e(f"s_cmp_ge_u32 s{sT1}, 8")
    e("s_cbranch_scc1 L_attn_ready")
    e("s_sleep 8")
    e("s_branch L_attn_poll")
    a.label("L_attn_ready")
    srd(e, 4, 46, 47, WS_Z2, 2048 * 1792)
    srd(e, 8, 46, 47, WS_Z2N, 2048 * 1792)
    e("v_lshrrev_b32 v2, 5, v0")
    e("v_and_b32 v3, 31, v0")
    e(f"s_lshl_b32 s{sT0}, s2, 3")
    e(f"v_add_u32 v2, s{sT0}, v2")
    e(f"s_movk_i32 s{sT0}, 1792")
    e(f"v_mul_lo_u32 v2, v2, s{sT0}")
    e("v_lshl_add_u32 v2, v3, 2, v2")
    zb = 48
    for t in range(14):
        e(f"buffer_load_dword v{zb+t}, v2, s[4:7], 0 offen offset:{128*t} sc0 sc1")
    e("v_mov_b32 v4, 0")
    e("v_mov_b32 v5, 0")
    e("s_waitcnt vmcnt(0)")
    for t in range(14):
        e(f"v_dot2_f32_bf16 v4, v{zb+t}, v{vOne}, v4")
        e(f"v_dot2_f32_bf16 v5, v{zb+t}, v{zb+t}, v5")
    e("s_nop 3")
    for x in (1, 2, 4, 8, 16):
        e(f"ds_swizzle_b32 v6, v4 offset:{(x << 10) | 0x1f}")
        e(f"ds_swizzle_b32 v7, v5 offset:{(x << 10) | 0x1f}")
        e("s_waitcnt lgkmcnt(0)")
        e("v_add_f32 v4, v4, v6")
        e("v_add_f32 v5, v5, v7")
    ln_stats(e, 4, 5, 6, 7, 896)
    for t in range(14):
        e(f"v_lshlrev_b32 v6, 16, v{zb+t}")
        e(f"v_and_b32 v7, s{sMask}, v{zb+t}")
        e("v_sub_f32 v6, v6, v4")
        e("v_sub_f32 v7, v7, v4")
        e("v_cvt_pk_bf16_f32 v6, v6, v7")
        e(f"v_and_b32 v7, s{sMask}, v6")
        e("v_lshlrev_b32 v6, 16, v6")
        e("v_mul_f32 v6, v6, v5")
        e("v_mul_f32 v7, v7, v5")
        e(f"v_cvt_pk_bf16_f32 v{zb+t}, v6, v7")
        e(f"buffer_store_dword v{zb+t}, v2, s[8:11], 0 offen offset:{128*t}")
    if prefetch:
        e("s_load_dwordx2 s[40:41], s[0:1], 56")
        e("s_load_dwordx2 s[42:43], s[0:1], 32")
        e("s_load_dwordx2 s[44:45], s[0:1], 72")
        e(f"v_lshlrev_b32 v{vT2}, 4, v0")
        e("s_waitcnt lgkmcnt(0)")
        srd(e, 4, 40, 41, 0, 2048 * 4096)
        srd(e, 8, 42, 43, 0, 4096 * 896)
        srd(e, 12, 44, 45, 0, 896 * 896)
        e(f"s_and_b32 s{sT0}, s2, 7")
        e(f"s_lshl_b32 s{sT0}, s{sT0}, 20")
        e(f"s_lshr_b32 s{sT1}, s2, 3")
        e(f"s_lshl_b32 s{sT1}, s{sT1}, 15")
        e(f"s_add_u32 s{sT0}, s{sT0}, s{sT1}")
        for i in range(8):
            e(f"buffer_load_dwordx4 v[{104+4*i}:{107+4*i}], v{vT2}, s[4:7], s{sT0} offen")
            e(f"s_add_u32 s{sT0}, s{sT0}, 4096")
        e(f"s_mul_i32 s{sT0}, s2, 14336")
        for i in range(4):
            e(f"buffer_load_dwordx4 v[{136+4*i}:{139+4*i}], v{vT2}, s[8:11], s{sT0} offen")
            e(f"s_add_u32 s{sT0}, s{sT0}, 3584")
        e(f"s_mul_i32 s{sT0}, s2, 3136")
        e(f"buffer_load_dwordx4 v[152:155], v{vT2}, s[12:15], s{sT0} offen")
    if stamp:
        e("s_waitcnt vmcnt(0)")
    st.dump()
    a.label("L_attn_end")
    e("s_endpgm")

    for u in range(4):
        Sn = vS[(u + 1) % 2]
        a.label(f"L_attn_rare{u}")
        if u == 3:
            e(f"s_cmp_eq_u32 s{sTrip}, 15")
            e(f"s_cbranch_scc1 L_attn_back{u}")
        e("s_nop 15")
        e(f"v_mov_b32 v{vT2}, v{vMax}")
        e("s_nop 1")
        e(f"v_permlane32_swap_b32 v{vT2}, v{vMax}")
        e("s_nop 1")
        e(f"v_max3_f32 v{vT2}, v{vT2}, v{vMax}, 0")
        e(f"v_sub_f32 v{vAl}, 0, v{vT2}")
        e(f"v_exp_f32 v{vAl}, v{vAl}")
        for i in range(16):
            e(f"v_sub_f32 v{Sn+i}, v{Sn+i}, v{vT2}")
            e(f"v_sub_f32 v{vNM+i}, v{vNM+i}, v{vT2}")
        e(f"v_mul_f32 v{vL}, v{vL}, v{vAl}")
        tr = [40, 41, 42, 43]
        for r in range(0, 128, 4):
            for i in range(4):
                e(f"v_accvgpr_read_b32 v{tr[i]}, a{aO+r+i}")
            for i in range(4):
                e(f"v_mul_f32 v{tr[i]}, v{tr[i]}, v{vAl}")
            for i in range(4):
                e(f"v_accvgpr_write_b32 a{aO+r+i}, v{tr[i]}")
        e("s_nop 1")
        e(f"s_branch L_attn_back{u}")
    return a.text(), kernel_desc(name, 256 + 240, 256, 100)
```

```python
from asmlib import *
from gen_attn import f32hex, WS_XN, WS_Z1, WS_Z2, WS_Z2T, WS_O, WS_HM

WS_S = 0x2800000
WS_Z2N = WS_Z2T


class G:
    pass


def srd(e, s, lo, hi, off, size):
    e(f"s_add_u32 s{s}, s{lo}, {off}")
    e(f"s_addc_u32 s{s+1}, s{hi}, 0")
    e(f"s_mov_b32 s{s+2}, {size}")
    e(f"s_mov_b32 s{s+3}, 0x20000")


def gemm_core(a, pfx, MT, NT, WM, WN, K, KC, NST, SX, SW, xstride, wstride, sRow0, sCol0, sWave,
              vbase, sbase, unroll_all=False):
    e = a.e
    RM, CN = MT // WM, NT // WN
    nbm, nbn = RM // 32, CN // 32
    RBX = KC * 2
    RBW = NT * 2
    XB, WB = MT * RBX, KC * RBW
    STG = XB + WB
    nks = KC // 16
    nX, nW = XB // 4096, WB // 4096
    nst_total = K // KC
    assert STG * NST <= 163840
    sT0, sT1, sXo, sWo, sWBx, sWBw, sTrip, sWm, sWn = [sbase + i for i in range(9)]
    vLane = vbase
    vT0, vT1, vT2, vT3, vR, vG, vCq, vH = [vbase + 1 + i for i in range(8)]
    p = vbase + 9
    vXd = p; p += nX
    vWd = p; p += nW
    nhalf = 2 if STG * NST > 65536 else 1
    vXa = p; p += nks * nhalf
    vWa = p; p += nbn * nhalf
    p = (p + 3) // 4 * 4
    FB = 4 * nbm * nks + 4 * nbn * nks
    vXf = p
    vWf = p + 4 * nbm * nks
    p += 2 * FB
    p = (p + 15) // 16 * 16
    vAcc = p; p += 16 * nbm * nbn
    g = G()
    g.vAcc, g.nbm, g.nbn, g.vend, g.vLane, g.vH = vAcc, nbm, nbn, p, vLane, vH
    g.sWm, g.sWn, g.RM, g.CN = sWm, sWn, RM, CN
    g.tmp = [vT0, vT1, vT2, vT3, vR, vG, vCq]
    g.vfree0 = vXf
    g.vfreeN = vAcc - vXf

    e(f"v_and_b32 v{vLane}, 63, v0")
    e(f"v_lshrrev_b32 v{vH}, 5, v{vLane}")
    if WN == 1:
        e(f"s_mov_b32 s{sWm}, s{sWave}")
        e(f"s_mov_b32 s{sWn}, 0")
    else:
        assert WN == 2
        e(f"s_lshr_b32 s{sWm}, s{sWave}, 1")
        e(f"s_and_b32 s{sWn}, s{sWave}, 1")
    cpr = RBX // 16
    rpi = 64 // cpr
    lc = {4: 2, 8: 3, 16: 4, 32: 5}[cpr]

    def fx(dst, row):
        if cpr == 8:
            e(f"v_bfe_u32 v{dst}, v{row}, 1, 3")
        elif cpr == 16 or cpr == 32:
            e(f"v_and_b32 v{dst}, 15, v{row}")
        else:
            e(f"v_bfe_u32 v{dst}, v{row}, 2, 2")

    e(f"s_mul_i32 s{sT0}, s{sWave}, {nX*rpi}")
    e(f"v_lshrrev_b32 v{vT0}, {lc}, v{vLane}")
    e(f"v_and_b32 v{vT1}, {cpr-1}, v{vLane}")
    e(f"s_mov_b32 s{sT1}, {xstride}")
    for t in range(nX):
        e(f"v_add_u32 v{vT2}, {t*rpi}, v{vT0}")
        e(f"v_add_u32 v{vT2}, s{sT0}, v{vT2}")
        fx(vT3, vT2)
        e(f"v_xor_b32 v{vT3}, v{vT3}, v{vT1}")
        e(f"v_lshlrev_b32 v{vT3}, 4, v{vT3}")
        e(f"v_add_u32 v{vT2}, s{sRow0}, v{vT2}")
        e(f"v_mul_lo_u32 v{vT2}, v{vT2}, s{sT1}")
        e(f"v_add_u32 v{vXd+t}, v{vT2}, v{vT3}")
    cprw = RBW // 16
    rpiw = 64 // cprw
    lcw = {8: 3, 16: 4, 32: 5}[cprw]

    def fw(dst, row):
        if cprw == 8:
            e(f"v_bfe_u32 v{dst}, v{row}, 1, 1")
            e(f"v_lshlrev_b32 v{dst}, 2, v{dst}")
        else:
            e(f"v_and_b32 v{dst}, 3, v{row}")
            e(f"v_lshlrev_b32 v{dst}, 2, v{dst}")

    e(f"s_mul_i32 s{sT0}, s{sWave}, {nW*rpiw}")
    e(f"v_lshrrev_b32 v{vT0}, {lcw}, v{vLane}")
    e(f"v_and_b32 v{vT1}, {cprw-1}, v{vLane}")
    e(f"s_mov_b32 s{sT1}, {wstride}")
    e(f"s_lshl_b32 s{sXo}, s{sCol0}, 1")
    for t in range(nW):
        e(f"v_add_u32 v{vT2}, {t*rpiw}, v{vT0}")
        e(f"v_add_u32 v{vT2}, s{sT0}, v{vT2}")
        fw(vT3, vT2)
        e(f"v_xor_b32 v{vT3}, v{vT3}, v{vT1}")
        e(f"v_lshlrev_b32 v{vT3}, 4, v{vT3}")
        e(f"v_mul_lo_u32 v{vT2}, v{vT2}, s{sT1}")
        e(f"v_add3_u32 v{vWd+t}, v{vT2}, v{vT3}, s{sXo}")
    e(f"s_mul_i32 s{sWBx}, s{sWave}, {nX*1024}")
    e(f"s_mul_i32 s{sWBw}, s{sWave}, {nW*1024}")
    e(f"s_add_u32 s{sWBw}, s{sWBw}, {XB}")
    e(f"v_and_b32 v{vT0}, 31, v{vLane}")
    e(f"s_mul_i32 s{sT0}, s{sWm}, {RM}")
    e(f"v_add_u32 v{vT0}, s{sT0}, v{vT0}")
    fx(vT1, vT0)
    for ks in range(nks):
        e(f"v_add_u32 v{vT2}, {2*ks}, v{vH}")
        e(f"v_xor_b32 v{vT2}, v{vT2}, v{vT1}")
        e(f"v_lshlrev_b32 v{vT2}, 4, v{vT2}")
        e(f"v_mul_u32_u24 v{vT3}, {RBX}, v{vT0}")
        e(f"v_add_u32 v{vXa+ks}, v{vT2}, v{vT3}")
        if nhalf == 2:
            e(f"v_add_u32 v{vXa+nks+ks}, 0x10000, v{vXa+ks}")
    e(f"v_bfe_u32 v{vR}, v{vLane}, 2, 2")
    e(f"v_bfe_u32 v{vG}, v{vLane}, 4, 1")
    e(f"v_and_b32 v{vCq}, 3, v{vLane}")
    fw(vT1, vR)
    e(f"s_mul_i32 s{sT0}, s{sWn}, {nbn}")
    for bn in range(nbn):
        e(f"v_lshrrev_b32 v{vT2}, 1, v{vCq}")
        e(f"v_lshl_add_u32 v{vT2}, v{vG}, 1, v{vT2}")
        e(f"s_add_u32 s{sT1}, s{sT0}, {bn}")
        e(f"s_lshl_b32 s{sT1}, s{sT1}, 2")
        e(f"v_add_u32 v{vT2}, s{sT1}, v{vT2}")
        e(f"v_xor_b32 v{vT2}, v{vT2}, v{vT1}")
        e(f"v_lshlrev_b32 v{vT2}, 4, v{vT2}")
        e(f"v_and_b32 v{vT3}, 1, v{vCq}")
        e(f"v_lshl_add_u32 v{vT2}, v{vT3}, 3, v{vT2}")
        e(f"v_lshl_add_u32 v{vT3}, v{vH}, 3, v{vR}")
        e(f"v_mul_u32_u24 v{vT3}, {RBW}, v{vT3}")
        e(f"v_add3_u32 v{vWa+bn}, v{vT2}, v{vT3}, {XB}" if XB <= 64 else f"v_add_u32 v{vT2}, v{vT2}, v{vT3}\nv_add_u32 v{vWa+bn}, {XB}, v{vT2}")
        if nhalf == 2:
            e(f"v_add_u32 v{vWa+nbn+bn}, 0x10000, v{vWa+bn}")

    def dma_stage(slot):
        out = []
        for t in range(nX):
            out.append((f"s_add_u32 m0, s{sWBx}, {slot*STG + t*1024}",
                        f"buffer_load_dwordx4 v{vXd+t}, s[{SX}:{SX+3}], s{sXo} offen lds"))
        for t in range(nW):
            out.append((f"s_add_u32 m0, s{sWBw}, {slot*STG + t*1024}",
                        f"buffer_load_dwordx4 v{vWd+t}, s[{SW}:{SW+3}], s{sWo} offen lds"))
        return out

    def adv():
        e(f"s_add_u32 s{sXo}, s{sXo}, {KC*2}")
        e(f"s_add_u32 s{sWo}, s{sWo}, {KC*wstride}")

    e(f"s_mov_b32 s{sXo}, 0")
    e(f"s_mov_b32 s{sWo}, 0")
    for st in range(NST):
        for m0i, ld in dma_stage(st):
            e(m0i)
            e("s_nop 0")
            e(ld)
        adv()
    for i in range(16 * nbm * nbn):
        e(f"v_mov_b32 v{vAcc+i}, 0")
    nper = nX + nW

    def frag_reads(slot, buf):
        base = slot * STG

        def xaddr(ks, bm):
            off = base + bm * 32 * RBX
            if off >= 65536:
                return vXa + nks + ks, off - 65536
            return vXa + ks, off

        def waddr(bn, ks, s):
            off = base + (16 * ks + 4 * s) * RBW
            if off >= 65536:
                return vWa + nbn + bn, off - 65536
            return vWa + bn, off
        reads = []
        for ks in range(nks):
            for bm in range(nbm):
                r, off = xaddr(ks, bm)
                d = vXf + buf * FB + 4 * (ks * nbm + bm)
                reads.append((f"ds_read_b128 v[{d}:{d+3}], v{r} offset:{off}", regs(d, 4)))
            for bn in range(nbn):
                for s in range(2):
                    r, off = waddr(bn, ks, s)
                    assert off < 65536
                    d = vWf + buf * FB + 4 * (ks * nbn + bn) + 2 * s
                    reads.append((f"ds_read_b64_tr_b16 v[{d}:{d+1}], v{r} offset:{off}", regs(d, 2)))
        return reads

    e(f"s_waitcnt vmcnt({(NST-1)*nper})")
    e("s_barrier")
    for ins, d in frag_reads(0, 0):
        a.lds_op(ins, d)

    def stage(slot, buf, last=False):
        e(f"s_waitcnt vmcnt({(NST-2)*nper}) lgkmcnt(0)")
        a.lds_drained()
        e("s_barrier")
        reads = [] if last else frag_reads((slot + 1) % NST, buf ^ 1)
        dl = dma_stage(slot)
        nm = nks * nbm * nbn
        per = (len(dl) + nm - 1) // nm
        perr = (len(reads) + nm - 1) // nm
        for ks in range(nks):
            for bm in range(nbm):
                for bn in range(nbn):
                    xf = vXf + buf * FB + 4 * (ks * nbm + bm)
                    wf = vWf + buf * FB + 4 * (ks * nbn + bn)
                    acc = vAcc + 16 * (bm * nbn + bn)
                    e(f"v_mfma_f32_32x32x16_bf16 v[{acc}:{acc+15}], v[{wf}:{wf+3}], v[{xf}:{xf+3}], v[{acc}:{acc+15}]")
                    for _ in range(perr):
                        if reads:
                            ins, d = reads.pop(0)
                            a.lds_op(ins, d)
                    for _ in range(per):
                        if dl:
                            m0i, ld = dl.pop(0)
                            e(m0i)
                            e("s_nop 0")
                            e(ld)
        adv()

    if unroll_all:
        for st in range(nst_total):
            stage(st % NST, st % 2, last=(st == nst_total - 1))
    else:
        assert nst_total % NST == 0 and NST % 2 == 0
        e(f"s_mov_b32 s{sTrip}, 0")
        a.label(f"L_{pfx}_loop")
        for u in range(NST):
            stage(u, u % 2)
        e(f"s_add_u32 s{sTrip}, s{sTrip}, 1")
        e(f"s_cmp_lt_u32 s{sTrip}, {nst_total // NST}")
        e(f"s_cbranch_scc1 L_{pfx}_loop")
    e("s_waitcnt vmcnt(0) lgkmcnt(0)")
    a.lds_drained()
    e("s_nop 15")
    return g


def out_offsets(a, g, sRow0, sCol0, stride, vdst, sT):
    e = a.e
    t0 = g.tmp[0]
    e(f"v_and_b32 v{t0}, 31, v{g.vLane}")
    e(f"s_mul_i32 s{sT}, s{g.sWm}, {g.RM}")
    e(f"s_add_u32 s{sT}, s{sT}, s{sRow0}")
    e(f"v_add_u32 v{t0}, s{sT}, v{t0}")
    e(f"s_mov_b32 s{sT}, {stride}")
    e(f"v_mul_lo_u32 v{vdst}, v{t0}, s{sT}")
    e(f"s_mul_i32 s{sT}, s{g.sWn}, {g.CN}")
    e(f"s_add_u32 s{sT}, s{sT}, s{sCol0}")
    e(f"s_lshl_b32 s{sT}, s{sT}, 1")
    e(f"v_add_u32 v{vdst}, s{sT}, v{vdst}")
    e(f"v_lshl_add_u32 v{vdst}, v{g.vH}, 4, v{vdst}")


def to_rowmajor16(a, src16, tmp):
    pass


def gen_k3(name="gs_kernel"):
    a = Asm()
    e = a.e
    e("s_cmp_ge_u32 s2, 224")
    e("s_cbranch_scc1 L_k3_end")
    e("s_load_dwordx2 s[40:41], s[0:1], 56")
    e("s_load_dwordx2 s[42:43], s[0:1], 64")
    e("s_load_dwordx2 s[44:45], s[0:1], 32")
    e("s_load_dwordx2 s[46:47], s[0:1], 96")
    e("v_lshrrev_b32 v1, 6, v0")
    e("s_and_b32 s50, s2, 7")
    e("s_lshr_b32 s51, s2, 3")
    e("v_readfirstlane_b32 s24, v1")
    e("s_waitcnt lgkmcnt(0)")
    e("s_cmp_ge_u32 s51, 14")
    e("s_cbranch_scc1 L_k3_s")
    e("s_cmp_ge_u32 s51, 7")
    e("s_cselect_b32 s52, 1, 0")
    e("s_mul_i32 s53, s52, 7")
    e("s_sub_u32 s53, s51, s53")
    e("s_lshl_b32 s54, s50, 1")
    e("s_add_u32 s54, s54, s52")
    e("s_lshl_b32 s25, s54, 7")
    e("s_lshl_b32 s26, s53, 7")
    srd(e, 4, 40, 41, 0, 2048 * 4096)
    srd(e, 8, 46, 47, WS_Z2N, 2048 * 1792)
    srd(e, 12, 46, 47, WS_Z1, 2048 * 1792)
    srd(e, 16, 46, 47, WS_HM, 2048 * 1792)
    srd(e, 20, 42, 43, 0, 4096)
    g = gemm_core(a, "k3g", 128, 128, 2, 2, 2048, 64, 4, 4, 8, 4096, 1792, 25, 26, 24, 2, 60)
    vOff = g.tmp[1]
    out_offsets(a, g, 25, 26, 1792, vOff, 55)
    f = g.vfree0
    vB = g.tmp[2]
    t0 = g.tmp[0]
    for bm in range(g.nbm):
        e(f"v_lshlrev_b32 v{g.tmp[3]}, 1, v{t0}")
        e(f"buffer_load_ushort v{vB+0 if bm == 0 else g.tmp[4]}, v{g.tmp[3]}, s[20:23], 0 offen offset:{bm*64}")
    idx = 0
    zl = {}
    for bm in range(g.nbm):
        for bn in range(g.nbn):
            for gp in range(2):
                d = f + 4 * idx
                zl[(bm, bn, gp)] = d
                e(f"s_mov_b32 s56, {bm*32*1792}")
                e(f"buffer_load_dwordx4 v[{d}:{d+3}], v{vOff}, s[12:15], s56 offen offset:{(32*bn+16*gp)*2}")
                idx += 1
    e("s_waitcnt vmcnt(0)")
    e(f"v_lshlrev_b32 v{vB}, 16, v{vB}")
    e(f"v_lshlrev_b32 v{g.tmp[4]}, 16, v{g.tmp[4]}")
    w = f + 4 * idx
    w = (w + 3) // 4 * 4
    for bm in range(g.nbm):
        bb = vB if bm == 0 else g.tmp[4]
        for bn in range(g.nbn):
            acc = g.vAcc + 16 * (bm * g.nbn + bn)
            for gp in range(2):
                s8 = acc + 8 * gp
                for i in range(4):
                    e(f"v_cvt_pk_bf16_f32 v{w+i}, v{s8+2*i}, v{s8+2*i+1}")
                e("s_nop 1")
                e(f"v_permlane32_swap_b32 v{w}, v{w+2}")
                e(f"v_permlane32_swap_b32 v{w+1}, v{w+3}")
                z = zl[(bm, bn, gp)]
                for i in range(4):
                    lo, hi = s8 + 2 * i, s8 + 2 * i + 1
                    e(f"v_lshlrev_b32 v{lo}, 16, v{w+i}")
                    e(f"v_and_b32 v{hi}, 0xffff0000, v{w+i}")
                    e(f"v_add_f32 v{lo}, v{lo}, v{bb}")
                    e(f"v_add_f32 v{hi}, v{hi}, v{bb}")
                    e(f"v_cvt_pk_bf16_f32 v{w+i}, v{lo}, v{hi}")
                    e(f"v_lshlrev_b32 v{lo}, 16, v{w+i}")
                    e(f"v_and_b32 v{hi}, 0xffff0000, v{w+i}")
                    e(f"v_lshlrev_b32 v{w+4}, 16, v{z+i}")
                    e(f"v_and_b32 v{w+5}, 0xffff0000, v{z+i}")
                    e(f"v_mul_f32 v{lo}, v{lo}, v{w+4}")
                    e(f"v_mul_f32 v{hi}, v{hi}, v{w+5}")
                    e(f"v_cvt_pk_bf16_f32 v{z+i}, v{lo}, v{hi}")
                e(f"s_mov_b32 s56, {bm*32*1792}")
                e(f"buffer_store_dwordx4 v[{z}:{z+3}], v{vOff}, s[16:19], s56 offen offset:{(32*bn+16*gp)*2}")
    e("s_waitcnt vmcnt(0)")
    e("s_endpgm")
    vmax = g.vend
    a.label("L_k3_s")
    e("s_sub_u32 s51, s51, 14")
    e("s_cmp_ge_u32 s51, 7")
    e("s_cselect_b32 s52, 1, 0")
    e("s_mul_i32 s53, s52, 7")
    e("s_sub_u32 s53, s51, s53")
    e("s_lshl_b32 s54, s50, 1")
    e("s_add_u32 s54, s54, s52")
    e("s_lshl_b32 s25, s54, 7")
    e("s_lshl_b32 s26, s53, 6")
    srd(e, 4, 46, 47, WS_O, 2048 * 8192)
    srd(e, 8, 44, 45, 0, 4096 * 896)
    srd(e, 16, 46, 47, WS_S, 2048 * 896)
    g = gemm_core(a, "k3s", 128, 64, 2, 2, 4096, 64, 4, 4, 8, 8192, 896, 25, 26, 24, 2, 60)
    vOff = g.tmp[1]
    out_offsets(a, g, 25, 26, 896, vOff, 55)
    f = g.vfree0
    k = 0
    for bm in range(g.nbm):
        for bn in range(g.nbn):
            acc = g.vAcc + 16 * (bm * g.nbn + bn)
            for gp in range(2):
                w = f + 4 * k
                k += 1
                s8 = acc + 8 * gp
                for i in range(4):
                    e(f"v_cvt_pk_bf16_f32 v{w+i}, v{s8+2*i}, v{s8+2*i+1}")
                e("s_nop 1")
                e(f"v_permlane32_swap_b32 v{w}, v{w+2}")
                e(f"v_permlane32_swap_b32 v{w+1}, v{w+3}")
                e(f"s_mov_b32 s56, {bm*32*896}")
                e(f"buffer_store_dwordx4 v[{w}:{w+3}], v{vOff}, s[16:19], s56 offen offset:{(32*bn+16*gp)*2}")
    e("s_waitcnt vmcnt(0)")
    a.label("L_k3_end")
    e("s_endpgm")
    vmax = max(vmax, g.vend)
    vmax = (vmax + 7) // 8 * 8
    return a.text(), kernel_desc(name, vmax, vmax, 96), 131072


def gen_k4(name="fin_kernel"):
    a = Asm()
    e = a.e
    e("s_cmp_ge_u32 s2, 224")
    e("s_cbranch_scc1 L_k4_end")
    e("s_load_dwordx2 s[40:41], s[0:1], 72")
    e("s_load_dwordx2 s[42:43], s[0:1], 0")
    e("s_load_dwordx2 s[44:45], s[0:1], 80")
    e("s_load_dwordx2 s[46:47], s[0:1], 96")
    e("v_lshrrev_b32 v1, 6, v0")
    e("s_and_b32 s50, s2, 7")
    e("s_lshr_b32 s51, s2, 3")
    e("v_readfirstlane_b32 s24, v1")
    e("s_mul_i32 s52, s51, 37")
    e("s_lshr_b32 s52, s52, 8")
    e("s_mul_i32 s53, s52, 7")
    e("s_sub_u32 s53, s51, s53")
    e("s_lshl_b32 s54, s50, 2")
    e("s_add_u32 s54, s54, s52")
    e("s_lshl_b32 s25, s54, 6")
    e("s_lshl_b32 s26, s53, 6")
    e("s_waitcnt lgkmcnt(0)")
    srd(e, 4, 46, 47, WS_HM, 2048 * 1792)
    srd(e, 8, 40, 41, 0, 896 * 896)
    srd(e, 12, 46, 47, WS_S, 2048 * 896)
    srd(e, 16, 44, 45, 0, 2048 * 896)
    srd(e, 20, 42, 43, 0, 2048 * 896)
    g = gemm_core(a, "k4", 64, 64, 2, 2, 896, 64, 4, 4, 8, 1792, 896, 25, 26, 24, 2, 60, unroll_all=True)
    vOff = g.tmp[1]
    out_offsets(a, g, 25, 26, 896, vOff, 55)
    f = g.vfree0
    acc = g.vAcc
    for gp in range(2):
        e(f"buffer_load_dwordx4 v[{f+4*gp}:{f+4*gp+3}], v{vOff}, s[12:15], 0 offen offset:{32*gp}")
        e(f"buffer_load_dwordx4 v[{f+8+4*gp}:{f+8+4*gp+3}], v{vOff}, s[20:23], 0 offen offset:{32*gp}")
    w = f + 16
    e(f"s_mov_b32 s57, {f32hex(-1.4426950408889634)}")
    e("s_waitcnt vmcnt(0)")
    for gp in range(2):
        s8 = acc + 8 * gp
        for i in range(4):
            e(f"v_cvt_pk_bf16_f32 v{w+i}, v{s8+2*i}, v{s8+2*i+1}")
        e("s_nop 1")
        e(f"v_permlane32_swap_b32 v{w}, v{w+2}")
        e(f"v_permlane32_swap_b32 v{w+1}, v{w+3}")
        sv, xv = f + 4 * gp, f + 8 + 4 * gp
        for i in range(4):
            for hh in range(2):
                y = s8 + 2 * i + hh
                t = w + 4 + hh
                if hh == 0:
                    e(f"v_lshlrev_b32 v{y}, 16, v{w+i}")
                else:
                    e(f"v_and_b32 v{y}, 0xffff0000, v{w+i}")
                e(f"v_mul_f32 v{t}, s57, v{y}")
                e(f"v_exp_f32 v{t}, v{t}")
                e("s_nop 0")
                e(f"v_add_f32 v{t}, 1.0, v{t}")
                e(f"v_rcp_f32 v{t}, v{t}")
                e("s_nop 0")
                e(f"v_mul_f32 v{y}, v{y}, v{t}")
            lo, hi = s8 + 2 * i, s8 + 2 * i + 1
            e(f"v_cvt_pk_bf16_f32 v{w+i}, v{lo}, v{hi}")
            e(f"v_lshlrev_b32 v{lo}, 16, v{w+i}")
            e(f"v_and_b32 v{hi}, 0xffff0000, v{w+i}")
            e(f"v_lshlrev_b32 v{w+4}, 16, v{sv+i}")
            e(f"v_and_b32 v{w+5}, 0xffff0000, v{sv+i}")
            e(f"v_mul_f32 v{lo}, v{lo}, v{w+4}")
            e(f"v_mul_f32 v{hi}, v{hi}, v{w+5}")
            e(f"v_cvt_pk_bf16_f32 v{w+i}, v{lo}, v{hi}")
            e(f"v_lshlrev_b32 v{lo}, 16, v{w+i}")
            e(f"v_and_b32 v{hi}, 0xffff0000, v{w+i}")
            e(f"v_lshlrev_b32 v{w+4}, 16, v{xv+i}")
            e(f"v_and_b32 v{w+5}, 0xffff0000, v{xv+i}")
            e(f"v_add_f32 v{lo}, v{lo}, v{w+4}")
            e(f"v_add_f32 v{hi}, v{hi}, v{w+5}")
            e(f"v_cvt_pk_bf16_f32 v{sv+i}, v{lo}, v{hi}")
        e(f"buffer_store_dwordx4 v[{sv}:{sv+3}], v{vOff}, s[16:19], 0 offen offset:{32*gp}")
    e("s_waitcnt vmcnt(0)")
    a.label("L_k4_end")
    e("s_endpgm")
    vmax = (g.vend + 7) // 8 * 8
    return a.text(), kernel_desc(name, vmax, vmax, 96), 65536


def gen_ln2(name="ln2_kernel"):
    a = Asm()
    e = a.e
    e("s_cmp_ge_u32 s2, 256")
    e("s_cbranch_scc1 L_ln2_end")
    e("s_load_dwordx2 s[46:47], s[0:1], 96")
    e("v_lshrrev_b32 v1, 5, v0")
    e("v_and_b32 v2, 31, v0")
    e("s_lshl_b32 s3, s2, 3")
    e("v_add_u32 v1, s3, v1")
    e("s_movk_i32 s3, 1792")
    e("v_mul_lo_u32 v1, v1, s3")
    e("v_lshl_add_u32 v1, v2, 2, v1")
    e("s_waitcnt lgkmcnt(0)")
    srd(e, 4, 46, 47, WS_Z2, 2048 * 1792)
    srd(e, 8, 46, 47, WS_Z2N, 2048 * 1792)
    for t in range(14):
        e(f"buffer_load_dword v{8+t}, v1, s[4:7], 0 offen offset:{128*t}")
    e("v_mov_b32 v4, 0")
    e("v_mov_b32 v5, 0")
    e("s_mov_b32 s12, 0x3f803f80")
    e("v_mov_b32 v6, s12")
    e("s_waitcnt vmcnt(0)")
    for t in range(14):
        e(f"v_dot2_f32_bf16 v4, v{8+t}, v6, v4")
        e(f"v_dot2_f32_bf16 v5, v{8+t}, v{8+t}, v5")
    e("s_nop 3")
    for x in (1, 2, 4, 8, 16):
        e(f"ds_swizzle_b32 v2, v4 offset:{(x << 10) | 0x1f}")
        e(f"ds_swizzle_b32 v3, v5 offset:{(x << 10) | 0x1f}")
        e("s_waitcnt lgkmcnt(0)")
        e("v_add_f32 v4, v4, v2")
        e("v_add_f32 v5, v5, v3")
    ln_stats(e, 4, 5, 2, 3, 896)
    for t in range(14):
        e(f"v_lshlrev_b32 v2, 16, v{8+t}")
        e(f"v_and_b32 v3, 0xffff0000, v{8+t}")
        e("v_sub_f32 v2, v2, v4")
        e("v_sub_f32 v3, v3, v4")
        e("v_cvt_pk_bf16_f32 v2, v2, v3")
        e("v_and_b32 v3, 0xffff0000, v2")
        e("v_lshlrev_b32 v2, 16, v2")
        e("v_mul_f32 v2, v2, v5")
        e("v_mul_f32 v3, v3, v5")
        e(f"v_cvt_pk_bf16_f32 v{8+t}, v2, v3")
        e(f"buffer_store_dword v{8+t}, v1, s[8:11], 0 offen offset:{128*t}")
    e("s_waitcnt vmcnt(0)")
    a.label("L_ln2_end")
    e("s_endpgm")
    return a.text(), kernel_desc(name, 32, 32, 64), 0


def ln_stats(e, vS, vQ, t0, t1, n):
    e(f"v_mul_f32 v{vS}, {f32hex(1.0/n)}, v{vS}")
    e(f"v_mul_f32 v{vQ}, {f32hex(1.0/n)}, v{vQ}")
    e(f"v_fma_f32 v{vQ}, -v{vS}, v{vS}, v{vQ}")
    e(f"v_max_f32 v{vQ}, 0, v{vQ}")
    e(f"v_cvt_pk_bf16_f32 v{t0}, v{vS}, v{vQ}")
    e(f"v_lshlrev_b32 v{vS}, 16, v{t0}")
    e(f"v_and_b32 v{vQ}, 0xffff0000, v{t0}")
    e(f"v_add_f32 v{vQ}, {f32hex(1e-5)}, v{vQ}")
    e(f"v_cvt_pk_bf16_f32 v{t0}, v{vQ}, v{vQ}")
    e(f"v_lshlrev_b32 v{vQ}, 16, v{t0}")
    e(f"v_sqrt_f32 v{vQ}, v{vQ}")
    e("s_nop 0")
    e(f"v_cvt_pk_bf16_f32 v{t0}, v{vQ}, v{vQ}")
    e(f"v_lshlrev_b32 v{vQ}, 16, v{t0}")
    e(f"v_rcp_f32 v{vQ}, v{vQ}")
    e("s_nop 0")


def gen_k1(name="pre_kernel", stamp=False):
    a = Asm()
    e = a.e
    st = Stamper(a, stamp, 0, 70)
    e("s_cmp_ge_u32 s2, 224")
    e("s_cbranch_scc1 L_k1_end")
    st()
    e("s_load_dwordx2 s[40:41], s[0:1], 0")
    e("s_load_dwordx2 s[42:43], s[0:1], 48")
    e("s_load_dwordx2 s[46:47], s[0:1], 96")
    e("v_lshrrev_b32 v1, 6, v0")
    e("s_and_b32 s50, s2, 7")
    e("s_lshr_b32 s51, s2, 3")
    e("v_readfirstlane_b32 s24, v1")
    e("s_cmp_ge_u32 s51, 14")
    e("s_cselect_b32 s52, 1, 0")
    e("s_mul_i32 s53, s52, 14")
    e("s_sub_u32 s53, s51, s53")
    e("s_lshl_b32 s54, s50, 1")
    e("s_add_u32 s54, s54, s52")
    e("s_lshl_b32 s25, s54, 7")
    e("s_lshl_b32 s26, s53, 7")
    e("s_waitcnt lgkmcnt(0)")
    srd(e, 4, 40, 41, 0, 2048 * 896)
    srd(e, 8, 42, 43, 0, 448 * 3584)
    srd(e, 12, 46, 47, WS_XN, 2048 * 896)
    e("s_cmp_ge_u32 s53, 7")
    e(f"s_mov_b32 s55, {WS_Z1}")
    e(f"s_cselect_b32 s55, {WS_Z2}, s55")
    e("s_cselect_b32 s56, 896, 0")
    e("s_sub_u32 s27, s26, s56")
    srd(e, 16, 46, 47, "s55", 2048 * 1792)
    vLane, vH, vT0, vT1, vT2, vT3, vR, vG, vCq = 1, 2, 3, 4, 5, 6, 7, 8, 9
    vXo, vSum, vSq, vOne, vZo = 10, 11, 12, 13, 14
    vWd = 16
    vWa = 20
    vX = 32
    vWf = 144
    vAcc = 208
    vAcc = 144
    vWf = 208
    e(f"v_and_b32 v{vLane}, 63, v0")
    e(f"v_lshrrev_b32 v{vH}, 5, v{vLane}")
    e(f"v_lshrrev_b32 v{vT0}, 4, v{vLane}")
    e(f"v_and_b32 v{vT1}, 15, v{vLane}")
    e("s_lshl_b32 s57, s24, 4")
    e("s_movk_i32 s58, 3584")
    e("s_lshl_b32 s59, s26, 1")
    for t in range(4):
        e(f"v_add_u32 v{vT2}, {4*t}, v{vT0}")
        e(f"v_add_u32 v{vT2}, s57, v{vT2}")
        e(f"v_and_b32 v{vT3}, 3, v{vT2}")
        e(f"v_lshlrev_b32 v{vT3}, 2, v{vT3}")
        e(f"v_xor_b32 v{vT3}, v{vT3}, v{vT1}")
        e(f"v_lshlrev_b32 v{vT3}, 4, v{vT3}")
        e(f"v_mul_lo_u32 v{vT2}, v{vT2}, s58")
        e(f"v_add3_u32 v{vWd+t}, v{vT2}, v{vT3}, s59")
    e(f"v_and_b32 v{vT0}, 31, v{vLane}")
    e("s_lshl_b32 s57, s24, 5")
    e("s_add_u32 s57, s57, s25")
    e(f"v_add_u32 v{vT0}, s57, v{vT0}")
    e("s_movk_i32 s58, 896")
    e(f"v_mul_lo_u32 v{vXo}, v{vT0}, s58")
    e(f"v_lshl_add_u32 v{vXo}, v{vH}, 4, v{vXo}")
    e("s_movk_i32 s58, 1792")
    e(f"v_mul_lo_u32 v{vZo}, v{vT0}, s58")
    e(f"v_lshl_add_u32 v{vZo}, v{vH}, 4, v{vZo}")
    e("s_lshl_b32 s58, s27, 1")
    e(f"v_add_u32 v{vZo}, s58, v{vZo}")
    for ks in range(28):
        e(f"buffer_load_dwordx4 v[{vX+4*ks}:{vX+4*ks+3}], v{vXo}, s[4:7], 0 offen offset:{ks*32}")
    e("s_lshl_b32 s57, s24, 12")
    for ci in range(7):
        e(f"s_mov_b32 s58, {ci*64*3584}")
        for t in range(4):
            e(f"s_add_u32 m0, s57, {ci*16384 + t*1024}")
            e("s_nop 0")
            e(f"buffer_load_dwordx4 v{vWd+t}, s[8:11], s58 offen lds")
    e(f"v_bfe_u32 v{vR}, v{vLane}, 2, 2")
    e(f"v_bfe_u32 v{vG}, v{vLane}, 4, 1")
    e(f"v_and_b32 v{vCq}, 3, v{vLane}")
    for bn in range(4):
        e(f"v_lshrrev_b32 v{vT2}, 1, v{vCq}")
        e(f"v_lshl_add_u32 v{vT2}, v{vG}, 1, v{vT2}")
        e(f"v_add_u32 v{vT2}, {4*bn}, v{vT2}")
        e(f"v_lshlrev_b32 v{vT3}, 2, v{vR}")
        e(f"v_xor_b32 v{vT2}, v{vT2}, v{vT3}")
        e(f"v_lshlrev_b32 v{vT2}, 4, v{vT2}")
        e(f"v_and_b32 v{vT3}, 1, v{vCq}")
        e(f"v_lshl_add_u32 v{vT2}, v{vT3}, 3, v{vT2}")
        e(f"v_lshl_add_u32 v{vT3}, v{vH}, 3, v{vR}")
        e(f"v_lshl_add_u32 v{vWa+bn}, v{vT3}, 8, v{vT2}")
        e(f"v_add_u32 v{vWa+4+bn}, 0x10000, v{vWa+bn}")
    vS2, vQ2 = 28, 29
    vNm, vRd = 30, 24
    vRd = 250
    vTP = 232
    e("s_mov_b32 s58, 0x3f803f80")
    e(f"v_mov_b32 v{vOne}, s58")
    for r in (vSum, vSq, vS2, vQ2):
        e(f"v_mov_b32 v{r}, 0")
    st()
    e("s_waitcnt vmcnt(28)")
    st()
    for i in range(0, 112, 2):
        e(f"v_dot2_f32_bf16 v{vSum}, v{vX+i}, v{vOne}, v{vSum}")
        e(f"v_dot2_f32_bf16 v{vSq}, v{vX+i}, v{vX+i}, v{vSq}")
        e(f"v_dot2_f32_bf16 v{vS2}, v{vX+i+1}, v{vOne}, v{vS2}")
        e(f"v_dot2_f32_bf16 v{vQ2}, v{vX+i+1}, v{vX+i+1}, v{vQ2}")
    e("s_nop 3")
    e(f"v_add_f32 v{vSum}, v{vSum}, v{vS2}")
    e(f"v_add_f32 v{vSq}, v{vSq}, v{vQ2}")
    e(f"v_mov_b32 v{vT0}, v{vSum}")
    e(f"v_mov_b32 v{vT1}, v{vSq}")
    e("s_nop 1")
    e(f"v_permlane32_swap_b32 v{vT0}, v{vSum}")
    e(f"v_permlane32_swap_b32 v{vT1}, v{vSq}")
    e("s_nop 1")
    e(f"v_add_f32 v{vSum}, v{vSum}, v{vT0}")
    e(f"v_add_f32 v{vSq}, v{vSq}, v{vT1}")
    ln_stats(e, vSum, vSq, vT0, vT1, 448)
    e(f"v_sub_f32 v{vNm}, 0, v{vSum}")
    e(f"v_sub_f32 v{vNm+1}, 0, v{vSum}")
    e(f"v_mov_b32 v{vRd}, v{vSq}")
    e(f"v_mov_b32 v{vRd+1}, v{vSq}")
    e("s_mov_b32 s59, 0xffff0000")
    st()
    e("s_waitcnt vmcnt(0)")
    e("s_barrier")
    st()

    def wreads(ks):
        out = []
        fb = vWf + 8 * 0 + 12 * 0 + (16 * (ks % 2) if False else 0)
        return out

    def norm_ops(ks):
        ops = []
        xs = [vX + 4 * ks + i for i in range(4)]
        ts = [vTP + 2 * i for i in range(4)]
        for x, t in zip(xs, ts): ops.append(f"v_lshlrev_b32 v{t}, 16, v{x}")
        for x, t in zip(xs, ts): ops.append(f"v_and_b32 v{t+1}, s59, v{x}")
        for x, t in zip(xs, ts): ops.append(f"v_pk_add_f32 v[{t}:{t+1}], v[{t}:{t+1}], v[{vNm}:{vNm+1}]")
        for x, t in zip(xs, ts): ops.append(f"v_cvt_pk_bf16_f32 v{x}, v{t}, v{t+1}")
        for x, t in zip(xs, ts): ops.append(f"v_lshlrev_b32 v{t}, 16, v{x}")
        for x, t in zip(xs, ts): ops.append(f"v_and_b32 v{t+1}, s59, v{x}")
        for x, t in zip(xs, ts): ops.append(f"v_pk_mul_f32 v[{t}:{t+1}], v[{t}:{t+1}], v[{vRd}:{vRd+1}]")
        for x, t in zip(xs, ts): ops.append(f"v_cvt_pk_bf16_f32 v{x}, v{t}, v{t+1}")
        return ops

    wbuf = [208, 176 + 0]
    wbuf = [208, 16 * 0 + 252 - 36]
    wbuf = [208, 0]
    def wreg(buf, bn):
        if buf == 0:
            return 208 + 4 * bn
        return [224, 228, 240, 244][bn]

    def w_reads(ks):
        out = []
        for bn in range(4):
            for s_ in range(2):
                off = (16 * ks + 4 * s_) * 256
                r = vWa + bn
                if off >= 65536:
                    off -= 65536
                    r += 4
                d = wreg(ks % 2, bn) + 2 * s_
                out.append((f"ds_read_b64_tr_b16 v[{d}:{d+1}], v{r} offset:{off}", regs(d, 2)))
        return out

    for ins, d in w_reads(0):
        a.lds_op(ins, d)
    for o in norm_ops(0):
        e(o)
    for ks in range(28):
        ops = norm_ops(ks + 1) if ks < 27 else []
        rd = w_reads(ks + 1) if ks < 27 else []
        e("s_nop 1")
        for bn in range(4):
            f0 = wreg(ks % 2, bn)
            a.lds_need(regs(f0, 4))
            c = f"v[{vAcc+16*bn}:{vAcc+16*bn+15}]" if ks else "0"
            e(f"v_mfma_f32_32x32x16_bf16 v[{vAcc+16*bn}:{vAcc+16*bn+15}], v[{f0}:{f0+3}], v[{vX+4*ks}:{vX+4*ks+3}], {c}")
            for _ in range(2):
                if rd:
                    ins, d = rd.pop(0)
                    a.lds_op(ins, d)
            for _ in range(8):
                if ops:
                    e(ops.pop(0))
    st()
    e("s_cmp_lg_u32 s53, 0")
    e("s_cbranch_scc1 L_k1_noxn")
    for ks in range(28):
        e(f"buffer_store_dwordx4 v[{vX+4*ks}:{vX+4*ks+3}], v{vXo}, s[12:15], 0 offen offset:{ks*32}")
    a.label("L_k1_noxn")
    e("s_nop 15")
    c1 = -2.0 * 1.4426950408889634 * 0.7978845608028654
    c2 = c1 * 0.044715
    e(f"s_mov_b32 s57, {f32hex(c1)}")
    e(f"s_mov_b32 s58, {f32hex(c2)}")
    e(f"v_mov_b32 v{vOne}, s57")
    tt = 208
    k = 0
    for bn in range(4):
        for gp in range(2):
            s8 = vAcc + 16 * bn + 8 * gp
            o = 216 + 4 * (k % 4)
            k += 1
            for i in range(4):
                e(f"v_cvt_pk_bf16_f32 v{o+i}, v{s8+2*i}, v{s8+2*i+1}")
            for i in range(4):
                e(f"v_lshlrev_b32 v{s8+2*i}, 16, v{o+i}")
                e(f"v_and_b32 v{s8+2*i+1}, s59, v{o+i}")
            for i in range(8): e(f"v_mul_f32 v{tt+i}, v{s8+i}, v{s8+i}")
            for i in range(8): e(f"v_fma_f32 v{tt+i}, v{tt+i}, s58, v{vOne}")
            for i in range(8): e(f"v_mul_f32 v{tt+i}, v{tt+i}, v{s8+i}")
            for i in range(8): e(f"v_exp_f32 v{tt+i}, v{tt+i}")
            for i in range(8): e(f"v_add_f32 v{tt+i}, 1.0, v{tt+i}")
            for i in range(8): e(f"v_rcp_f32 v{tt+i}, v{tt+i}")
            for i in range(8): e(f"v_mul_f32 v{s8+i}, v{s8+i}, v{tt+i}")
            for i in range(4):
                e(f"v_cvt_pk_bf16_f32 v{o+i}, v{s8+2*i}, v{s8+2*i+1}")
            e("s_nop 1")
            e(f"v_permlane32_swap_b32 v{o}, v{o+2}")
            e(f"v_permlane32_swap_b32 v{o+1}, v{o+3}")
            e("s_nop 0")
            e(f"buffer_store_dwordx4 v[{o}:{o+3}], v{vZo}, s[16:19], 0 offen offset:{(32*bn+16*gp)*2}")
    st()
    e("s_waitcnt vmcnt(0)")
    st.dump()
    a.label("L_k1_end")
    e("s_endpgm")
    return a.text(), kernel_desc(name, 256, 256, 100), 114688
```

```python
from build import *
from gen_attn import *
from gen_gemm import *
from gen_attn2 import *
import sys
out = sys.argv[1] if len(sys.argv) > 1 else "recurrent_scan__mha_block_cached__mixer_gmlp__prompt.s"
stamp = len(sys.argv) > 2
ba, da = gen_attn2(stamp=stamp)
b3, d3, l3 = gen_k3()
b4, d4, l4 = gen_k4()
assemble([("attn_kernel", 256, 256, 131072, ba, da),
          ("gs_kernel", 224, 256, l3, b3, d3),
          ("fin_kernel", 224, 256, l4, b4, d4)], out)
```

```python
import re


class Asm:
    def __init__(self):
        self.lines = []
        self.lds_q = []
        self.uid = 0

    def e(self, s):
        for ln in s.split("\n"):
            ln = ln.strip()
            if ln:
                self.lines.append("    " + ln if not ln.endswith(":") else ln)

    def label(self, name):
        self.lines.append(name + ":")

    def comment(self, s):
        self.lines.append("    ; " + s)

    def newlabel(self, base):
        self.uid += 1
        return f"{base}_{self.uid}"

    def text(self):
        return "\n".join(self.lines) + "\n"

    def lds_op(self, s, dest=()):
        self.e(s)
        self.lds_q.append(set(dest))

    def lds_need(self, regs):
        regs = set(regs)
        last = -1
        for i, d in enumerate(self.lds_q):
            if d & regs:
                last = i
        if last < 0:
            return
        n_after = len(self.lds_q) - 1 - last
        n = min(n_after, 15)
        self.e(f"s_waitcnt lgkmcnt({n})")
        self.lds_q = self.lds_q[len(self.lds_q) - n:] if n > 0 else []

    def lds_drained(self):
        self.lds_q = []


def vr(base, n=1, p="v"):
    if n == 1:
        return f"{p}{base}"
    return f"{p}[{base}:{base + n - 1}]"


def regs(base, n, p="v"):
    return [f"{p}{base + i}" for i in range(n)]


def kernel_header(name):
    return f""".globl {name}
.p2align 8
.type {name},@function
{name}:
"""


def kernel_desc(name, vgpr, accum, sgpr=96):
    return f""".amdhsa_kernel {name}
  .amdhsa_next_free_vgpr {vgpr}
  .amdhsa_next_free_sgpr {sgpr}
  .amdhsa_accum_offset {accum}
  .amdhsa_group_segment_fixed_size 0
  .amdhsa_kernarg_size 104
  .amdhsa_user_sgpr_count 2
  .amdhsa_user_sgpr_kernarg_segment_ptr 1
  .amdhsa_system_sgpr_workgroup_id_x 1
.end_amdhsa_kernel
"""


class Stamper:
    def __init__(self, a, on, kidx, sbase=64):
        self.a, self.on, self.kidx, self.sb, self.n = a, on, kidx, sbase, 0

    def __call__(self):
        if not self.on or self.sb + 2 * self.n >= 90:
            return
        r = self.sb + 2 * self.n
        self.a.e(f"s_memrealtime s[{r}:{r+1}]")
        self.n += 1

    def cyc(self):
        if not self.on or self.sb + 2 * self.n >= 90:
            return
        r = self.sb + 2 * self.n
        self.a.e(f"s_memtime s[{r}:{r+1}]")
        self.n += 1

    def dump(self, vtmp=2):
        if not self.on:
            return
        e = self.a.e
        self()
        e("s_load_dwordx2 s[92:93], s[0:1], 96")
        e("s_waitcnt lgkmcnt(0)")
        e(f"s_add_u32 s92, s92, {0x9000000 + self.kidx*0x40000}")
        e("s_addc_u32 s93, s93, 0")
        e("s_mov_b32 s94, 0x40000")
        e("s_mov_b32 s95, 0x20000")
        e(f"v_lshrrev_b32 v{vtmp}, 6, v0")
        e("s_lshl_b32 s91, s2, 2")
        e(f"v_add_u32 v{vtmp}, s91, v{vtmp}")
        e(f"v_lshlrev_b32 v{vtmp}, 7, v{vtmp}")
        for i in range(2 * self.n):
            e(f"v_mov_b32 v{vtmp+1}, s{self.sb+i}")
            e(f"buffer_store_dword v{vtmp+1}, v{vtmp}, s[92:95], 0 offen offset:{4*i}")
        e("s_waitcnt vmcnt(0)")
```

```python
from asmlib import *
from gen_attn import f32hex, WS_XN, WS_Z1, WS_Z2, WS_Z2T, WS_O, WS_HM
from gen_gemm import ln_stats, srd, WS_Z2N, WS_SP, gemm_core, out_offsets

LOG2E = 1.4426950408889634
SCALE = LOG2E / 16.0
THR = 8.0


def gen_attn3(name="attn_kernel", stamp=False, use_dot=False, prefetch=True):
    a = Asm()
    e = a.e
    st = Stamper(a, stamp, 1, 68)
    SK, SV, SW, SX, SO, SI, SZ = 4, 8, 12, 16, 20, 48, 52
    sWave, sHead, sQb, sWB, sKoff, sVoff, sTrip, sC, sT0, sT1 = 24, 25, 26, 27, 28, 29, 30, 31, 32, 33
    sWoff, sThr, sMask, sG1, sG2 = 36, 37, 38, 39, 56
    vLane = 1
    vT0, vT1, vT2, vT3 = 2, 3, 40, 41
    vKd, vVd, vWd = 4, 8, 12
    vKa, vVa, vWa = 16, 24, 28
    vOne, vZo, vL, vMax, vM, vAl = 32, 33, 34, 35, 36, 37
    vOoff = 38
    vC1 = 39
    vId = 232
    vIa = 236
    vS = [48, 64]
    vNM = 80
    vP = 96
    vKf = 104
    vVf = 168
    vX = 48
    vZ = [48, 64, 80, 240]
    aO, aQ, aX = 0, 128, 128
    VRING = 65536

    e("s_cmp_ge_u32 s2, 256")
    e("s_cbranch_scc1 L_attn_end")
    st()
    e("s_load_dwordx4 s[40:43], s[0:1], 8")
    e("s_load_dwordx2 s[44:45], s[0:1], 24")
    e("s_load_dwordx2 s[46:47], s[0:1], 96")
    e("s_load_dwordx2 s[58:59], s[0:1], 0")
    e("s_load_dwordx2 s[60:61], s[0:1], 48")
    e("s_load_dwordx2 s[62:63], s[0:1], 88")
    e(f"s_and_b32 s{sT0}, s2, 7")
    e(f"s_lshl_b32 s{sT0}, s{sT0}, 1")
    e(f"s_lshr_b32 s{sT1}, s2, 3")
    e(f"s_and_b32 s{sHead}, s{sT1}, 1")
    e(f"s_add_u32 s{sHead}, s{sHead}, s{sT0}")
    e(f"s_lshr_b32 s{sQb}, s2, 4")
    e(f"v_lshrrev_b32 v{vT0}, 6, v0")
    e(f"v_and_b32 v{vLane}, 63, v0")
    e(f"v_readfirstlane_b32 s{sWave}, v{vT0}")
    e(f"s_mov_b32 s{sC}, {f32hex(SCALE)}")
    e(f"s_mov_b32 s{sThr}, {f32hex(THR)}")
    e(f"s_mov_b32 s{sMask}, 0xffff0000")
    e(f"v_lshrrev_b32 v{vT0}, 5, v{vLane}")
    e(f"v_and_b32 v{vT1}, 31, v{vLane}")
    e(f"s_lshl_b32 s{sT0}, s{sQb}, 7")
    e(f"s_lshl_b32 s{sT1}, s{sWave}, 5")
    e(f"s_add_u32 s{sT0}, s{sT0}, s{sT1}")
    e(f"v_add_u32 v{vT2}, s{sT0}, v{vT1}")
    e(f"s_movk_i32 s{sT1}, 896")
    e(f"v_mul_lo_u32 v{vT3}, v{vT2}, s{sT1}")
    e(f"v_lshl_add_u32 v{vT3}, v{vT0}, 4, v{vT3}")
    e("s_waitcnt lgkmcnt(0)")
    srd(e, SX, 58, 59, 0, 2048 * 896)
    for ks in range(28):
        e(f"buffer_load_dwordx4 v[{vX+4*ks}:{vX+4*ks+3}], v{vT3}, s[{SX}:{SX+3}], 0 offen offset:{ks*32}")
    e(f"v_lshlrev_b32 v{vOoff}, 13, v{vT2}")
    e(f"v_lshl_add_u32 v{vOoff}, v{vT0}, 4, v{vOoff}")
    e(f"s_lshl_b32 s{sT0}, s{sHead}, 9")
    e(f"v_add_u32 v{vOoff}, s{sT0}, v{vOoff}")
    e(f"s_movk_i32 s{sT1}, 1792")
    e(f"v_mul_lo_u32 v{vZo}, v{vT2}, s{sT1}")
    e(f"v_lshl_add_u32 v{vZo}, v{vT0}, 4, v{vZo}")
    e(f"s_and_b32 s{sT0}, s{sHead}, 7")
    e(f"s_mul_i32 s{sT0}, s{sT0}, 224")
    e(f"v_add_u32 v{vZo}, s{sT0}, v{vZo}")
    e(f"s_lshl_b32 s{sT0}, s{sHead}, 20")
    srd(e, SK, 40, 41, f"s{sT0}", 0x100000)
    srd(e, SV, 42, 43, f"s{sT0}", 0x100000)
    e(f"s_lshl_b32 s{sT0}, s{sHead}, 9")
    e(f"s_add_u32 s{SW}, s44, s{sT0}")
    e(f"s_addc_u32 s{SW+1}, s45, 0")
    e(f"s_sub_u32 s{SW+2}, {448*8192}, s{sT0}")
    e(f"s_mov_b32 s{SW+3}, 0x20000")
    srd(e, SO, 46, 47, WS_O, 2048 * 8192)
    srd(e, SI, 60, 61, 0, 448 * 3584)
    e(f"s_mov_b32 s{sT0}, {WS_Z1}")
    e(f"s_cmp_ge_u32 s{sHead}, 8")
    e(f"s_cselect_b32 s{sT0}, {WS_Z2}, s{sT0}")
    srd(e, SZ, 46, 47, f"s{sT0}", 2048 * 1792)
    e(f"s_lshl_b32 s{sWB}, s{sWave}, 12")
    e(f"s_mul_i32 s{sT0}, s{sQb}, 28")
    e(f"s_mul_i32 s{sT1}, s{sWave}, 7")
    e(f"s_add_u32 s{sT0}, s{sT0}, s{sT1}")
    e(f"v_lshlrev_b32 v42, 13, v{vT0}")
    e(f"v_lshl_add_u32 v42, v{vT1}, 4, v42")
    e(f"s_lshl_b32 s{sT1}, s{sT0}, 13")
    for i in range(4):
        e(f"buffer_load_dwordx4 v[{192+4*i}:{195+4*i}], v42, s[{SW}:{SW+3}], s{sT1} offen")
        e(f"s_add_u32 s{sT1}, s{sT1}, 16384")
    e(f"v_lshrrev_b32 v42, 4, v{vLane}")
    e(f"s_movk_i32 s{sT1}, 3584")
    e(f"v_mul_lo_u32 v42, v42, s{sT1}")
    e(f"v_and_b32 v43, 15, v{vLane}")
    e(f"v_lshl_add_u32 v42, v43, 4, v42")
    e(f"s_mul_i32 s{sT1}, s{sT0}, 3584")
    e(f"s_mul_i32 s{sG1}, s{sHead}, 224")
    e(f"s_add_u32 s{sT1}, s{sT1}, s{sG1}")
    for i in range(2):
        e(f"buffer_load_dwordx4 v[{208+4*i}:{211+4*i}], v42, s[{SI}:{SI+3}], s{sT1} offen")
        e(f"s_add_u32 s{sT1}, s{sT1}, {4*3584}")
    e(f"v_lshrrev_b32 v42, 4, v{vLane}")
    e(f"v_and_b32 v43, 15, v{vLane}")
    e(f"s_lshl_b32 s{sT0}, s{sWave}, 4")
    e(f"s_movk_i32 s{sT1}, 3584")
    e(f"s_mul_i32 s{sG1}, s{sHead}, 224")
    for t in range(4):
        e(f"v_add_u32 v{vT2}, {4*t}, v42")
        e(f"v_add_u32 v{vT2}, s{sT0}, v{vT2}")
        e(f"v_and_b32 v{vT3}, 3, v{vT2}")
        e(f"v_lshlrev_b32 v{vT3}, 2, v{vT3}")
        e(f"v_xor_b32 v{vT3}, v{vT3}, v43")
        e(f"v_lshlrev_b32 v{vT3}, 4, v{vT3}")
        e(f"v_mul_lo_u32 v{vT2}, v{vT2}, s{sT1}")
        e(f"v_add3_u32 v{vId+t}, v{vT2}, v{vT3}, s{sG1}")

    def dma(srd_, voff, soff, ldsbase):
        out = []
        for t in range(4):
            out.append((f"s_add_u32 m0, s{sWB}, {ldsbase + t*1024}",
                        f"buffer_load_dwordx4 v{voff+t}, s[{srd_}:{srd_+3}], {soff} offen lds"))
        return out

    def emit_dma(lst):
        for m, l in lst:
            e(m)
            e("s_nop 0")
            e(l)

    cslot = lambda c: (c + 3) % 4

    def chunk_dma(c):
        if c <= 6:
            return [f"s_mov_b32 s{sWoff}, {c*64*3584}"], dma(SI, vId, f"s{sWoff}", VRING + cslot(c) * 16384)
        if c <= 20:
            return [f"s_mov_b32 s{sWoff}, {(c-7)*262144}"], dma(SW, vWd, f"s{sWoff}", VRING + cslot(c) * 16384)
        if c <= 23:
            return [f"s_mov_b32 s{sVoff}, {(c-21)*16384}"], dma(SV, vVd, f"s{sVoff}", VRING + cslot(c) * 16384)
        return [], []

    vq = []
    for c in range(2):
        su, dl = chunk_dma(c)
        for s_ in su: e(s_)
        emit_dma(dl)
        vq += [f"c{c}"] * 4

    e(f"s_lshl_b32 s{sT0}, s{sWave}, 3")
    for t in range(4):
        e(f"v_add_u32 v{vT2}, {2*t}, v{vT0}")
        e(f"v_add_u32 v{vT2}, s{sT0}, v{vT2}")
        e(f"v_and_b32 v{vT3}, 15, v{vT2}")
        e(f"v_xor_b32 v{vT3}, v{vT3}, v{vT1}")
        e(f"v_lshlrev_b32 v{vT3}, 4, v{vT3}")
        e(f"v_lshl_add_u32 v{vKd+t}, v{vT2}, 9, v{vT3}")
        e(f"v_and_b32 v{vT3}, 3, v{vT2}")
        e(f"v_lshlrev_b32 v{vT3}, 2, v{vT3}")
        e(f"v_xor_b32 v{vT3}, v{vT3}, v{vT1}")
        e(f"v_lshlrev_b32 v{vT3}, 4, v{vT3}")
        e(f"v_lshl_add_u32 v{vVd+t}, v{vT2}, 9, v{vT3}")
        e(f"v_lshl_add_u32 v{vWd+t}, v{vT2}, 13, v{vT3}")
    for i in range(8):
        e(f"v_add_u32 v{vT2}, {2*i}, v{vT0}")
        e(f"v_and_b32 v{vT3}, 15, v{vT1}")
        e(f"v_xor_b32 v{vT2}, v{vT2}, v{vT3}")
        e(f"v_lshlrev_b32 v{vT2}, 4, v{vT2}")
        e(f"v_lshl_add_u32 v{vKa+i}, v{vT1}, 9, v{vT2}")
    vR, vG, vCq = 42, 43, 44
    e(f"v_bfe_u32 v{vR}, v{vLane}, 2, 2")
    e(f"v_bfe_u32 v{vG}, v{vLane}, 4, 1")
    e(f"v_and_b32 v{vCq}, 3, v{vLane}")
    for d in range(4):
        e(f"v_lshrrev_b32 v{vT2}, 1, v{vCq}")
        e(f"v_lshl_add_u32 v{vT2}, v{vG}, 1, v{vT2}")
        e(f"v_add_u32 v{vT2}, {4*d}, v{vT2}")
        e(f"v_lshlrev_b32 v{vT3}, 2, v{vR}")
        e(f"v_xor_b32 v{vT2}, v{vT2}, v{vT3}")
        e(f"v_lshlrev_b32 v{vT2}, 4, v{vT2}")
        e(f"v_and_b32 v{vT3}, 1, v{vCq}")
        e(f"v_lshl_add_u32 v{vT2}, v{vT3}, 3, v{vT2}")
        e(f"v_lshl_add_u32 v{vT3}, v{vT0}, 3, v{vR}")
        e(f"v_lshl_add_u32 v45, v{vT3}, 8, v{vT2}")
        e(f"v_add_u32 v{vIa+d}, {VRING}, v45")
        e(f"v_and_b32 v{vT2}, 1, v{vCq}")
        e(f"v_lshl_add_u32 v{vT2}, v{vG}, 1, v{vT2}")
        e(f"v_add_u32 v{vT2}, {4*d}, v{vT2}")
        e(f"v_lshlrev_b32 v{vT3}, 2, v{vR}")
        e(f"v_xor_b32 v{vT2}, v{vT2}, v{vT3}")
        e(f"v_lshlrev_b32 v{vT2}, 4, v{vT2}")
        e(f"v_lshrrev_b32 v{vT3}, 1, v{vCq}")
        e(f"v_lshl_add_u32 v{vT2}, v{vT3}, 3, v{vT2}")
        e(f"v_lshl_add_u32 v{vT3}, v{vT0}, 3, v{vR}")
        e(f"v_lshl_add_u32 v45, v{vT3}, 9, v{vT2}")
        e(f"v_add_u32 v{vWa+d}, {VRING}, v45")
        e(f"v_lshl_add_u32 v{vT3}, v{vT0}, 2, v{vR}")
        e(f"v_lshl_add_u32 v45, v{vT3}, 9, v{vT2}")
        e(f"v_add_u32 v{vVa+d}, {VRING}, v45")

    vSum, vSq, vS2, vQ2 = 160, 161, 162, 163
    vTP = 168
    e(f"s_mov_b32 s{sT0}, 0x3f803f80")
    e(f"v_mov_b32 v{vOne}, s{sT0}")
    for r in (vSum, vSq, vS2, vQ2):
        e(f"v_mov_b32 v{r}, 0")
    st()
    e("s_waitcnt vmcnt(14)")
    st()
    pend = []
    for c in (2, 3):
        su, dl = chunk_dma(c)
        pend += [(x_, None, None) for x_ in su] + [(m_, l_, f"c{c}") for m_, l_ in dl]
    for i in range(0, 112, 2):
        e(f"v_dot2_f32_bf16 v{vSum}, v{vX+i}, v{vOne}, v{vSum}")
        e(f"v_dot2_f32_bf16 v{vSq}, v{vX+i}, v{vX+i}, v{vSq}")
        e(f"v_dot2_f32_bf16 v{vS2}, v{vX+i+1}, v{vOne}, v{vS2}")
        e(f"v_dot2_f32_bf16 v{vQ2}, v{vX+i+1}, v{vX+i+1}, v{vQ2}")
        if pend and (i // 2) % 5 == 4:
            m_, l_, tg = pend.pop(0)
            e(m_)
            if l_:
                e("s_nop 0")
                e(l_)
                vq.append(tg)
    assert not pend
    e("s_nop 3")
    e(f"v_add_f32 v{vSum}, v{vSum}, v{vS2}")
    e(f"v_add_f32 v{vSq}, v{vSq}, v{vQ2}")
    e(f"v_mov_b32 v{vT2}, v{vSum}")
    e(f"v_mov_b32 v{vT3}, v{vSq}")
    e("s_nop 1")
    e(f"v_permlane32_swap_b32 v{vT2}, v{vSum}")
    e(f"v_permlane32_swap_b32 v{vT3}, v{vSq}")
    e("s_nop 1")
    e(f"v_add_f32 v{vSum}, v{vSum}, v{vT2}")
    e(f"v_add_f32 v{vSq}, v{vSq}, v{vT3}")
    ln_stats(e, vSum, vSq, vT2, vT3, 448)
    kd = []
    for j in range(4):
        kd.append((f"s_mov_b32 s{sKoff}, {j*16384}", None))
        kd += dma(SK, vKd, f"s{sKoff}", j * 16384)
    for g4 in range(28):
        xs = [vX + 4 * g4 + i for i in range(4)]
        ts = [vTP + 2 * i for i in range(4)]
        for x, t in zip(xs, ts): e(f"v_lshlrev_b32 v{t}, 16, v{x}")
        for x, t in zip(xs, ts): e(f"v_and_b32 v{t+1}, s{sMask}, v{x}")
        for x, t in zip(xs, ts): e(f"v_sub_f32 v{t}, v{t}, v{vSum}")
        for x, t in zip(xs, ts): e(f"v_sub_f32 v{t+1}, v{t+1}, v{vSum}")
        for x, t in zip(xs, ts): e(f"v_cvt_pk_bf16_f32 v{x}, v{t}, v{t+1}")
        for x, t in zip(xs, ts): e(f"v_lshlrev_b32 v{t}, 16, v{x}")
        for x, t in zip(xs, ts): e(f"v_and_b32 v{t+1}, s{sMask}, v{x}")
        for x, t in zip(xs, ts): e(f"v_mul_f32 v{t}, v{t}, v{vSq}")
        for x, t in zip(xs, ts): e(f"v_mul_f32 v{t+1}, v{t+1}, v{vSq}")
        for x, t in zip(xs, ts): e(f"v_cvt_pk_bf16_f32 v{x}, v{t}, v{t+1}")
        for i, x in enumerate(xs): e(f"v_accvgpr_write_b32 a{aX+4*g4+i}, v{x}")
    st()

    def c_reads(c, fbase):
        out = []
        if c <= 6:
            for ks in range(4):
                for bn in range(4):
                    f = ks * 4 + bn
                    for s_ in range(2):
                        off = cslot(c) * 16384 + (16 * ks + 4 * s_) * 256
                        d = fbase + 4 * f + 2 * s_
                        out.append((f"ds_read_b64_tr_b16 v[{d}:{d+1}], v{vIa + bn} offset:{off}", regs(d, 2)))
        elif c <= 20:
            for m in range(2):
                for db in range(8):
                    f = m * 8 + db
                    for s_ in range(2):
                        off = cslot(c) * 16384 + (16 * m + 4 * s_) * 512 + (db >> 2) * 256
                        d = fbase + 4 * f + 2 * s_
                        out.append((f"ds_read_b64_tr_b16 v[{d}:{d+1}], v{vWa + (db & 3)} offset:{off}", regs(d, 2)))
        return out

    def c_mfmas(c, fbase):
        out = []
        if c <= 6:
            for ks in range(4):
                for bn in range(4):
                    f = ks * 4 + bn
                    kk = 4 * c + ks
                    z = vZ[bn]
                    cc = f"v[{z}:{z+15}]" if kk else "0"
                    out.append(f"v_mfma_f32_32x32x16_bf16 v[{z}:{z+15}], v[{fbase+4*f}:{fbase+4*f+3}], a[{aX+4*kk}:{aX+4*kk+3}], {cc}")
        else:
            ci = c - 7
            for m in range(2):
                for db in range(8):
                    f = m * 8 + db
                    kk = 2 * ci + m
                    cc = f"a[{aO+16*db}:{aO+16*db+15}]" if kk else "0"
                    out.append(f"v_mfma_f32_32x32x16_bf16 a[{aO+16*db}:{aO+16*db+15}], v[{fbase+4*f}:{fbase+4*f+3}], a[{aX+4*kk}:{aX+4*kk+3}], {cc}")
        return out

    c1 = -2.0 * LOG2E * 0.7978845608028654
    c2 = c1 * 0.044715
    gel = [f"s_mov_b32 s{sG1}, {f32hex(c1)}", f"s_mov_b32 s{sG2}, {f32hex(c2)}", f"v_mov_b32 v{vC1}, s{sG1}"]
    tt = 96
    osets = [232, 236]
    k = 0
    nzstores = 0
    for bn in range(4):
        for gp in range(2):
            if bn == 3 and gp == 1:
                continue
            s8 = vZ[bn] + 8 * gp
            o = osets[k % 2]
            k += 1
            for i in range(4): gel.append(f"v_cvt_pk_bf16_f32 v{o+i}, v{s8+2*i}, v{s8+2*i+1}")
            for i in range(4):
                gel.append(f"v_lshlrev_b32 v{s8+2*i}, 16, v{o+i}")
                gel.append(f"v_and_b32 v{s8+2*i+1}, s{sMask}, v{o+i}")
            for i in range(8): gel.append(f"v_mul_f32 v{tt+i}, v{s8+i}, v{s8+i}")
            for i in range(8): gel.append(f"v_fma_f32 v{tt+i}, v{tt+i}, s{sG2}, v{vC1}")
            for i in range(8): gel.append(f"v_mul_f32 v{tt+i}, v{tt+i}, v{s8+i}")
            for i in range(8): gel.append(f"v_exp_f32 v{tt+i}, v{tt+i}")
            for i in range(8): gel.append(f"v_add_f32 v{tt+i}, 1.0, v{tt+i}")
            for i in range(8): gel.append(f"v_rcp_f32 v{tt+i}, v{tt+i}")
            for i in range(8): gel.append(f"v_mul_f32 v{s8+i}, v{s8+i}, v{tt+i}")
            for i in range(4): gel.append(f"v_cvt_pk_bf16_f32 v{o+i}, v{s8+2*i}, v{s8+2*i+1}")
            gel.append("s_nop 1")
            gel.append(f"v_permlane32_swap_b32 v{o}, v{o+2}")
            gel.append(f"v_permlane32_swap_b32 v{o+1}, v{o+3}")
            gel.append("s_nop 0")
            gel.append(("ST", f"buffer_store_dwordx4 v[{o}:{o+3}], v{vZo}, s[{SZ}:{SZ+3}], 0 offen offset:{(32*bn+16*gp)*2} sc0 sc1"))
            nzstores += 1

    fb = [vKf, vVf]

    def wait_chunk(c):
        tag = f"c{c}"
        last = max(i for i, t in enumerate(vq) if t == tag)
        n = len(vq) - 1 - last
        return n

    e(f"s_waitcnt vmcnt({wait_chunk(0)})")
    e("s_barrier")
    for ins, d in c_reads(0, fb[0]):
        a.lds_op(ins, d)
    for c in range(21):
        n = wait_chunk(c + 1) if c + 1 <= 20 else 63
        e(f"s_waitcnt vmcnt({min(n,63)}) lgkmcnt(0)")
        a.lds_drained()
        e("s_barrier")
        su, dl = chunk_dma(c + 4)
        for s_ in su: e(s_)
        rd = c_reads(c + 1, fb[(c + 1) % 2]) if c + 1 <= 20 else []
        ms = c_mfmas(c, fb[c % 2])
        for gi, mi in enumerate(ms):
            e(mi)
            for _ in range(3):
                if rd:
                    ins, d = rd.pop(0)
                    a.lds_op(ins, d)
            if gi >= 2 and gi % 2 == 0 and dl:
                m0i, ld = dl.pop(0)
                e(m0i)
                e("s_nop 0")
                e(ld)
                vq.append(f"c{c+4}")
            if c >= 8 and gi in (11, 13, 15) and kd:
                m0i, ld = kd.pop(0)
                e(m0i)
                if ld is None:
                    m0i, ld = kd.pop(0)
                    e(m0i)
                e("s_nop 0")
                e(ld)
                vq.append("k")
            if c >= 8:
                for _ in range(2 if gi < 11 else 5):
                    if gel:
                        g_ = gel.pop(0)
                        if isinstance(g_, tuple):
                            e(g_[1])
                            vq.append("z")
                        else:
                            e(g_)
        assert not rd and not dl
    assert not gel, len(gel)
    assert not kd
    st()
    e("s_nop 15")
    e("s_nop 7")
    tq = 48
    for db in range(8):
        for i in range(16): e(f"v_accvgpr_read_b32 v{tq+i}, a{aO+16*db+i}")
        for i in range(16): e(f"v_mul_f32 v{tq+i}, s{sC}, v{tq+i}")
        for i in range(8): e(f"v_cvt_pk_bf16_f32 v{tq+16+i}, v{tq+2*i}, v{tq+2*i+1}")
        for i in range(8): e(f"v_accvgpr_write_b32 a{aQ+8*db+i}, v{tq+16+i}")
        for i in range(16): e(f"v_accvgpr_write_b32 a{aO+16*db+i}, 0")

    def k_reads(slot):
        out = []
        for ks in range(16):
            d = vKf + 4 * ks
            off = slot * 16384 + (ks >> 3) * 256
            out.append((f"ds_read_b128 v[{d}:{d+3}], v{vKa + (ks & 7)} offset:{off}", regs(d, 4)))
        return out

    def v_reads(slot):
        out = []
        for m in range(2):
            for db in range(8):
                f = m * 8 + db
                for s_ in range(2):
                    off = slot * 16384 + (16 * m + 8 * s_) * 512 + (db >> 2) * 256
                    d = vVf + 4 * f + 2 * s_
                    out.append((f"ds_read_b64_tr_b16 v[{d}:{d+1}], v{vVa + (db & 3)} offset:{off}", regs(d, 2)))
        return out

    def qk_mfma(S, ks, c0):
        c = f"v[{S}:{S+15}]" if ks else c0
        return f"v_mfma_f32_32x32x16_bf16 v[{S}:{S+15}], v[{vKf+4*ks}:{vKf+4*ks+3}], a[{aQ+4*ks}:{aQ+4*ks+3}], {c}"

    def max_ops(S):
        ops = [f"v_max3_f32 v{vMax}, v{S}, v{S+1}, v{S+2}"]
        for i in range(3, 15, 2):
            ops.append(f"v_max3_f32 v{vMax}, v{vMax}, v{S+i}, v{S+i+1}")
        ops.append(f"v_max_f32 v{vMax}, v{vMax}, v{S+15}")
        return ops

    lastk = max(i for i, t in enumerate(vq) if t == "k")
    e(f"s_waitcnt vmcnt({len(vq) - 1 - lastk})")
    e("s_barrier")
    for ins, d in k_reads(0):
        a.lds_op(ins, d)
    for ks in range(16):
        a.lds_need(regs(vKf + 4 * ks, 4))
        e(qk_mfma(vS[0], ks, "0"))
    lastz = max(i for i, t in enumerate(vq) if t in ("z", "c21"))
    e(f"s_waitcnt vmcnt({len(vq) - 1 - lastz})")
    e("s_barrier")
    e(f"s_mov_b32 s{sKoff}, {4*16384}")
    emit_dma(dma(SK, vKd, f"s{sKoff}", 0))
    e(f"s_cmp_lt_u32 s{sHead}, 8")
    e("s_cbranch_scc1 L_attn_nosig")
    e(f"s_cmp_lg_u32 s{sWave}, 0")
    e("s_cbranch_scc1 L_attn_nosig")
    e(f"v_mov_b32 v{vT2}, 1")
    e(f"s_lshl_b32 s{sT0}, s{sQb}, 2")
    e(f"v_mov_b32 v{vT3}, s{sT0}")
    e("s_mov_b64 s[64:65], exec")
    e("s_mov_b64 exec, 1")
    e(f"global_atomic_add v{vT3}, v{vT2}, s[62:63] sc1")
    e("s_mov_b64 exec, s[64:65]")
    a.label("L_attn_nosig")
    for ins, d in k_reads(1):
        a.lds_op(ins, d)
    e("s_nop 7")
    for o in max_ops(vS[0]):
        e(o)
    e(f"v_mov_b32 v{vT2}, v{vMax}")
    e("s_nop 1")
    e(f"v_permlane32_swap_b32 v{vT2}, v{vMax}")
    e("s_nop 1")
    e(f"v_max_f32 v{vM}, v{vT2}, v{vMax}")
    for i in range(16):
        e(f"v_sub_f32 v{vS[0]+i}, v{vS[0]+i}, v{vM}")
        e(f"v_sub_f32 v{vNM+i}, 0, v{vM}")
    e(f"v_mov_b32 v{vL}, 0")
    e(f"s_mov_b32 s{sKoff}, {5*16384}")
    e(f"s_mov_b32 s{sVoff}, {3*16384}")
    e(f"s_mov_b32 s{sTrip}, 0")
    st()
    st.cyc()

    a.label("L_attn_loop")
    for u in range(4):
        Sc, Sn = vS[u % 2], vS[(u + 1) % 2]
        e("s_waitcnt vmcnt(15) lgkmcnt(0)")
        a.lds_drained()
        e("s_barrier")
        vr_ = v_reads(u)
        for g in range(16):
            e(qk_mfma(Sn, g, f"v[{vNM}:{vNM+15}]"))
            for k in range(2):
                ins, d = vr_.pop(0)
                a.lds_op(ins, d)
            e(f"v_exp_f32 v{Sc+g}, v{Sc+g}")
            if g >= 2 and g % 2 == 0:
                k = (g - 2) // 2
                e(f"v_cvt_pk_bf16_f32 v{vP+k}, v{Sc+2*k}, v{Sc+2*k+1}")
        kr = k_reads((u + 2) % 4)
        dl = dma(SV, vVd, f"s{sVoff}", VRING + ((u + 3) % 4) * 16384) + dma(SK, vKd, f"s{sKoff}", ((u + 1) % 4) * 16384)
        mx = max_ops(Sn)
        pend_ld = None
        for g in range(16):
            m, db = g // 8, g % 8
            f = g
            a.lds_need(regs(vVf + 4 * f, 4))
            e(f"v_mfma_f32_32x32x16_bf16 a[{aO+16*db}:{aO+16*db+15}], v[{vVf+4*f}:{vVf+4*f+3}], v[{vP+4*m}:{vP+4*m+3}], a[{aO+16*db}:{aO+16*db+15}]")
            if pend_ld:
                e(pend_ld)
                pend_ld = None
            if g == 0:
                e(f"v_cvt_pk_bf16_f32 v{vP+7}, v{Sc+14}, v{Sc+15}")
            if g < 8:
                for k in range(2):
                    ins, d = kr.pop(0)
                    a.lds_op(ins, d)
            if use_dot:
                if g % 2 == 1:
                    e(f"v_dot2_f32_bf16 v{vL}, v{vP+g//2}, v{vOne}, v{vL}")
            else:
                e(f"v_add_f32 v{vL}, v{vL}, v{Sc+g}")
            if 5 <= g < 13:
                e(mx.pop(0))
            if g >= 7 and dl:
                m0i, ld = dl.pop(0)
                e(m0i)
                pend_ld = ld
            if g == 13:
                e(f"v_cmp_lt_f32 vcc, s{sThr}, v{vMax}")
        if pend_ld:
            e(pend_ld)
        assert not dl and not mx and not kr
        e(f"s_add_u32 s{sKoff}, s{sKoff}, 16384")
        e(f"s_add_u32 s{sVoff}, s{sVoff}, 16384")
        e(f"s_cbranch_vccnz L_attn_rare{u}")
        a.label(f"L_attn_back{u}")
    e(f"s_add_u32 s{sTrip}, s{sTrip}, 1")
    e(f"s_cmp_le_u32 s{sTrip}, 4")
    e("s_cbranch_scc1 L_attn_hook")
    e(f"s_cmp_lt_u32 s{sTrip}, 15")
    e("s_cbranch_scc1 L_attn_loop")
    e(f"s_cmp_eq_u32 s{sTrip}, 15")
    e("s_cbranch_scc1 L_attn_hookB")
    st.cyc()
    st()
    TAIL(a, e, st, locals())
    st.dump()
    a.label("L_attn_end")
    e("s_endpgm")

    hP, hA, hZ, hO = 232, 233, 234, 248
    a.label("L_attn_hookB")
    e(f"v_mov_b32 v{hA}, 64")
    e(f"global_load_dword v{hP}, v{hA}, s[62:63] sc0 sc1")
    e("s_load_dwordx2 s[40:41], s[0:1], 32")
    e("s_load_dwordx2 s[42:43], s[0:1], 56")
    e("s_load_dwordx2 s[44:45], s[0:1], 64")
    vOd = 236
    e(f"s_lshl_b32 s{sT0}, s{sWave}, 2")
    for t in range(4):
        e(f"v_xor_b32 v{vOd+t}, {t << 2}, v{vLane}")
        e(f"v_lshlrev_b32 v{vOd+t}, 4, v{vOd+t}")
        e(f"s_add_u32 s{sT1}, s{sT0}, {t}")
        e(f"s_mul_i32 s{sT1}, s{sT1}, 896")
        e(f"v_add_u32 v{vOd+t}, s{sT1}, v{vOd+t}")
    e("s_waitcnt lgkmcnt(0)")
    e(f"s_mul_i32 s{sT0}, s{sHead}, {256*896}")
    e(f"s_add_u32 s{SX}, s40, s{sT0}")
    e(f"s_addc_u32 s{SX+1}, s41, 0")
    e(f"s_sub_u32 s{SX+2}, {4096*896}, s{sT0}")
    e(f"s_mov_b32 s{SX+3}, 0x20000")
    for c in range(2):
        e(f"s_mov_b32 s{sT0}, {c*14336}")
        for t in range(4):
            e(f"s_add_u32 m0, s{sWB}, {98304 + ((c + 2) % 4)*16384 + t*1024}")
            e("s_nop 0")
            e(f"buffer_load_dwordx4 v{vOd+t}, s[{SX}:{SX+3}], s{sT0} offen lds")
    srd(e, SI, 42, 43, 0, 2048 * 4096)
    e(f"s_bfe_u32 s{sT0}, s2, 0x20001")
    e(f"s_lshl_b32 s{sT0}, s{sT0}, 21")
    e(f"s_lshr_b32 s{sT1}, s2, 3")
    e(f"s_lshl_b32 s{sT1}, s{sT1}, 16")
    e(f"s_add_u32 s{sT0}, s{sT0}, s{sT1}")
    e(f"v_lshlrev_b32 v240, 4, v0")
    for i in range(16):
        e(f"buffer_load_dwordx4 v[244:247], v240, s[{SI}:{SI+3}], s{sT0} offen")
        e(f"s_add_u32 s{sT0}, s{sT0}, 4096")
    e("s_branch L_attn_loop")
    a.label("L_attn_hook")
    e(f"s_cmp_eq_u32 s{sTrip}, 2")
    e("s_cbranch_scc1 L_attn_hook2")
    e(f"s_cmp_eq_u32 s{sTrip}, 3")
    e("s_cbranch_scc1 L_attn_hook3")
    e(f"s_cmp_eq_u32 s{sTrip}, 4")
    e("s_cbranch_scc1 L_attn_hook4")
    e(f"s_lshl_b32 s{sT0}, s{sQb}, 2")
    e(f"v_mov_b32 v{hA}, s{sT0}")
    e(f"global_load_dword v{hP}, v{hA}, s[62:63] sc0 sc1")
    e("s_branch L_attn_loop")
    a.label("L_attn_hook2")
    e(f"v_readfirstlane_b32 s{sT1}, v{hP}")
    e(f"s_cmp_ge_u32 s{sT1}, 8")
    e("s_cbranch_scc1 L_attn_h2ok")
    a.label("L_attn_h2poll")
    e("s_sleep 8")
    e(f"global_load_dword v{hP}, v{hA}, s[62:63] sc0 sc1")
    e("s_waitcnt vmcnt(0)")
    e(f"v_readfirstlane_b32 s{sT1}, v{hP}")
    e(f"s_cmp_lt_u32 s{sT1}, 8")
    e("s_cbranch_scc1 L_attn_h2poll")
    a.label("L_attn_h2ok")
    srd(e, SX, 46, 47, WS_Z2, 2048 * 1792)
    e(f"v_lshrrev_b32 v{hO}, 5, v0")
    e(f"v_and_b32 v{hA}, 31, v0")
    e(f"s_lshl_b32 s{sT0}, s2, 3")
    e(f"v_add_u32 v{hO}, s{sT0}, v{hO}")
    e(f"s_movk_i32 s{sT0}, 1792")
    e(f"v_mul_lo_u32 v{hO}, v{hO}, s{sT0}")
    e(f"v_lshl_add_u32 v{hO}, v{hA}, 2, v{hO}")
    for t in range(14):
        e(f"buffer_load_dword v{hZ+t}, v{hO}, s[{SX}:{SX+3}], 0 offen offset:{128*t} sc0 sc1")
    e("s_branch L_attn_loop")
    a.label("L_attn_hook3")
    h0, h1, h2, h3, h4, h5 = 249, 250, 251, 252, 253, 254
    srd(e, SX, 46, 47, WS_Z2N, 16 * 2048 * 128)
    e(f"v_mov_b32 v{h0}, 0")
    e(f"v_mov_b32 v{h1}, 0")
    for t in range(14):
        e(f"v_dot2_f32_bf16 v{h0}, v{hZ+t}, v{vOne}, v{h0}")
        e(f"v_dot2_f32_bf16 v{h1}, v{hZ+t}, v{hZ+t}, v{h1}")
    e("s_nop 3")
    for x in (1, 2, 4, 8, 16):
        e(f"ds_swizzle_b32 v{h2}, v{h0} offset:{(x << 10) | 0x1f}")
        e(f"ds_swizzle_b32 v{h3}, v{h1} offset:{(x << 10) | 0x1f}")
        e("s_waitcnt lgkmcnt(0)")
        e(f"v_add_f32 v{h0}, v{h0}, v{h2}")
        e(f"v_add_f32 v{h1}, v{h1}, v{h3}")
    ln_stats(e, h0, h1, h2, h3, 896)
    e(f"v_lshrrev_b32 v{hO}, 5, v0")
    e(f"s_lshl_b32 s{sT0}, s2, 3")
    e(f"v_add_u32 v{hO}, s{sT0}, v{hO}")
    e(f"v_lshlrev_b32 v{hO}, 7, v{hO}")
    e(f"v_and_b32 v{hA}, 31, v0")
    e(f"s_movk_i32 s{sT0}, 2341")
    for t0_ in range(0, 14, 2):
        ps = [(hZ + t0_, h2, h3), (hZ + t0_ + 1, h4, h5)]
        for z, p, q in ps: e(f"v_lshlrev_b32 v{p}, 16, v{z}")
        for z, p, q in ps: e(f"v_and_b32 v{q}, s{sMask}, v{z}")
        for z, p, q in ps: e(f"v_sub_f32 v{p}, v{p}, v{h0}")
        for z, p, q in ps: e(f"v_sub_f32 v{q}, v{q}, v{h0}")
        for z, p, q in ps: e(f"v_cvt_pk_bf16_f32 v{p}, v{p}, v{q}")
        for z, p, q in ps: e(f"v_and_b32 v{q}, s{sMask}, v{p}")
        for z, p, q in ps: e(f"v_lshlrev_b32 v{p}, 16, v{p}")
        for z, p, q in ps: e(f"v_mul_f32 v{p}, v{p}, v{h1}")
        for z, p, q in ps: e(f"v_mul_f32 v{q}, v{q}, v{h1}")
        for z, p, q in ps: e(f"v_cvt_pk_bf16_f32 v{z}, v{p}, v{q}")
        for k_, (z, p, q) in enumerate(ps):
            e(f"v_add_u32 v{p}, {32*(t0_+k_)}, v{hA}")
            e(f"v_mul_u32_u24 v{q}, s{sT0}, v{p}")
            e(f"v_lshrrev_b32 v{q}, 16, v{q}")
            e(f"v_mul_u32_u24 v255, 28, v{q}")
            e(f"v_sub_u32 v{p}, v{p}, v255")
            e(f"v_lshlrev_b32 v{q}, 18, v{q}")
            e(f"v_lshl_add_u32 v{p}, v{p}, 2, v{q}")
            e(f"v_add_u32 v{p}, v{p}, v{hO}")
            e(f"buffer_store_dword v{z}, v{p}, s[{SX}:{SX+3}], 0 offen sc0 sc1")
    e("s_branch L_attn_loop")
    a.label("L_attn_hook4")
    e(f"s_cmp_lg_u32 s{sWave}, 0")
    e("s_cbranch_scc1 L_attn_loop")
    e(f"v_mov_b32 v{hP}, 1")
    e(f"v_mov_b32 v{hA}, 64")
    e("s_mov_b64 s[64:65], exec")
    e("s_mov_b64 exec, 1")
    e(f"global_atomic_add v{hA}, v{hP}, s[62:63] sc1")
    e("s_mov_b64 exec, s[64:65]")
    e("s_branch L_attn_loop")

    for u in range(4):
        Sn = vS[(u + 1) % 2]
        a.label(f"L_attn_rare{u}")
        if u == 3:
            e(f"s_cmp_eq_u32 s{sTrip}, 15")
            e(f"s_cbranch_scc1 L_attn_back{u}")
        e("s_nop 15")
        e(f"v_mov_b32 v{vT2}, v{vMax}")
        e("s_nop 1")
        e(f"v_permlane32_swap_b32 v{vT2}, v{vMax}")
        e("s_nop 1")
        e(f"v_max3_f32 v{vT2}, v{vT2}, v{vMax}, 0")
        e(f"v_sub_f32 v{vAl}, 0, v{vT2}")
        e(f"v_exp_f32 v{vAl}, v{vAl}")
        for i in range(16):
            e(f"v_sub_f32 v{Sn+i}, v{Sn+i}, v{vT2}")
            e(f"v_sub_f32 v{vNM+i}, v{vNM+i}, v{vT2}")
        e(f"v_mul_f32 v{vL}, v{vL}, v{vAl}")
        tr = [40, 41, 42, 43]
        for r in range(0, 128, 4):
            for i in range(4):
                e(f"v_accvgpr_read_b32 v{tr[i]}, a{aO+r+i}")
            for i in range(4):
                e(f"v_mul_f32 v{tr[i]}, v{tr[i]}, v{vAl}")
            for i in range(4):
                e(f"v_accvgpr_write_b32 a{aO+r+i}, v{tr[i]}")
        e("s_nop 1")
        e(f"s_branch L_attn_back{u}")
    return a.text(), kernel_desc(name, 256 + 240, 256, 100)


def TAIL(a, e, st, L):
    sWave, sHead, sQb, sWB, sT0, sT1, sMask = [L[k] for k in ("sWave", "sHead", "sQb", "sWB", "sT0", "sT1", "sMask")]
    vL, vAl, vT2, vT3, vLane, aO, prefetch = [L[k] for k in ("vL", "vAl", "vT2", "vT3", "vLane", "aO", "prefetch")]
    ORING = 98304
    SWO, SP, SGX, SGW, SZ1, SHM, SB = 16, 8, 12, 4, 20, 48, 52
    sOo, sRow0, sCol0, sRowQ = 28, 29, 30, 31
    vOd = 4
    vOa = 8
    vPo = 12
    vPK = 48
    fbs = [112, 168]
    e("s_waitcnt vmcnt(0)")
    e("s_barrier")
    e(f"v_mov_b32 v{vT2}, v{vL}")
    for t in range(4):
        e(f"v_mov_b32 v{vOd+t}, v{236+t}")
    e(f"v_permlane32_swap_b32 v{vT2}, v{vL}")
    e("s_nop 1")
    e(f"v_add_f32 v{vL}, v{vT2}, v{vL}")
    e(f"v_rcp_f32 v{vAl}, v{vL}")
    vq = ["c0"] * 4 + ["c1"] * 4

    def odma(c):
        out = []
        for t in range(4):
            out.append((f"s_add_u32 m0, s{sWB}, {ORING + ((c + 2) % 4)*16384 + t*1024}",
                        f"buffer_load_dwordx4 v{vOd+t}, s[{SWO}:{SWO+3}], s{sOo} offen lds"))
        return out
    for c in range(2, 4):
        e(f"s_mov_b32 s{sOo}, {c*14336}")
        for m_, l_ in odma(c):
            e(m_)
            e("s_nop 0")
            e(l_)
            vq.append(f"c{c}")
    e(f"v_readfirstlane_b32 s{sT1}, v232")
    e(f"s_cmp_ge_u32 s{sT1}, 256")
    e("s_cbranch_scc1 L_attn_bok")
    a.label("L_attn_bpoll")
    e("s_sleep 8")
    e(f"global_load_dword v232, v233, s[62:63] sc0 sc1")
    e("s_waitcnt vmcnt(0)")
    e(f"v_readfirstlane_b32 s{sT1}, v232")
    e(f"s_cmp_lt_u32 s{sT1}, 256")
    e("s_cbranch_scc1 L_attn_bpoll")
    a.label("L_attn_bok")
    srd(e, SGX, 42, 43, 0, 2048 * 4096)
    srd(e, SZ1, 46, 47, WS_Z1, 2048 * 1792)
    srd(e, SHM, 46, 47, WS_HM, 2048 * 1792)
    srd(e, SB, 44, 45, 0, 4096)
    e(f"s_mul_i32 s{sT0}, s{sHead}, {2048*896}")
    e(f"s_add_u32 s{sT0}, s{sT0}, {WS_SP}")
    srd(e, SP, 46, 47, f"s{sT0}", 2048 * 896)
    e(f"s_lshl_b32 s{sRowQ}, s{sQb}, 7")
    e(f"s_bfe_u32 s{sT0}, s2, 0x20001")
    e(f"s_lshl_b32 s{sT0}, s{sT0}, 2")
    e(f"s_bfe_u32 s{sT1}, s2, 0x20003")
    e(f"s_add_u32 s{sT0}, s{sT0}, s{sT1}")
    e(f"s_lshl_b32 s{sRow0}, s{sT0}, 7")
    e(f"s_and_b32 s{sT0}, s2, 1")
    e(f"s_lshl_b32 s{sT0}, s{sT0}, 3")
    e(f"s_lshr_b32 s{sT1}, s2, 5")
    e(f"s_add_u32 s{sT0}, s{sT0}, s{sT1}")
    e(f"s_mul_i32 s{sCol0}, s{sT0}, 56")
    e(f"s_lshl_b32 s{sT0}, s{sT0}, 18")
    e(f"s_add_u32 s{sT0}, s{sT0}, {WS_Z2N}")
    srd(e, SGW, 46, 47, f"s{sT0}", 2048 * 128)
    e("s_mov_b32 s65, 0")
    e("s_lshr_b32 s66, s2, 3")
    e("s_lshl_b32 s67, s66, 13")
    e("s_lshl_b32 s66, s66, 7")
    fill = []

    def mid():
        for _ in range(24):
            vq.append("g")
        vR, vG, vCq, vH = 42, 43, 44, 45
        e(f"v_bfe_u32 v{vR}, v{vLane}, 2, 2")
        e(f"v_bfe_u32 v{vG}, v{vLane}, 4, 1")
        e(f"v_and_b32 v{vCq}, 3, v{vLane}")
        e(f"v_lshrrev_b32 v{vH}, 5, v{vLane}")
        for d in range(4):
            e(f"v_lshrrev_b32 v{vT2}, 1, v{vCq}")
            e(f"v_lshl_add_u32 v{vT2}, v{vG}, 1, v{vT2}")
            e(f"v_add_u32 v{vT2}, {4*d}, v{vT2}")
            e(f"v_lshlrev_b32 v{vT3}, 2, v{vR}")
            e(f"v_xor_b32 v{vT2}, v{vT2}, v{vT3}")
            e(f"v_lshlrev_b32 v{vT2}, 4, v{vT2}")
            e(f"v_and_b32 v{vT3}, 1, v{vCq}")
            e(f"v_lshl_add_u32 v{vT2}, v{vT3}, 3, v{vT2}")
            e(f"v_lshl_add_u32 v{vT3}, v{vH}, 3, v{vR}")
            e(f"v_lshl_add_u32 v{vT2}, v{vT3}, 10, v{vT2}")
            e(f"v_add_u32 v{vOa+d}, {ORING}, v{vT2}")
        e(f"v_and_b32 v{vT2}, 31, v{vLane}")
        e(f"s_lshl_b32 s{sT0}, s{sWave}, 5")
        e(f"s_add_u32 s{sT0}, s{sT0}, s{sRowQ}")
        e(f"v_add_u32 v{vT2}, s{sT0}, v{vT2}")
        e(f"s_movk_i32 s{sT0}, 896")
        e(f"v_mul_lo_u32 v{vPo}, v{vT2}, s{sT0}")
        e(f"v_lshl_add_u32 v{vPo}, v{vH}, 4, v{vPo}")
        for db in range(8):
            t = 112 + 16 * (db % 2)
            for i in range(16): e(f"v_accvgpr_read_b32 v{t+i}, a{aO+16*db+i}")
            for i in range(16): e(f"v_mul_f32 v{t+i}, v{t+i}, v{vAl}")
            for i in range(8): e(f"v_cvt_pk_bf16_f32 v{vPK+8*db+i}, v{t+2*i}, v{t+2*i+1}")

        def oreads(c, fb):
            out = []
            for nb in range(14):
                for s_ in range(2):
                    off = ((c + 2) % 4) * 16384 + 4 * s_ * 1024 + (nb >> 2) * 256
                    d = fb + 4 * nb + 2 * s_
                    out.append((f"ds_read_b64_tr_b16 v[{d}:{d+1}], v{vOa + (nb & 3)} offset:{off}", regs(d, 2)))
            return out

        def waitc(c):
            last = max(i for i, t in enumerate(vq) if t == f"c{c}")
            return min(63, len(vq) - 1 - last)
        e(f"s_waitcnt vmcnt({waitc(0)})")
        e("s_barrier")
        for ins, d in oreads(0, fbs[0]):
            a.lds_op(ins, d)
        for c in range(16):
            n = waitc(c + 1) if c + 1 < 16 else 63
            e(f"s_waitcnt vmcnt({n}) lgkmcnt(0)")
            a.lds_drained()
            e("s_barrier")
            dl = []
            if c + 4 < 16:
                e(f"s_mov_b32 s{sOo}, {(c+4)*14336}")
                dl = odma(c + 4)
            rd = oreads(c + 1, fbs[(c + 1) % 2]) if c + 1 < 16 else []
            fb = fbs[c % 2]
            for nb in range(14):
                cc = f"a[{16*nb}:{16*nb+15}]" if c else "0"
                e(f"v_mfma_f32_32x32x16_bf16 a[{16*nb}:{16*nb+15}], v[{fb+4*nb}:{fb+4*nb+3}], v[{vPK+4*c}:{vPK+4*c+3}], {cc}")
                for _ in range(3):
                    if rd:
                        ins, d = rd.pop(0)
                        a.lds_op(ins, d)
                if nb >= 2 and nb % 2 == 0 and dl:
                    m_, l_ = dl.pop(0)
                    e(m_)
                    e("s_nop 0")
                    e(l_)
                    vq.append(f"c{c+4}")
            assert not rd and not dl
        st()
        for nb in range(14):
            t = 176 + 24 * (nb % 2)
            for i in range(16): fill.append(f"v_accvgpr_read_b32 v{t+8+i}, a{16*nb+i}")
            for i in range(8): fill.append(f"v_cvt_pk_bf16_f32 v{t+i}, v{t+8+2*i}, v{t+8+2*i+1}")
            fill.append("s_nop 1")
            for gp in range(2):
                fill.append(f"v_permlane32_swap_b32 v{t+4*gp}, v{t+4*gp+2}")
                fill.append(f"v_permlane32_swap_b32 v{t+4*gp+1}, v{t+4*gp+3}")
            fill.append("s_nop 0")
            for gp in range(2):
                fill.append(f"buffer_store_dwordx4 v[{t+4*gp}:{t+4*gp+3}], v{vPo}, s[{SP}:{SP+3}], 0 offen offset:{(32*nb+16*gp)*2}")

    g = gemm_core(a, "ag", 128, 64, 4, 1, 2048, 64, 6, SGX, SGW, 4096, 128, sRow0, 65, sWave, 224, 56,
                  fragbase=48, mid_cb=mid, fill=fill, peel=8, nfill=8, rolladdr=True, defer=2, sX0=66, sW0=67, wrap=(0xfff, 0x3ffff))
    assert g.addr_end <= 256
    st()
    vOff, vOffM, vB = g.tmp[1], g.tmp[2], g.tmp[3]
    out_offsets(a, g, sRow0, sCol0, 1792, vOff, sT0)
    t0 = g.tmp[0]
    e(f"v_lshlrev_b32 v{g.tmp[4]}, 1, v{t0}")
    e(f"buffer_load_ushort v{vB}, v{g.tmp[4]}, s[{SB}:{SB+3}], 0 offen")
    e(f"v_lshlrev_b32 v{vOffM}, 30, v{g.vH}")
    e(f"v_add_u32 v{vOffM}, v{vOffM}, v{vOff}")
    f = 48
    for bn in range(2):
        for gp in range(2):
            d = f + 4 * (2 * bn + gp)
            vo = vOffM if (bn == 1 and gp == 1) else vOff
            e(f"buffer_load_dwordx4 v[{d}:{d+3}], v{vo}, s[{SZ1}:{SZ1+3}], 0 offen offset:{(32*bn+16*gp)*2}")
    e("s_waitcnt vmcnt(0)")
    e(f"v_lshlrev_b32 v{vB}, 16, v{vB}")
    w = f + 16
    for bn in range(2):
        acc = g.vAcc + 16 * bn
        for gp in range(2):
            s8 = acc + 8 * gp
            z = f + 4 * (2 * bn + gp)
            for i in range(4):
                e(f"v_cvt_pk_bf16_f32 v{w+i}, v{s8+2*i}, v{s8+2*i+1}")
            e("s_nop 1")
            e(f"v_permlane32_swap_b32 v{w}, v{w+2}")
            e(f"v_permlane32_swap_b32 v{w+1}, v{w+3}")
            for i in range(4):
                e(f"v_lshlrev_b32 v{s8+2*i}, 16, v{w+i}")
                e(f"v_and_b32 v{s8+2*i+1}, s{sMask}, v{w+i}")
            for i in range(8): e(f"v_add_f32 v{s8+i}, v{s8+i}, v{vB}")
            for i in range(4): e(f"v_cvt_pk_bf16_f32 v{w+i}, v{s8+2*i}, v{s8+2*i+1}")
            for i in range(4):
                e(f"v_lshlrev_b32 v{s8+2*i}, 16, v{w+i}")
                e(f"v_and_b32 v{s8+2*i+1}, s{sMask}, v{w+i}")
            for i in range(4):
                e(f"v_lshlrev_b32 v{w+4+2*i}, 16, v{z+i}")
                e(f"v_and_b32 v{w+5+2*i}, s{sMask}, v{z+i}")
            for i in range(8): e(f"v_mul_f32 v{s8+i}, v{s8+i}, v{w+4+i}")
            for i in range(4): e(f"v_cvt_pk_bf16_f32 v{z+i}, v{s8+2*i}, v{s8+2*i+1}")
            vo = vOffM if (bn == 1 and gp == 1) else vOff
            e(f"buffer_store_dwordx4 v[{z}:{z+3}], v{vo}, s[{SHM}:{SHM+3}], 0 offen offset:{(32*bn+16*gp)*2}")
    if prefetch:
        e("s_load_dwordx2 s[44:45], s[0:1], 72")
        e(f"v_lshlrev_b32 v{vT2}, 4, v0")
        e("s_waitcnt lgkmcnt(0)")
        srd(e, 12, 44, 45, 0, 896 * 896)
        e(f"s_mul_i32 s{sT0}, s2, 3136")
        e(f"buffer_load_dwordx4 v[152:155], v{vT2}, s[12:15], s{sT0} offen")
    if st.on:
        e("s_waitcnt vmcnt(0)")
```

```python
from asmlib import *
from gen_attn import f32hex, WS_XN, WS_Z1, WS_Z2, WS_Z2T, WS_O, WS_HM

WS_SP = 0x3000000
WS_S = 0x2800000
WS_Z2N = WS_Z2T


class G:
    pass


def srd(e, s, lo, hi, off, size):
    e(f"s_add_u32 s{s}, s{lo}, {off}")
    e(f"s_addc_u32 s{s+1}, s{hi}, 0")
    e(f"s_mov_b32 s{s+2}, {size}")
    e(f"s_mov_b32 s{s+3}, 0x20000")


def gemm_core(a, pfx, MT, NT, WM, WN, K, KC, NST, SX, SW, xstride, wstride, sRow0, sCol0, sWave,
              vbase, sbase, unroll_all=False, nbn_override=None, sX0=None, sW0=None, acc_agpr=False, fragbase=None, mid_cb=None, fill=None, peel=0, nfill=0, rolladdr=False, defer=0, wrap=None):
    e = a.e
    RM, CN = MT // WM, NT // WN
    nbm, nbn = RM // 32, CN // 32
    if nbn_override:
        nbn = nbn_override
    RBX = KC * 2
    RBW = NT * 2
    XB, WB = MT * RBX, KC * RBW
    STG = XB + WB
    nks = KC // 16
    nX, nW = XB // 4096, WB // 4096
    nst_total = K // KC
    assert STG * NST <= 163840
    sT0, sT1, sXo, sWo, sWBx, sWBw, sTrip, sWm, sWn = [sbase + i for i in range(9)]
    vLane = vbase
    vT0, vT1, vT2, vT3, vR, vG, vCq, vH = [vbase + 1 + i for i in range(8)]
    p = vbase + 9
    vXd = p; p += nX
    vWd = p; p += nW
    nhalf = 2 if (STG * NST > 65536 and not rolladdr) else 1
    vXa = p; p += nks * nhalf
    vWa = p; p += nbn * nhalf
    p = (p + 3) // 4 * 4
    addr_end = p
    if fragbase is not None:
        p = fragbase
    FB = 4 * nbm * nks + 4 * nbn * nks
    vXf = p
    vWf = p + 4 * nbm * nks
    p += 2 * FB
    p = (p + 15) // 16 * 16
    AP = "a" if acc_agpr else "v"
    if acc_agpr:
        vAcc = 0
    else:
        vAcc = p; p += 16 * nbm * nbn
    g = G()
    g.vAcc, g.nbm, g.nbn, g.vend, g.vLane, g.vH = vAcc, nbm, nbn, p, vLane, vH
    g.sWm, g.sWn, g.RM, g.CN = sWm, sWn, RM, CN
    g.tmp = [vT0, vT1, vT2, vT3, vR, vG, vCq]
    g.vfree0 = vXf
    g.vfreeN = vAcc - vXf

    e(f"v_and_b32 v{vLane}, 63, v0")
    e(f"v_lshrrev_b32 v{vH}, 5, v{vLane}")
    if WN == 1:
        e(f"s_mov_b32 s{sWm}, s{sWave}")
        e(f"s_mov_b32 s{sWn}, 0")
    else:
        assert WN == 2
        e(f"s_lshr_b32 s{sWm}, s{sWave}, 1")
        e(f"s_and_b32 s{sWn}, s{sWave}, 1")
    cpr = RBX // 16
    rpi = 64 // cpr
    lc = {4: 2, 8: 3, 16: 4, 32: 5}[cpr]

    def fx(dst, row):
        if cpr == 8:
            e(f"v_bfe_u32 v{dst}, v{row}, 1, 3")
        elif cpr == 16 or cpr == 32:
            e(f"v_and_b32 v{dst}, 15, v{row}")
        else:
            e(f"v_bfe_u32 v{dst}, v{row}, 2, 2")

    e(f"s_mul_i32 s{sT0}, s{sWave}, {nX*rpi}")
    e(f"v_lshrrev_b32 v{vT0}, {lc}, v{vLane}")
    e(f"v_and_b32 v{vT1}, {cpr-1}, v{vLane}")
    e(f"s_mov_b32 s{sT1}, {xstride}")
    for t in range(nX):
        e(f"v_add_u32 v{vT2}, {t*rpi}, v{vT0}")
        e(f"v_add_u32 v{vT2}, s{sT0}, v{vT2}")
        fx(vT3, vT2)
        e(f"v_xor_b32 v{vT3}, v{vT3}, v{vT1}")
        e(f"v_lshlrev_b32 v{vT3}, 4, v{vT3}")
        e(f"v_add_u32 v{vT2}, s{sRow0}, v{vT2}")
        e(f"v_mul_lo_u32 v{vT2}, v{vT2}, s{sT1}")
        e(f"v_add_u32 v{vXd+t}, v{vT2}, v{vT3}")
    cprw = RBW // 16
    rpiw = 64 // cprw
    lcw = {8: 3, 16: 4, 32: 5}[cprw]

    def fw(dst, row):
        if cprw == 8:
            e(f"v_bfe_u32 v{dst}, v{row}, 1, 1")
            e(f"v_lshlrev_b32 v{dst}, 2, v{dst}")
        else:
            e(f"v_and_b32 v{dst}, 3, v{row}")
            e(f"v_lshlrev_b32 v{dst}, 2, v{dst}")

    e(f"s_mul_i32 s{sT0}, s{sWave}, {nW*rpiw}")
    e(f"v_lshrrev_b32 v{vT0}, {lcw}, v{vLane}")
    e(f"v_and_b32 v{vT1}, {cprw-1}, v{vLane}")
    e(f"s_mov_b32 s{sT1}, {wstride}")
    e(f"s_lshl_b32 s{sXo}, s{sCol0}, 1")
    for t in range(nW):
        e(f"v_add_u32 v{vT2}, {t*rpiw}, v{vT0}")
        e(f"v_add_u32 v{vT2}, s{sT0}, v{vT2}")
        fw(vT3, vT2)
        e(f"v_xor_b32 v{vT3}, v{vT3}, v{vT1}")
        e(f"v_lshlrev_b32 v{vT3}, 4, v{vT3}")
        e(f"v_mul_lo_u32 v{vT2}, v{vT2}, s{sT1}")
        e(f"v_add3_u32 v{vWd+t}, v{vT2}, v{vT3}, s{sXo}")
    e(f"s_mul_i32 s{sWBx}, s{sWave}, {nX*1024}")
    e(f"s_mul_i32 s{sWBw}, s{sWave}, {nW*1024}")
    e(f"s_add_u32 s{sWBw}, s{sWBw}, {XB}")
    e(f"v_and_b32 v{vT0}, 31, v{vLane}")
    e(f"s_mul_i32 s{sT0}, s{sWm}, {RM}")
    e(f"v_add_u32 v{vT0}, s{sT0}, v{vT0}")
    fx(vT1, vT0)
    for ks in range(nks):
        e(f"v_add_u32 v{vT2}, {2*ks}, v{vH}")
        e(f"v_xor_b32 v{vT2}, v{vT2}, v{vT1}")
        e(f"v_lshlrev_b32 v{vT2}, 4, v{vT2}")
        e(f"v_mul_u32_u24 v{vT3}, {RBX}, v{vT0}")
        e(f"v_add_u32 v{vXa+ks}, v{vT2}, v{vT3}")
        if nhalf == 2:
            e(f"v_add_u32 v{vXa+nks+ks}, 0x10000, v{vXa+ks}")
    e(f"v_bfe_u32 v{vR}, v{vLane}, 2, 2")
    e(f"v_bfe_u32 v{vG}, v{vLane}, 4, 1")
    e(f"v_and_b32 v{vCq}, 3, v{vLane}")
    fw(vT1, vR)
    e(f"s_mul_i32 s{sT0}, s{sWn}, {nbn}")
    for bn in range(nbn):
        e(f"v_lshrrev_b32 v{vT2}, 1, v{vCq}")
        e(f"v_lshl_add_u32 v{vT2}, v{vG}, 1, v{vT2}")
        e(f"s_add_u32 s{sT1}, s{sT0}, {bn}")
        e(f"s_lshl_b32 s{sT1}, s{sT1}, 2")
        e(f"v_add_u32 v{vT2}, s{sT1}, v{vT2}")
        e(f"v_xor_b32 v{vT2}, v{vT2}, v{vT1}")
        e(f"v_lshlrev_b32 v{vT2}, 4, v{vT2}")
        e(f"v_and_b32 v{vT3}, 1, v{vCq}")
        e(f"v_lshl_add_u32 v{vT2}, v{vT3}, 3, v{vT2}")
        e(f"v_lshl_add_u32 v{vT3}, v{vH}, 3, v{vR}")
        e(f"v_mul_u32_u24 v{vT3}, {RBW}, v{vT3}")
        e(f"v_add3_u32 v{vWa+bn}, v{vT2}, v{vT3}, {XB}" if XB <= 64 else f"v_add_u32 v{vT2}, v{vT2}, v{vT3}\nv_add_u32 v{vWa+bn}, {XB}, v{vT2}")
        if nhalf == 2:
            e(f"v_add_u32 v{vWa+nbn+bn}, 0x10000, v{vWa+bn}")

    def dma_stage(slot):
        out = []
        for t in range(nX):
            out.append((f"s_add_u32 m0, s{sWBx}, {slot*STG + t*1024}",
                        f"buffer_load_dwordx4 v{vXd+t}, s[{SX}:{SX+3}], s{sXo} offen lds"))
        for t in range(nW):
            out.append((f"s_add_u32 m0, s{sWBw}, {slot*STG + t*1024}",
                        f"buffer_load_dwordx4 v{vWd+t}, s[{SW}:{SW+3}], s{sWo} offen lds"))
        return out

    def adv():
        e(f"s_add_u32 s{sXo}, s{sXo}, {KC*2}")
        e(f"s_add_u32 s{sWo}, s{sWo}, {KC*wstride}")
        if wrap:
            e(f"s_and_b32 s{sXo}, s{sXo}, {wrap[0]}")
            e(f"s_and_b32 s{sWo}, s{sWo}, {wrap[1]}")

    e(f"s_mov_b32 s{sXo}, {'s%d' % sX0 if sX0 else 0}")
    e(f"s_mov_b32 s{sWo}, {'s%d' % sW0 if sW0 else 0}")
    for st in range(NST - defer):
        for m0i, ld in dma_stage(st):
            e(m0i)
            e("s_nop 0")
            e(ld)
        adv()
    if mid_cb:
        mid_cb()
    if defer:
        e("s_barrier")
    for st in range(NST - defer, NST):
        for m0i, ld in dma_stage(st):
            e(m0i)
            e("s_nop 0")
            e(ld)
        adv()
    for i in range(16 * nbm * nbn):
        e(f"v_accvgpr_write_b32 a{vAcc+i}, 0" if acc_agpr else f"v_mov_b32 v{vAcc+i}, 0")
    nper = nX + nW
    g.addr_end = addr_end

    cur = {"slot": 0}

    def frag_reads(slot, buf):
        base = slot * STG
        pre = []
        if rolladdr:
            delta = (slot - cur["slot"]) * STG
            cur["slot"] = slot
            base = 0
            if delta:
                for r_ in list(range(vXa, vXa + nks)) + list(range(vWa, vWa + nbn)):
                    pre.append((f"v_add_u32 v{r_}, {delta & 0xffffffff}, v{r_}", None))

        def xaddr(ks, bm):
            off = base + bm * 32 * RBX
            if off >= 65536:
                return vXa + nks + ks, off - 65536
            return vXa + ks, off

        def waddr(bn, ks, s):
            off = base + (16 * ks + 4 * s) * RBW
            if off >= 65536:
                return vWa + nbn + bn, off - 65536
            return vWa + bn, off
        reads = []
        for ks in range(nks):
            for bm in range(nbm):
                r, off = xaddr(ks, bm)
                d = vXf + buf * FB + 4 * (ks * nbm + bm)
                reads.append((f"ds_read_b128 v[{d}:{d+3}], v{r} offset:{off}", regs(d, 4)))
            for bn in range(nbn):
                for s in range(2):
                    r, off = waddr(bn, ks, s)
                    assert off < 65536
                    d = vWf + buf * FB + 4 * (ks * nbn + bn) + 2 * s
                    reads.append((f"ds_read_b64_tr_b16 v[{d}:{d+1}], v{r} offset:{off}", regs(d, 2)))
        return pre + reads

    def emit_read(ins, d):
        if d is None:
            e(ins)
        else:
            a.lds_op(ins, d)

    stf = getattr(a, "stamper", None)
    if stf: stf()
    if not mid_cb:
        e(f"s_waitcnt vmcnt({(NST-1)*nper})")
    e("s_barrier")
    if stf: stf()
    for ins, d in frag_reads(0, 0):
        emit_read(ins, d)

    def stage(slot, buf, last=False):
        e(f"s_waitcnt vmcnt({(NST-2)*nper}) lgkmcnt(0)")
        a.lds_drained()
        e("s_barrier")
        reads = [] if last else frag_reads((slot + 1) % NST, buf ^ 1)
        dl = dma_stage(slot)
        nm = nks * nbm * nbn
        per = (len(dl) + nm - 1) // nm
        perr = (len(reads) + nm - 1) // nm
        for ks in range(nks):
            for bm in range(nbm):
                for bn in range(nbn):
                    xf = vXf + buf * FB + 4 * (ks * nbm + bm)
                    wf = vWf + buf * FB + 4 * (ks * nbn + bn)
                    acc = vAcc + 16 * (bm * nbn + bn)
                    e(f"v_mfma_f32_32x32x16_bf16 {AP}[{acc}:{acc+15}], v[{wf}:{wf+3}], v[{xf}:{xf+3}], {AP}[{acc}:{acc+15}]")
                    for _ in range(perr):
                        if reads:
                            ins, d = reads.pop(0)
                            emit_read(ins, d)
                    for _ in range(per):
                        if dl:
                            m0i, ld = dl.pop(0)
                            e(m0i)
                            e("s_nop 0")
                            e(ld)
                    if fill:
                        for _ in range(nfill):
                            if fill:
                                e(fill.pop(0))
        adv()

    for st_ in range(peel):
        stage(st_ % NST, st_ % 2)
    assert not fill, len(fill)
    nst_total -= peel
    if unroll_all:
        for st in range(nst_total):
            stage(st % NST, st % 2, last=(st == nst_total - 1))
    else:
        assert nst_total % NST == 0 and NST % 2 == 0
        e(f"s_mov_b32 s{sTrip}, 0")
        a.label(f"L_{pfx}_loop")
        for u in range(NST):
            stage((peel + u) % NST, (peel + u) % 2)
        e(f"s_add_u32 s{sTrip}, s{sTrip}, 1")
        e(f"s_cmp_lt_u32 s{sTrip}, {nst_total // NST}")
        e(f"s_cbranch_scc1 L_{pfx}_loop")
    if stf: stf()
    e("s_waitcnt vmcnt(0) lgkmcnt(0)")
    a.lds_drained()
    e("s_nop 15")
    return g


def out_offsets(a, g, sRow0, sCol0, stride, vdst, sT):
    e = a.e
    t0 = g.tmp[0]
    e(f"v_and_b32 v{t0}, 31, v{g.vLane}")
    e(f"s_mul_i32 s{sT}, s{g.sWm}, {g.RM}")
    e(f"s_add_u32 s{sT}, s{sT}, s{sRow0}")
    e(f"v_add_u32 v{t0}, s{sT}, v{t0}")
    e(f"s_mov_b32 s{sT}, {stride}")
    e(f"v_mul_lo_u32 v{vdst}, v{t0}, s{sT}")
    e(f"s_mul_i32 s{sT}, s{g.sWn}, {g.CN}")
    e(f"s_add_u32 s{sT}, s{sT}, s{sCol0}")
    e(f"s_lshl_b32 s{sT}, s{sT}, 1")
    e(f"v_add_u32 v{vdst}, s{sT}, v{vdst}")
    e(f"v_lshl_add_u32 v{vdst}, v{g.vH}, 4, v{vdst}")


def to_rowmajor16(a, src16, tmp):
    pass


def gen_k3(name="gs_kernel", stamp=False):
    a = Asm()
    e = a.e
    e("s_cmp_ge_u32 s2, 256")
    e("s_cbranch_scc1 L_k3_end")
    st = Stamper(a, stamp, 2, 72)
    st()
    e("s_load_dwordx2 s[40:41], s[0:1], 56")
    e("s_load_dwordx2 s[42:43], s[0:1], 64")
    e("s_load_dwordx2 s[44:45], s[0:1], 32")
    e("s_load_dwordx2 s[46:47], s[0:1], 96")
    e("v_lshrrev_b32 v1, 6, v0")
    e("s_and_b32 s50, s2, 7")
    e("s_lshr_b32 s51, s2, 3")
    e("v_readfirstlane_b32 s24, v1")
    e("s_waitcnt lgkmcnt(0)")
    e("s_cmp_lt_u32 s51, 16")
    e("s_cbranch_scc1 L_k3_s")
    e("s_sub_u32 s51, s51, 16")
    e("s_lshr_b32 s52, s50, 1")
    e("s_lshl_b32 s52, s52, 2")
    e("s_and_b32 s54, s51, 3")
    e("s_add_u32 s54, s54, s52")
    e("s_and_b32 s53, s50, 1")
    e("s_lshl_b32 s53, s53, 2")
    e("s_lshr_b32 s52, s51, 2")
    e("s_add_u32 s53, s53, s52")
    e("s_cmp_ge_u32 s53, 7")
    e("s_cbranch_scc1 L_k3_end")
    e("s_lshl_b32 s25, s54, 7")
    e("s_lshl_b32 s26, s53, 7")
    srd(e, 4, 40, 41, 0, 2048 * 4096)
    srd(e, 8, 46, 47, WS_Z2N, 2048 * 1792)
    srd(e, 12, 46, 47, WS_Z1, 2048 * 1792)
    srd(e, 16, 46, 47, WS_HM, 2048 * 1792)
    srd(e, 20, 42, 43, 0, 4096)
    a.stamper = st
    g = gemm_core(a, "k3g", 128, 128, 2, 2, 2048, 64, 4, 4, 8, 4096, 1792, 25, 26, 24, 2, 60)
    vOff = g.tmp[1]
    out_offsets(a, g, 25, 26, 1792, vOff, 55)
    f = g.vfree0
    vB = g.tmp[2]
    t0 = g.tmp[0]
    for bm in range(g.nbm):
        e(f"v_lshlrev_b32 v{g.tmp[3]}, 1, v{t0}")
        e(f"buffer_load_ushort v{vB+0 if bm == 0 else g.tmp[4]}, v{g.tmp[3]}, s[20:23], 0 offen offset:{bm*64}")
    idx = 0
    zl = {}
    for bm in range(g.nbm):
        for bn in range(g.nbn):
            for gp in range(2):
                d = f + 4 * idx
                zl[(bm, bn, gp)] = d
                e(f"s_mov_b32 s56, {bm*32*1792}")
                e(f"buffer_load_dwordx4 v[{d}:{d+3}], v{vOff}, s[12:15], s56 offen offset:{(32*bn+16*gp)*2}")
                idx += 1
    e("s_waitcnt vmcnt(0)")
    e(f"v_lshlrev_b32 v{vB}, 16, v{vB}")
    e(f"v_lshlrev_b32 v{g.tmp[4]}, 16, v{g.tmp[4]}")
    w = f + 4 * idx
    w = (w + 3) // 4 * 4
    for bm in range(g.nbm):
        bb = vB if bm == 0 else g.tmp[4]
        for bn in range(g.nbn):
            acc = g.vAcc + 16 * (bm * g.nbn + bn)
            for gp in range(2):
                s8 = acc + 8 * gp
                for i in range(4):
                    e(f"v_cvt_pk_bf16_f32 v{w+i}, v{s8+2*i}, v{s8+2*i+1}")
                e("s_nop 1")
                e(f"v_permlane32_swap_b32 v{w}, v{w+2}")
                e(f"v_permlane32_swap_b32 v{w+1}, v{w+3}")
                z = zl[(bm, bn, gp)]
                for i in range(4):
                    lo, hi = s8 + 2 * i, s8 + 2 * i + 1
                    e(f"v_lshlrev_b32 v{lo}, 16, v{w+i}")
                    e(f"v_and_b32 v{hi}, 0xffff0000, v{w+i}")
                    e(f"v_add_f32 v{lo}, v{lo}, v{bb}")
                    e(f"v_add_f32 v{hi}, v{hi}, v{bb}")
                    e(f"v_cvt_pk_bf16_f32 v{w+i}, v{lo}, v{hi}")
                    e(f"v_lshlrev_b32 v{lo}, 16, v{w+i}")
                    e(f"v_and_b32 v{hi}, 0xffff0000, v{w+i}")
                    e(f"v_lshlrev_b32 v{w+4}, 16, v{z+i}")
                    e(f"v_and_b32 v{w+5}, 0xffff0000, v{z+i}")
                    e(f"v_mul_f32 v{lo}, v{lo}, v{w+4}")
                    e(f"v_mul_f32 v{hi}, v{hi}, v{w+5}")
                    e(f"v_cvt_pk_bf16_f32 v{z+i}, v{lo}, v{hi}")
                e(f"s_mov_b32 s56, {bm*32*1792}")
                e(f"buffer_store_dwordx4 v[{z}:{z+3}], v{vOff}, s[16:19], s56 offen offset:{(32*bn+16*gp)*2}")
    e("s_waitcnt vmcnt(0)")
    st.dump()
    e("s_endpgm")
    vmax = g.vend
    st.n = 1
    a.label("L_k3_s")
    e("s_lshr_b32 s52, s51, 1")
    e("s_lshl_b32 s52, s52, 1")
    e("s_lshr_b32 s54, s50, 2")
    e("s_add_u32 s54, s54, s52")
    e("s_lshl_b32 s25, s54, 7")
    e("s_and_b32 s53, s51, 1")
    e("s_mul_i32 s26, s53, 224")
    e("s_and_b32 s57, s50, 3")
    e("s_lshl_b32 s58, s57, 11")
    e("s_mul_i32 s59, s57, %d" % (1024 * 896))
    srd(e, 4, 46, 47, WS_O, 2048 * 8192)
    srd(e, 8, 44, 45, 0, 4096 * 896)
    e("s_mul_i32 s57, s57, %d" % (2048 * 1792))
    e("s_add_u32 s57, s57, %d" % WS_SP)
    srd(e, 16, 46, 47, "s57", 2048 * 1792)
    g = gemm_core(a, "k3s", 128, 256, 4, 1, 1024, 32, 4, 4, 8, 8192, 896, 25, 26, 24, 2, 60, nbn_override=7, sX0=58, sW0=59, acc_agpr=True)
    t0, vOff = g.tmp[0], g.tmp[1]
    e(f"v_and_b32 v{t0}, 31, v{g.vLane}")
    e(f"s_lshl_b32 s55, s24, 5")
    e(f"s_add_u32 s55, s55, s25")
    e(f"v_add_u32 v{t0}, s55, v{t0}")
    e(f"s_movk_i32 s55, 1792")
    e(f"v_mul_lo_u32 v{vOff}, v{t0}, s55")
    e(f"s_lshl_b32 s55, s26, 2")
    e(f"v_add_u32 v{vOff}, s55, v{vOff}")
    e(f"v_lshl_add_u32 v{vOff}, v{g.vH}, 4, v{vOff}")
    for bn in range(7):
        for gg in range(4):
            r = g.vAcc + 16 * bn + 4 * gg
            e(f"buffer_store_dwordx4 a[{r}:{r+3}], v{vOff}, s[16:19], 0 offen offset:{(32*bn+8*gg)*4}")
    if stamp:
        e("s_waitcnt vmcnt(0)")
    st.dump()
    a.label("L_k3_end")
    e("s_endpgm")
    vmax = max(vmax, g.vend)
    vmax = (vmax + 7) // 8 * 8
    assert vmax <= 256, vmax
    return a.text(), kernel_desc(name, vmax + 112, vmax, 100), 131072


def gen_k4(name="fin_kernel", np16=False):
    a = Asm()
    e = a.e
    e("s_cmp_ge_u32 s2, 224")
    e("s_cbranch_scc1 L_k4_end")
    e("s_load_dwordx2 s[40:41], s[0:1], 72")
    e("s_load_dwordx2 s[42:43], s[0:1], 0")
    e("s_load_dwordx2 s[44:45], s[0:1], 80")
    e("s_load_dwordx2 s[46:47], s[0:1], 96")
    e("v_lshrrev_b32 v1, 6, v0")
    e("s_and_b32 s50, s2, 7")
    e("s_lshr_b32 s51, s2, 3")
    e("v_readfirstlane_b32 s24, v1")
    e("s_mul_i32 s52, s51, 37")
    e("s_lshr_b32 s52, s52, 8")
    e("s_mul_i32 s53, s52, 7")
    e("s_sub_u32 s53, s51, s53")
    e("s_lshl_b32 s54, s50, 2")
    e("s_add_u32 s54, s54, s52")
    e("s_lshl_b32 s25, s54, 6")
    e("s_lshl_b32 s26, s53, 6")
    e("s_waitcnt lgkmcnt(0)")
    srd(e, 4, 46, 47, WS_HM, 2048 * 1792)
    srd(e, 8, 40, 41, 0, 896 * 896)
    srd(e, 12, 46, 47, WS_SP, 16 * 2048 * 896)
    srd(e, 16, 44, 45, 0, 2048 * 896)
    srd(e, 20, 42, 43, 0, 2048 * 896)
    g = gemm_core(a, "k4", 64, 64, 2, 2, 896, 64, 4, 4, 8, 1792, 896, 25, 26, 24, 2, 60, unroll_all=True)
    vOff = g.tmp[1]
    out_offsets(a, g, 25, 26, 896, vOff, 55)
    f = g.vfree0
    acc = g.vAcc
    pb = (g.vend + 3) // 4 * 4
    for gp in range(2):
        e(f"buffer_load_dwordx4 v[{f+8+4*gp}:{f+8+4*gp+3}], v{vOff}, s[20:23], 0 offen offset:{32*gp}")
    for hd in range(16):
        e(f"s_mov_b32 s58, {hd*2048*896}")
        for gp in range(2):
            d = pb + 8 * hd + 4 * gp
            e(f"buffer_load_dwordx4 v[{d}:{d+3}], v{vOff}, s[12:15], s58 offen offset:{32*gp}")
    w = f + 16
    sa = pb + 128
    e(f"s_mov_b32 s57, {f32hex(-1.4426950408889634)}")
    e("s_mov_b32 s59, 0xffff0000")
    for hd in range(16):
        e(f"s_waitcnt vmcnt({2*(15-hd)})")
        for i in range(8):
            d = pb + 8 * hd + i
            if hd == 0:
                e(f"v_lshlrev_b32 v{sa+2*i}, 16, v{d}")
                e(f"v_and_b32 v{sa+2*i+1}, s59, v{d}")
            else:
                e(f"v_lshlrev_b32 v{w}, 16, v{d}")
                e(f"v_and_b32 v{d}, s59, v{d}")
                e(f"v_add_f32 v{sa+2*i}, v{sa+2*i}, v{w}")
                e(f"v_add_f32 v{sa+2*i+1}, v{sa+2*i+1}, v{d}")
    for i in range(8):
        e(f"v_cvt_pk_bf16_f32 v{f+i}, v{sa+2*i}, v{sa+2*i+1}")
    for gp in range(2):
        s8 = acc + 8 * gp
        for i in range(4):
            e(f"v_cvt_pk_bf16_f32 v{w+i}, v{s8+2*i}, v{s8+2*i+1}")
        e("s_nop 1")
        e(f"v_permlane32_swap_b32 v{w}, v{w+2}")
        e(f"v_permlane32_swap_b32 v{w+1}, v{w+3}")
        sv, xv = f + 4 * gp, f + 8 + 4 * gp
        for i in range(4):
            for hh in range(2):
                y = s8 + 2 * i + hh
                t = w + 4 + hh
                if hh == 0:
                    e(f"v_lshlrev_b32 v{y}, 16, v{w+i}")
                else:
                    e(f"v_and_b32 v{y}, 0xffff0000, v{w+i}")
                e(f"v_mul_f32 v{t}, s57, v{y}")
                e(f"v_exp_f32 v{t}, v{t}")
                e("s_nop 0")
                e(f"v_add_f32 v{t}, 1.0, v{t}")
                e(f"v_rcp_f32 v{t}, v{t}")
                e("s_nop 0")
                e(f"v_mul_f32 v{y}, v{y}, v{t}")
            lo, hi = s8 + 2 * i, s8 + 2 * i + 1
            e(f"v_cvt_pk_bf16_f32 v{w+i}, v{lo}, v{hi}")
            e(f"v_lshlrev_b32 v{lo}, 16, v{w+i}")
            e(f"v_and_b32 v{hi}, 0xffff0000, v{w+i}")
            e(f"v_lshlrev_b32 v{w+4}, 16, v{sv+i}")
            e(f"v_and_b32 v{w+5}, 0xffff0000, v{sv+i}")
            e(f"v_mul_f32 v{lo}, v{lo}, v{w+4}")
            e(f"v_mul_f32 v{hi}, v{hi}, v{w+5}")
            e(f"v_cvt_pk_bf16_f32 v{w+i}, v{lo}, v{hi}")
            e(f"v_lshlrev_b32 v{lo}, 16, v{w+i}")
            e(f"v_and_b32 v{hi}, 0xffff0000, v{w+i}")
            e(f"v_lshlrev_b32 v{w+4}, 16, v{xv+i}")
            e(f"v_and_b32 v{w+5}, 0xffff0000, v{xv+i}")
            e(f"v_add_f32 v{lo}, v{lo}, v{w+4}")
            e(f"v_add_f32 v{hi}, v{hi}, v{w+5}")
            e(f"v_cvt_pk_bf16_f32 v{sv+i}, v{lo}, v{hi}")
        e(f"buffer_store_dwordx4 v[{sv}:{sv+3}], v{vOff}, s[16:19], 0 offen offset:{32*gp}")
    e("s_waitcnt vmcnt(0)")
    a.label("L_k4_end")
    e("s_endpgm")
    vmax = (pb + 144 + 7) // 8 * 8
    return a.text(), kernel_desc(name, vmax, vmax, 96), 65536


def gen_ln2(name="ln2_kernel"):
    a = Asm()
    e = a.e
    e("s_cmp_ge_u32 s2, 256")
    e("s_cbranch_scc1 L_ln2_end")
    e("s_load_dwordx2 s[46:47], s[0:1], 96")
    e("v_lshrrev_b32 v1, 5, v0")
    e("v_and_b32 v2, 31, v0")
    e("s_lshl_b32 s3, s2, 3")
    e("v_add_u32 v1, s3, v1")
    e("s_movk_i32 s3, 1792")
    e("v_mul_lo_u32 v1, v1, s3")
    e("v_lshl_add_u32 v1, v2, 2, v1")
    e("s_waitcnt lgkmcnt(0)")
    srd(e, 4, 46, 47, WS_Z2, 2048 * 1792)
    srd(e, 8, 46, 47, WS_Z2N, 2048 * 1792)
    for t in range(14):
        e(f"buffer_load_dword v{8+t}, v1, s[4:7], 0 offen offset:{128*t}")
    e("v_mov_b32 v4, 0")
    e("v_mov_b32 v5, 0")
    e("s_mov_b32 s12, 0x3f803f80")
    e("v_mov_b32 v6, s12")
    e("s_waitcnt vmcnt(0)")
    for t in range(14):
        e(f"v_dot2_f32_bf16 v4, v{8+t}, v6, v4")
        e(f"v_dot2_f32_bf16 v5, v{8+t}, v{8+t}, v5")
    e("s_nop 3")
    for x in (1, 2, 4, 8, 16):
        e(f"ds_swizzle_b32 v2, v4 offset:{(x << 10) | 0x1f}")
        e(f"ds_swizzle_b32 v3, v5 offset:{(x << 10) | 0x1f}")
        e("s_waitcnt lgkmcnt(0)")
        e("v_add_f32 v4, v4, v2")
        e("v_add_f32 v5, v5, v3")
    ln_stats(e, 4, 5, 2, 3, 896)
    for t in range(14):
        e(f"v_lshlrev_b32 v2, 16, v{8+t}")
        e(f"v_and_b32 v3, 0xffff0000, v{8+t}")
        e("v_sub_f32 v2, v2, v4")
        e("v_sub_f32 v3, v3, v4")
        e("v_cvt_pk_bf16_f32 v2, v2, v3")
        e("v_and_b32 v3, 0xffff0000, v2")
        e("v_lshlrev_b32 v2, 16, v2")
        e("v_mul_f32 v2, v2, v5")
        e("v_mul_f32 v3, v3, v5")
        e(f"v_cvt_pk_bf16_f32 v{8+t}, v2, v3")
        e(f"buffer_store_dword v{8+t}, v1, s[8:11], 0 offen offset:{128*t}")
    e("s_waitcnt vmcnt(0)")
    a.label("L_ln2_end")
    e("s_endpgm")
    return a.text(), kernel_desc(name, 32, 32, 64), 0


def ln_stats(e, vS, vQ, t0, t1, n):
    e(f"v_mul_f32 v{vS}, {f32hex(1.0/n)}, v{vS}")
    e(f"v_mul_f32 v{vQ}, {f32hex(1.0/n)}, v{vQ}")
    e(f"v_fma_f32 v{vQ}, -v{vS}, v{vS}, v{vQ}")
    e(f"v_max_f32 v{vQ}, 0, v{vQ}")
    e(f"v_cvt_pk_bf16_f32 v{t0}, v{vS}, v{vQ}")
    e(f"v_lshlrev_b32 v{vS}, 16, v{t0}")
    e(f"v_and_b32 v{vQ}, 0xffff0000, v{t0}")
    e(f"v_add_f32 v{vQ}, {f32hex(1e-5)}, v{vQ}")
    e(f"v_cvt_pk_bf16_f32 v{t0}, v{vQ}, v{vQ}")
    e(f"v_lshlrev_b32 v{vQ}, 16, v{t0}")
    e(f"v_sqrt_f32 v{vQ}, v{vQ}")
    e("s_nop 0")
    e(f"v_cvt_pk_bf16_f32 v{t0}, v{vQ}, v{vQ}")
    e(f"v_lshlrev_b32 v{vQ}, 16, v{t0}")
    e(f"v_rcp_f32 v{vQ}, v{vQ}")
    e("s_nop 0")


def gen_k1(name="pre_kernel", stamp=False):
    a = Asm()
    e = a.e
    st = Stamper(a, stamp, 0, 70)
    e("s_cmp_ge_u32 s2, 224")
    e("s_cbranch_scc1 L_k1_end")
    st()
    e("s_load_dwordx2 s[40:41], s[0:1], 0")
    e("s_load_dwordx2 s[42:43], s[0:1], 48")
    e("s_load_dwordx2 s[46:47], s[0:1], 96")
    e("v_lshrrev_b32 v1, 6, v0")
    e("s_and_b32 s50, s2, 7")
    e("s_lshr_b32 s51, s2, 3")
    e("v_readfirstlane_b32 s24, v1")
    e("s_cmp_ge_u32 s51, 14")
    e("s_cselect_b32 s52, 1, 0")
    e("s_mul_i32 s53, s52, 14")
    e("s_sub_u32 s53, s51, s53")
    e("s_lshl_b32 s54, s50, 1")
    e("s_add_u32 s54, s54, s52")
    e("s_lshl_b32 s25, s54, 7")
    e("s_lshl_b32 s26, s53, 7")
    e("s_waitcnt lgkmcnt(0)")
    srd(e, 4, 40, 41, 0, 2048 * 896)
    srd(e, 8, 42, 43, 0, 448 * 3584)
    srd(e, 12, 46, 47, WS_XN, 2048 * 896)
    e("s_cmp_ge_u32 s53, 7")
    e(f"s_mov_b32 s55, {WS_Z1}")
    e(f"s_cselect_b32 s55, {WS_Z2}, s55")
    e("s_cselect_b32 s56, 896, 0")
    e("s_sub_u32 s27, s26, s56")
    srd(e, 16, 46, 47, "s55", 2048 * 1792)
    vLane, vH, vT0, vT1, vT2, vT3, vR, vG, vCq = 1, 2, 3, 4, 5, 6, 7, 8, 9
    vXo, vSum, vSq, vOne, vZo = 10, 11, 12, 13, 14
    vWd = 16
    vWa = 20
    vX = 32
    vWf = 144
    vAcc = 208
    vAcc = 144
    vWf = 208
    e(f"v_and_b32 v{vLane}, 63, v0")
    e(f"v_lshrrev_b32 v{vH}, 5, v{vLane}")
    e(f"v_lshrrev_b32 v{vT0}, 4, v{vLane}")
    e(f"v_and_b32 v{vT1}, 15, v{vLane}")
    e("s_lshl_b32 s57, s24, 4")
    e("s_movk_i32 s58, 3584")
    e("s_lshl_b32 s59, s26, 1")
    for t in range(4):
        e(f"v_add_u32 v{vT2}, {4*t}, v{vT0}")
        e(f"v_add_u32 v{vT2}, s57, v{vT2}")
        e(f"v_and_b32 v{vT3}, 3, v{vT2}")
        e(f"v_lshlrev_b32 v{vT3}, 2, v{vT3}")
        e(f"v_xor_b32 v{vT3}, v{vT3}, v{vT1}")
        e(f"v_lshlrev_b32 v{vT3}, 4, v{vT3}")
        e(f"v_mul_lo_u32 v{vT2}, v{vT2}, s58")
        e(f"v_add3_u32 v{vWd+t}, v{vT2}, v{vT3}, s59")
    e(f"v_and_b32 v{vT0}, 31, v{vLane}")
    e("s_lshl_b32 s57, s24, 5")
    e("s_add_u32 s57, s57, s25")
    e(f"v_add_u32 v{vT0}, s57, v{vT0}")
    e("s_movk_i32 s58, 896")
    e(f"v_mul_lo_u32 v{vXo}, v{vT0}, s58")
    e(f"v_lshl_add_u32 v{vXo}, v{vH}, 4, v{vXo}")
    e("s_movk_i32 s58, 1792")
    e(f"v_mul_lo_u32 v{vZo}, v{vT0}, s58")
    e(f"v_lshl_add_u32 v{vZo}, v{vH}, 4, v{vZo}")
    e("s_lshl_b32 s58, s27, 1")
    e(f"v_add_u32 v{vZo}, s58, v{vZo}")
    for ks in range(28):
        e(f"buffer_load_dwordx4 v[{vX+4*ks}:{vX+4*ks+3}], v{vXo}, s[4:7], 0 offen offset:{ks*32}")
    e("s_lshl_b32 s57, s24, 12")
    for ci in range(7):
        e(f"s_mov_b32 s58, {ci*64*3584}")
        for t in range(4):
            e(f"s_add_u32 m0, s57, {ci*16384 + t*1024}")
            e("s_nop 0")
            e(f"buffer_load_dwordx4 v{vWd+t}, s[8:11], s58 offen lds")
    e(f"v_bfe_u32 v{vR}, v{vLane}, 2, 2")
    e(f"v_bfe_u32 v{vG}, v{vLane}, 4, 1")
    e(f"v_and_b32 v{vCq}, 3, v{vLane}")
    for bn in range(4):
        e(f"v_lshrrev_b32 v{vT2}, 1, v{vCq}")
        e(f"v_lshl_add_u32 v{vT2}, v{vG}, 1, v{vT2}")
        e(f"v_add_u32 v{vT2}, {4*bn}, v{vT2}")
        e(f"v_lshlrev_b32 v{vT3}, 2, v{vR}")
        e(f"v_xor_b32 v{vT2}, v{vT2}, v{vT3}")
        e(f"v_lshlrev_b32 v{vT2}, 4, v{vT2}")
        e(f"v_and_b32 v{vT3}, 1, v{vCq}")
        e(f"v_lshl_add_u32 v{vT2}, v{vT3}, 3, v{vT2}")
        e(f"v_lshl_add_u32 v{vT3}, v{vH}, 3, v{vR}")
        e(f"v_lshl_add_u32 v{vWa+bn}, v{vT3}, 8, v{vT2}")
        e(f"v_add_u32 v{vWa+4+bn}, 0x10000, v{vWa+bn}")
    vS2, vQ2 = 28, 29
    vNm, vRd = 30, 24
    vRd = 250
    vTP = 232
    e("s_mov_b32 s58, 0x3f803f80")
    e(f"v_mov_b32 v{vOne}, s58")
    for r in (vSum, vSq, vS2, vQ2):
        e(f"v_mov_b32 v{r}, 0")
    st()
    e("s_waitcnt vmcnt(28)")
    st()
    for i in range(0, 112, 2):
        e(f"v_dot2_f32_bf16 v{vSum}, v{vX+i}, v{vOne}, v{vSum}")
        e(f"v_dot2_f32_bf16 v{vSq}, v{vX+i}, v{vX+i}, v{vSq}")
        e(f"v_dot2_f32_bf16 v{vS2}, v{vX+i+1}, v{vOne}, v{vS2}")
        e(f"v_dot2_f32_bf16 v{vQ2}, v{vX+i+1}, v{vX+i+1}, v{vQ2}")
    e("s_nop 3")
    e(f"v_add_f32 v{vSum}, v{vSum}, v{vS2}")
    e(f"v_add_f32 v{vSq}, v{vSq}, v{vQ2}")
    e(f"v_mov_b32 v{vT0}, v{vSum}")
    e(f"v_mov_b32 v{vT1}, v{vSq}")
    e("s_nop 1")
    e(f"v_permlane32_swap_b32 v{vT0}, v{vSum}")
    e(f"v_permlane32_swap_b32 v{vT1}, v{vSq}")
    e("s_nop 1")
    e(f"v_add_f32 v{vSum}, v{vSum}, v{vT0}")
    e(f"v_add_f32 v{vSq}, v{vSq}, v{vT1}")
    ln_stats(e, vSum, vSq, vT0, vT1, 448)
    e(f"v_sub_f32 v{vNm}, 0, v{vSum}")
    e(f"v_sub_f32 v{vNm+1}, 0, v{vSum}")
    e(f"v_mov_b32 v{vRd}, v{vSq}")
    e(f"v_mov_b32 v{vRd+1}, v{vSq}")
    e("s_mov_b32 s59, 0xffff0000")
    st()
    e("s_waitcnt vmcnt(0)")
    e("s_barrier")
    st()

    def wreads(ks):
        out = []
        fb = vWf + 8 * 0 + 12 * 0 + (16 * (ks % 2) if False else 0)
        return out

    def norm_ops(ks):
        ops = []
        xs = [vX + 4 * ks + i for i in range(4)]
        ts = [vTP + 2 * i for i in range(4)]
        for x, t in zip(xs, ts): ops.append(f"v_lshlrev_b32 v{t}, 16, v{x}")
        for x, t in zip(xs, ts): ops.append(f"v_and_b32 v{t+1}, s59, v{x}")
        for x, t in zip(xs, ts): ops.append(f"v_pk_add_f32 v[{t}:{t+1}], v[{t}:{t+1}], v[{vNm}:{vNm+1}]")
        for x, t in zip(xs, ts): ops.append(f"v_cvt_pk_bf16_f32 v{x}, v{t}, v{t+1}")
        for x, t in zip(xs, ts): ops.append(f"v_lshlrev_b32 v{t}, 16, v{x}")
        for x, t in zip(xs, ts): ops.append(f"v_and_b32 v{t+1}, s59, v{x}")
        for x, t in zip(xs, ts): ops.append(f"v_pk_mul_f32 v[{t}:{t+1}], v[{t}:{t+1}], v[{vRd}:{vRd+1}]")
        for x, t in zip(xs, ts): ops.append(f"v_cvt_pk_bf16_f32 v{x}, v{t}, v{t+1}")
        return ops

    wbuf = [208, 176 + 0]
    wbuf = [208, 16 * 0 + 252 - 36]
    wbuf = [208, 0]
    def wreg(buf, bn):
        if buf == 0:
            return 208 + 4 * bn
        return [224, 228, 240, 244][bn]

    def w_reads(ks):
        out = []
        for bn in range(4):
            for s_ in range(2):
                off = (16 * ks + 4 * s_) * 256
                r = vWa + bn
                if off >= 65536:
                    off -= 65536
                    r += 4
                d = wreg(ks % 2, bn) + 2 * s_
                out.append((f"ds_read_b64_tr_b16 v[{d}:{d+1}], v{r} offset:{off}", regs(d, 2)))
        return out

    for ins, d in w_reads(0):
        a.lds_op(ins, d)
    for o in norm_ops(0):
        e(o)
    for ks in range(28):
        ops = norm_ops(ks + 1) if ks < 27 else []
        rd = w_reads(ks + 1) if ks < 27 else []
        e("s_nop 1")
        for bn in range(4):
            f0 = wreg(ks % 2, bn)
            a.lds_need(regs(f0, 4))
            c = f"v[{vAcc+16*bn}:{vAcc+16*bn+15}]" if ks else "0"
            e(f"v_mfma_f32_32x32x16_bf16 v[{vAcc+16*bn}:{vAcc+16*bn+15}], v[{f0}:{f0+3}], v[{vX+4*ks}:{vX+4*ks+3}], {c}")
            for _ in range(2):
                if rd:
                    ins, d = rd.pop(0)
                    a.lds_op(ins, d)
            for _ in range(8):
                if ops:
                    e(ops.pop(0))
    st()
    e("s_cmp_lg_u32 s53, 0")
    e("s_cbranch_scc1 L_k1_noxn")
    for ks in range(28):
        e(f"buffer_store_dwordx4 v[{vX+4*ks}:{vX+4*ks+3}], v{vXo}, s[12:15], 0 offen offset:{ks*32}")
    a.label("L_k1_noxn")
    e("s_nop 15")
    c1 = -2.0 * 1.4426950408889634 * 0.7978845608028654
    c2 = c1 * 0.044715
    e(f"s_mov_b32 s57, {f32hex(c1)}")
    e(f"s_mov_b32 s58, {f32hex(c2)}")
    e(f"v_mov_b32 v{vOne}, s57")
    tt = 208
    k = 0
    for bn in range(4):
        for gp in range(2):
            s8 = vAcc + 16 * bn + 8 * gp
            o = 216 + 4 * (k % 4)
            k += 1
            for i in range(4):
                e(f"v_cvt_pk_bf16_f32 v{o+i}, v{s8+2*i}, v{s8+2*i+1}")
            for i in range(4):
                e(f"v_lshlrev_b32 v{s8+2*i}, 16, v{o+i}")
                e(f"v_and_b32 v{s8+2*i+1}, s59, v{o+i}")
            for i in range(8): e(f"v_mul_f32 v{tt+i}, v{s8+i}, v{s8+i}")
            for i in range(8): e(f"v_fma_f32 v{tt+i}, v{tt+i}, s58, v{vOne}")
            for i in range(8): e(f"v_mul_f32 v{tt+i}, v{tt+i}, v{s8+i}")
            for i in range(8): e(f"v_exp_f32 v{tt+i}, v{tt+i}")
            for i in range(8): e(f"v_add_f32 v{tt+i}, 1.0, v{tt+i}")
            for i in range(8): e(f"v_rcp_f32 v{tt+i}, v{tt+i}")
            for i in range(8): e(f"v_mul_f32 v{s8+i}, v{s8+i}, v{tt+i}")
            for i in range(4):
                e(f"v_cvt_pk_bf16_f32 v{o+i}, v{s8+2*i}, v{s8+2*i+1}")
            e("s_nop 1")
            e(f"v_permlane32_swap_b32 v{o}, v{o+2}")
            e(f"v_permlane32_swap_b32 v{o+1}, v{o+3}")
            e("s_nop 0")
            e(f"buffer_store_dwordx4 v[{o}:{o+3}], v{vZo}, s[16:19], 0 offen offset:{(32*bn+16*gp)*2}")
    st()
    e("s_waitcnt vmcnt(0)")
    st.dump()
    a.label("L_k1_end")
    e("s_endpgm")
    return a.text(), kernel_desc(name, 256, 256, 100), 114688
```

```python
from build import *
from gen_gemm import *
from gen_attn3 import *
import sys
out = sys.argv[1] if len(sys.argv) > 1 else "recurrent_scan__mha_block_cached__mixer_gmlp__prompt.s"
stamp = len(sys.argv) > 2
ba, da = gen_attn3(stamp=stamp)
b4, d4, l4 = gen_k4(stamp=stamp)
assemble([("attn_kernel", 256, 256, 163840, ba, da),
          ("fin_kernel", 224, 256, l4, b4, d4)], out)
```

```python
from asmlib import *
from gen_attn import f32hex, WS_XN, WS_Z1, WS_Z2, WS_Z2T, WS_O, WS_HM
from gen_gemm import ln_stats, srd, WS_Z2N, WS_SP, gemm_core, out_offsets

LOG2E = 1.4426950408889634
SCALE = LOG2E / 16.0
THR = 8.0


def gen_attn3(name="attn_kernel", stamp=False, use_dot=False, prefetch=True):
    a = Asm()
    e = a.e
    st = Stamper(a, stamp, 1, 68)
    SK, SV, SW, SX, SO, SI, SZ = 4, 8, 12, 16, 20, 48, 52
    sWave, sHead, sQb, sWB, sKoff, sVoff, sTrip, sC, sT0, sT1 = 24, 25, 26, 27, 28, 29, 30, 31, 32, 33
    sWoff, sThr, sMask, sG1, sG2 = 36, 37, 38, 39, 56
    vLane = 1
    vT0, vT1, vT2, vT3 = 2, 3, 40, 41
    vKd, vVd, vWd = 4, 8, 12
    vKa, vVa, vWa = 16, 24, 28
    vOne, vZo, vL, vMax, vM, vAl = 32, 33, 34, 35, 36, 37
    vOoff = 38
    vC1 = 39
    vId = 232
    vIa = 236
    vS = [48, 64]
    vNM = 80
    vP = 96
    vKf = 104
    vVf = 168
    vX = 48
    vZ = [48, 64, 80, 240]
    aO, aQ, aX = 0, 128, 128
    VRING = 65536

    e("s_cmp_ge_u32 s2, 256")
    e("s_cbranch_scc1 L_attn_end")
    st()
    e("s_load_dwordx4 s[40:43], s[0:1], 8")
    e("s_load_dwordx2 s[44:45], s[0:1], 24")
    e("s_load_dwordx2 s[46:47], s[0:1], 96")
    e("s_load_dwordx2 s[58:59], s[0:1], 0")
    e("s_load_dwordx2 s[60:61], s[0:1], 48")
    e("s_load_dwordx2 s[62:63], s[0:1], 88")
    e(f"s_and_b32 s{sT0}, s2, 7")
    e(f"s_lshl_b32 s{sT0}, s{sT0}, 1")
    e(f"s_lshr_b32 s{sT1}, s2, 3")
    e(f"s_and_b32 s{sHead}, s{sT1}, 1")
    e(f"s_add_u32 s{sHead}, s{sHead}, s{sT0}")
    e(f"s_lshr_b32 s{sQb}, s2, 4")
    e(f"v_lshrrev_b32 v{vT0}, 6, v0")
    e(f"v_and_b32 v{vLane}, 63, v0")
    e(f"v_readfirstlane_b32 s{sWave}, v{vT0}")
    e(f"s_mov_b32 s{sC}, {f32hex(SCALE)}")
    e(f"s_mov_b32 s{sThr}, {f32hex(THR)}")
    e(f"s_mov_b32 s{sMask}, 0xffff0000")
    e(f"v_lshrrev_b32 v{vT0}, 5, v{vLane}")
    e(f"v_and_b32 v{vT1}, 31, v{vLane}")
    e(f"s_lshl_b32 s{sT0}, s{sQb}, 7")
    e(f"s_lshl_b32 s{sT1}, s{sWave}, 5")
    e(f"s_add_u32 s{sT0}, s{sT0}, s{sT1}")
    e(f"v_add_u32 v{vT2}, s{sT0}, v{vT1}")
    e(f"s_movk_i32 s{sT1}, 896")
    e(f"v_mul_lo_u32 v{vT3}, v{vT2}, s{sT1}")
    e(f"v_lshl_add_u32 v{vT3}, v{vT0}, 4, v{vT3}")
    e("s_waitcnt lgkmcnt(0)")
    srd(e, SX, 58, 59, 0, 2048 * 896)
    for ks in range(28):
        e(f"buffer_load_dwordx4 v[{vX+4*ks}:{vX+4*ks+3}], v{vT3}, s[{SX}:{SX+3}], 0 offen offset:{ks*32}")
    e(f"v_lshlrev_b32 v{vOoff}, 13, v{vT2}")
    e(f"v_lshl_add_u32 v{vOoff}, v{vT0}, 4, v{vOoff}")
    e(f"s_lshl_b32 s{sT0}, s{sHead}, 9")
    e(f"v_add_u32 v{vOoff}, s{sT0}, v{vOoff}")
    e(f"s_movk_i32 s{sT1}, 1792")
    e(f"v_mul_lo_u32 v{vZo}, v{vT2}, s{sT1}")
    e(f"v_lshl_add_u32 v{vZo}, v{vT0}, 4, v{vZo}")
    e(f"s_and_b32 s{sT0}, s{sHead}, 7")
    e(f"s_mul_i32 s{sT0}, s{sT0}, 224")
    e(f"v_add_u32 v{vZo}, s{sT0}, v{vZo}")
    e(f"s_lshl_b32 s{sT0}, s{sHead}, 20")
    srd(e, SK, 40, 41, f"s{sT0}", 0x100000)
    srd(e, SV, 42, 43, f"s{sT0}", 0x100000)
    e(f"s_lshl_b32 s{sT0}, s{sHead}, 9")
    e(f"s_add_u32 s{SW}, s44, s{sT0}")
    e(f"s_addc_u32 s{SW+1}, s45, 0")
    e(f"s_sub_u32 s{SW+2}, {448*8192}, s{sT0}")
    e(f"s_mov_b32 s{SW+3}, 0x20000")
    srd(e, SO, 46, 47, WS_O, 2048 * 8192)
    srd(e, SI, 60, 61, 0, 448 * 3584)
    e(f"s_mov_b32 s{sT0}, {WS_Z1}")
    e(f"s_cmp_ge_u32 s{sHead}, 8")
    e(f"s_cselect_b32 s{sT0}, {WS_Z2}, s{sT0}")
    srd(e, SZ, 46, 47, f"s{sT0}", 2048 * 1792)
    e(f"s_lshl_b32 s{sWB}, s{sWave}, 12")
    e(f"s_mul_i32 s{sT0}, s{sQb}, 28")
    e(f"s_mul_i32 s{sT1}, s{sWave}, 7")
    e(f"s_add_u32 s{sT0}, s{sT0}, s{sT1}")
    e(f"v_lshlrev_b32 v42, 13, v{vT0}")
    e(f"v_lshl_add_u32 v42, v{vT1}, 4, v42")
    e(f"s_lshl_b32 s{sT1}, s{sT0}, 13")
    for i in range(4):
        e(f"buffer_load_dwordx4 v[{192+4*i}:{195+4*i}], v42, s[{SW}:{SW+3}], s{sT1} offen")
        e(f"s_add_u32 s{sT1}, s{sT1}, 16384")
    e(f"v_lshrrev_b32 v42, 4, v{vLane}")
    e(f"s_movk_i32 s{sT1}, 3584")
    e(f"v_mul_lo_u32 v42, v42, s{sT1}")
    e(f"v_and_b32 v43, 15, v{vLane}")
    e(f"v_lshl_add_u32 v42, v43, 4, v42")
    e(f"s_mul_i32 s{sT1}, s{sT0}, 3584")
    e(f"s_mul_i32 s{sG1}, s{sHead}, 224")
    e(f"s_add_u32 s{sT1}, s{sT1}, s{sG1}")
    for i in range(2):
        e(f"buffer_load_dwordx4 v[{208+4*i}:{211+4*i}], v42, s[{SI}:{SI+3}], s{sT1} offen")
        e(f"s_add_u32 s{sT1}, s{sT1}, {4*3584}")
    e(f"v_lshrrev_b32 v42, 4, v{vLane}")
    e(f"v_and_b32 v43, 15, v{vLane}")
    e(f"s_lshl_b32 s{sT0}, s{sWave}, 4")
    e(f"s_movk_i32 s{sT1}, 3584")
    e(f"s_mul_i32 s{sG1}, s{sHead}, 224")
    for t in range(4):
        e(f"v_add_u32 v{vT2}, {4*t}, v42")
        e(f"v_add_u32 v{vT2}, s{sT0}, v{vT2}")
        e(f"v_and_b32 v{vT3}, 3, v{vT2}")
        e(f"v_lshlrev_b32 v{vT3}, 2, v{vT3}")
        e(f"v_xor_b32 v{vT3}, v{vT3}, v43")
        e(f"v_lshlrev_b32 v{vT3}, 4, v{vT3}")
        e(f"v_mul_lo_u32 v{vT2}, v{vT2}, s{sT1}")
        e(f"v_add3_u32 v{vId+t}, v{vT2}, v{vT3}, s{sG1}")

    def dma(srd_, voff, soff, ldsbase):
        out = []
        for t in range(4):
            out.append((f"s_add_u32 m0, s{sWB}, {ldsbase + t*1024}",
                        f"buffer_load_dwordx4 v{voff+t}, s[{srd_}:{srd_+3}], {soff} offen lds"))
        return out

    def emit_dma(lst):
        for m, l in lst:
            e(m)
            e("s_nop 0")
            e(l)

    cslot = lambda c: (c + 3) % 4

    def chunk_dma(c):
        if c <= 6:
            return [f"s_mov_b32 s{sWoff}, {c*64*3584}"], dma(SI, vId, f"s{sWoff}", VRING + cslot(c) * 16384)
        if c <= 20:
            return [f"s_mov_b32 s{sWoff}, {(c-7)*262144}"], dma(SW, vWd, f"s{sWoff}", VRING + cslot(c) * 16384)
        if c <= 23:
            return [f"s_mov_b32 s{sVoff}, {(c-21)*16384}"], dma(SV, vVd, f"s{sVoff}", VRING + cslot(c) * 16384)
        return [], []

    vq = []
    for c in range(2):
        su, dl = chunk_dma(c)
        for s_ in su: e(s_)
        emit_dma(dl)
        vq += [f"c{c}"] * 4

    e(f"s_lshl_b32 s{sT0}, s{sWave}, 3")
    for t in range(4):
        e(f"v_add_u32 v{vT2}, {2*t}, v{vT0}")
        e(f"v_add_u32 v{vT2}, s{sT0}, v{vT2}")
        e(f"v_and_b32 v{vT3}, 15, v{vT2}")
        e(f"v_xor_b32 v{vT3}, v{vT3}, v{vT1}")
        e(f"v_lshlrev_b32 v{vT3}, 4, v{vT3}")
        e(f"v_lshl_add_u32 v{vKd+t}, v{vT2}, 9, v{vT3}")
        e(f"v_and_b32 v{vT3}, 3, v{vT2}")
        e(f"v_lshlrev_b32 v{vT3}, 2, v{vT3}")
        e(f"v_xor_b32 v{vT3}, v{vT3}, v{vT1}")
        e(f"v_lshlrev_b32 v{vT3}, 4, v{vT3}")
        e(f"v_lshl_add_u32 v{vVd+t}, v{vT2}, 9, v{vT3}")
        e(f"v_lshl_add_u32 v{vWd+t}, v{vT2}, 13, v{vT3}")
    for i in range(8):
        e(f"v_add_u32 v{vT2}, {2*i}, v{vT0}")
        e(f"v_and_b32 v{vT3}, 15, v{vT1}")
        e(f"v_xor_b32 v{vT2}, v{vT2}, v{vT3}")
        e(f"v_lshlrev_b32 v{vT2}, 4, v{vT2}")
        e(f"v_lshl_add_u32 v{vKa+i}, v{vT1}, 9, v{vT2}")
    vR, vG, vCq = 42, 43, 44
    e(f"v_bfe_u32 v{vR}, v{vLane}, 2, 2")
    e(f"v_bfe_u32 v{vG}, v{vLane}, 4, 1")
    e(f"v_and_b32 v{vCq}, 3, v{vLane}")
    for d in range(4):
        e(f"v_lshrrev_b32 v{vT2}, 1, v{vCq}")
        e(f"v_lshl_add_u32 v{vT2}, v{vG}, 1, v{vT2}")
        e(f"v_add_u32 v{vT2}, {4*d}, v{vT2}")
        e(f"v_lshlrev_b32 v{vT3}, 2, v{vR}")
        e(f"v_xor_b32 v{vT2}, v{vT2}, v{vT3}")
        e(f"v_lshlrev_b32 v{vT2}, 4, v{vT2}")
        e(f"v_and_b32 v{vT3}, 1, v{vCq}")
        e(f"v_lshl_add_u32 v{vT2}, v{vT3}, 3, v{vT2}")
        e(f"v_lshl_add_u32 v{vT3}, v{vT0}, 3, v{vR}")
        e(f"v_lshl_add_u32 v45, v{vT3}, 8, v{vT2}")
        e(f"v_add_u32 v{vIa+d}, {VRING}, v45")
        e(f"v_and_b32 v{vT2}, 1, v{vCq}")
        e(f"v_lshl_add_u32 v{vT2}, v{vG}, 1, v{vT2}")
        e(f"v_add_u32 v{vT2}, {4*d}, v{vT2}")
        e(f"v_lshlrev_b32 v{vT3}, 2, v{vR}")
        e(f"v_xor_b32 v{vT2}, v{vT2}, v{vT3}")
        e(f"v_lshlrev_b32 v{vT2}, 4, v{vT2}")
        e(f"v_lshrrev_b32 v{vT3}, 1, v{vCq}")
        e(f"v_lshl_add_u32 v{vT2}, v{vT3}, 3, v{vT2}")
        e(f"v_lshl_add_u32 v{vT3}, v{vT0}, 3, v{vR}")
        e(f"v_lshl_add_u32 v45, v{vT3}, 9, v{vT2}")
        e(f"v_add_u32 v{vWa+d}, {VRING}, v45")
        e(f"v_lshl_add_u32 v{vT3}, v{vT0}, 2, v{vR}")
        e(f"v_lshl_add_u32 v45, v{vT3}, 9, v{vT2}")
        e(f"v_add_u32 v{vVa+d}, {VRING}, v45")

    vSum, vSq, vS2, vQ2 = 160, 161, 162, 163
    vTP = 168
    e(f"s_mov_b32 s{sT0}, 0x3f803f80")
    e(f"v_mov_b32 v{vOne}, s{sT0}")
    for r in (vSum, vSq, vS2, vQ2):
        e(f"v_mov_b32 v{r}, 0")
    st()
    e("s_waitcnt vmcnt(14)")
    st()
    pend = []
    for c in (2, 3):
        su, dl = chunk_dma(c)
        pend += [(x_, None, None) for x_ in su] + [(m_, l_, f"c{c}") for m_, l_ in dl]
    for i in range(0, 112, 2):
        e(f"v_dot2_f32_bf16 v{vSum}, v{vX+i}, v{vOne}, v{vSum}")
        e(f"v_dot2_f32_bf16 v{vSq}, v{vX+i}, v{vX+i}, v{vSq}")
        e(f"v_dot2_f32_bf16 v{vS2}, v{vX+i+1}, v{vOne}, v{vS2}")
        e(f"v_dot2_f32_bf16 v{vQ2}, v{vX+i+1}, v{vX+i+1}, v{vQ2}")
        if pend and (i // 2) % 5 == 4:
            m_, l_, tg = pend.pop(0)
            e(m_)
            if l_:
                e("s_nop 0")
                e(l_)
                vq.append(tg)
    assert not pend
    e("s_nop 3")
    e(f"v_add_f32 v{vSum}, v{vSum}, v{vS2}")
    e(f"v_add_f32 v{vSq}, v{vSq}, v{vQ2}")
    e(f"v_mov_b32 v{vT2}, v{vSum}")
    e(f"v_mov_b32 v{vT3}, v{vSq}")
    e("s_nop 1")
    e(f"v_permlane32_swap_b32 v{vT2}, v{vSum}")
    e(f"v_permlane32_swap_b32 v{vT3}, v{vSq}")
    e("s_nop 1")
    e(f"v_add_f32 v{vSum}, v{vSum}, v{vT2}")
    e(f"v_add_f32 v{vSq}, v{vSq}, v{vT3}")
    ln_stats(e, vSum, vSq, vT2, vT3, 448)
    kd = []
    for j in range(4):
        kd.append((f"s_mov_b32 s{sKoff}, {j*16384}", None))
        kd += dma(SK, vKd, f"s{sKoff}", j * 16384)
    for g4 in range(28):
        xs = [vX + 4 * g4 + i for i in range(4)]
        ts = [vTP + 2 * i for i in range(4)]
        for x, t in zip(xs, ts): e(f"v_lshlrev_b32 v{t}, 16, v{x}")
        for x, t in zip(xs, ts): e(f"v_and_b32 v{t+1}, s{sMask}, v{x}")
        for x, t in zip(xs, ts): e(f"v_sub_f32 v{t}, v{t}, v{vSum}")
        for x, t in zip(xs, ts): e(f"v_sub_f32 v{t+1}, v{t+1}, v{vSum}")
        for x, t in zip(xs, ts): e(f"v_cvt_pk_bf16_f32 v{x}, v{t}, v{t+1}")
        for x, t in zip(xs, ts): e(f"v_lshlrev_b32 v{t}, 16, v{x}")
        for x, t in zip(xs, ts): e(f"v_and_b32 v{t+1}, s{sMask}, v{x}")
        for x, t in zip(xs, ts): e(f"v_mul_f32 v{t}, v{t}, v{vSq}")
        for x, t in zip(xs, ts): e(f"v_mul_f32 v{t+1}, v{t+1}, v{vSq}")
        for x, t in zip(xs, ts): e(f"v_cvt_pk_bf16_f32 v{x}, v{t}, v{t+1}")
        for i, x in enumerate(xs): e(f"v_accvgpr_write_b32 a{aX+4*g4+i}, v{x}")
    st()

    def c_reads(c, fbase):
        out = []
        if c <= 6:
            for ks in range(4):
                for bn in range(4):
                    f = ks * 4 + bn
                    for s_ in range(2):
                        off = cslot(c) * 16384 + (16 * ks + 4 * s_) * 256
                        d = fbase + 4 * f + 2 * s_
                        out.append((f"ds_read_b64_tr_b16 v[{d}:{d+1}], v{vIa + bn} offset:{off}", regs(d, 2)))
        elif c <= 20:
            for m in range(2):
                for db in range(8):
                    f = m * 8 + db
                    for s_ in range(2):
                        off = cslot(c) * 16384 + (16 * m + 4 * s_) * 512 + (db >> 2) * 256
                        d = fbase + 4 * f + 2 * s_
                        out.append((f"ds_read_b64_tr_b16 v[{d}:{d+1}], v{vWa + (db & 3)} offset:{off}", regs(d, 2)))
        return out

    def c_mfmas(c, fbase):
        out = []
        if c <= 6:
            for ks in range(4):
                for bn in range(4):
                    f = ks * 4 + bn
                    kk = 4 * c + ks
                    z = vZ[bn]
                    cc = f"v[{z}:{z+15}]" if kk else "0"
                    out.append(f"v_mfma_f32_32x32x16_bf16 v[{z}:{z+15}], v[{fbase+4*f}:{fbase+4*f+3}], a[{aX+4*kk}:{aX+4*kk+3}], {cc}")
        else:
            ci = c - 7
            for m in range(2):
                for db in range(8):
                    f = m * 8 + db
                    kk = 2 * ci + m
                    cc = f"a[{aO+16*db}:{aO+16*db+15}]" if kk else "0"
                    out.append(f"v_mfma_f32_32x32x16_bf16 a[{aO+16*db}:{aO+16*db+15}], v[{fbase+4*f}:{fbase+4*f+3}], a[{aX+4*kk}:{aX+4*kk+3}], {cc}")
        return out

    c1 = -2.0 * LOG2E * 0.7978845608028654
    c2 = c1 * 0.044715
    gel = [f"s_mov_b32 s{sG1}, {f32hex(c1)}", f"s_mov_b32 s{sG2}, {f32hex(c2)}", f"v_mov_b32 v{vC1}, s{sG1}"]
    tt = 96
    osets = [232, 236]
    k = 0
    nzstores = 0
    for bn in range(4):
        for gp in range(2):
            if bn == 3 and gp == 1:
                continue
            s8 = vZ[bn] + 8 * gp
            o = osets[k % 2]
            k += 1
            for i in range(4): gel.append(f"v_cvt_pk_bf16_f32 v{o+i}, v{s8+2*i}, v{s8+2*i+1}")
            for i in range(4):
                gel.append(f"v_lshlrev_b32 v{s8+2*i}, 16, v{o+i}")
                gel.append(f"v_and_b32 v{s8+2*i+1}, s{sMask}, v{o+i}")
            for i in range(8): gel.append(f"v_mul_f32 v{tt+i}, v{s8+i}, v{s8+i}")
            for i in range(8): gel.append(f"v_fma_f32 v{tt+i}, v{tt+i}, s{sG2}, v{vC1}")
            for i in range(8): gel.append(f"v_mul_f32 v{tt+i}, v{tt+i}, v{s8+i}")
            for i in range(8): gel.append(f"v_exp_f32 v{tt+i}, v{tt+i}")
            for i in range(8): gel.append(f"v_add_f32 v{tt+i}, 1.0, v{tt+i}")
            for i in range(8): gel.append(f"v_rcp_f32 v{tt+i}, v{tt+i}")
            for i in range(8): gel.append(f"v_mul_f32 v{s8+i}, v{s8+i}, v{tt+i}")
            for i in range(4): gel.append(f"v_cvt_pk_bf16_f32 v{o+i}, v{s8+2*i}, v{s8+2*i+1}")
            gel.append("s_nop 1")
            gel.append(f"v_permlane32_swap_b32 v{o}, v{o+2}")
            gel.append(f"v_permlane32_swap_b32 v{o+1}, v{o+3}")
            gel.append("s_nop 0")
            gel.append(("ST", f"buffer_store_dwordx4 v[{o}:{o+3}], v{vZo}, s[{SZ}:{SZ+3}], 0 offen offset:{(32*bn+16*gp)*2} sc0 sc1"))
            nzstores += 1

    fb = [vKf, vVf]

    def wait_chunk(c):
        tag = f"c{c}"
        last = max(i for i, t in enumerate(vq) if t == tag)
        n = len(vq) - 1 - last
        return n

    e(f"s_waitcnt vmcnt({wait_chunk(0)})")
    e("s_barrier")
    for ins, d in c_reads(0, fb[0]):
        a.lds_op(ins, d)
    for c in range(21):
        n = wait_chunk(c + 1) if c + 1 <= 20 else 63
        e(f"s_waitcnt vmcnt({min(n,63)}) lgkmcnt(0)")
        a.lds_drained()
        e("s_barrier")
        su, dl = chunk_dma(c + 4)
        for s_ in su: e(s_)
        rd = c_reads(c + 1, fb[(c + 1) % 2]) if c + 1 <= 20 else []
        ms = c_mfmas(c, fb[c % 2])
        for gi, mi in enumerate(ms):
            e(mi)
            for _ in range(3):
                if rd:
                    ins, d = rd.pop(0)
                    a.lds_op(ins, d)
            if gi >= 2 and gi % 2 == 0 and dl:
                m0i, ld = dl.pop(0)
                e(m0i)
                e("s_nop 0")
                e(ld)
                vq.append(f"c{c+4}")
            if c >= 8 and gi in (11, 13, 15) and kd:
                m0i, ld = kd.pop(0)
                e(m0i)
                if ld is None:
                    m0i, ld = kd.pop(0)
                    e(m0i)
                e("s_nop 0")
                e(ld)
                vq.append("k")
            if c >= 8:
                for _ in range(2 if gi < 11 else 5):
                    if gel:
                        g_ = gel.pop(0)
                        if isinstance(g_, tuple):
                            e(g_[1])
                            vq.append("z")
                        else:
                            e(g_)
        assert not rd and not dl
    assert not gel, len(gel)
    assert not kd
    st()
    e("s_nop 15")
    e("s_nop 7")
    tq = 48
    for db in range(8):
        for i in range(16): e(f"v_accvgpr_read_b32 v{tq+i}, a{aO+16*db+i}")
        for i in range(16): e(f"v_mul_f32 v{tq+i}, s{sC}, v{tq+i}")
        for i in range(8): e(f"v_cvt_pk_bf16_f32 v{tq+16+i}, v{tq+2*i}, v{tq+2*i+1}")
        for i in range(8): e(f"v_accvgpr_write_b32 a{aQ+8*db+i}, v{tq+16+i}")
        for i in range(16): e(f"v_accvgpr_write_b32 a{aO+16*db+i}, 0")

    def k_reads(slot):
        out = []
        for ks in range(16):
            d = vKf + 4 * ks
            off = slot * 16384 + (ks >> 3) * 256
            out.append((f"ds_read_b128 v[{d}:{d+3}], v{vKa + (ks & 7)} offset:{off}", regs(d, 4)))
        return out

    def v_reads(slot):
        out = []
        for m in range(2):
            for db in range(8):
                f = m * 8 + db
                for s_ in range(2):
                    off = slot * 16384 + (16 * m + 8 * s_) * 512 + (db >> 2) * 256
                    d = vVf + 4 * f + 2 * s_
                    out.append((f"ds_read_b64_tr_b16 v[{d}:{d+1}], v{vVa + (db & 3)} offset:{off}", regs(d, 2)))
        return out

    def qk_mfma(S, ks, c0):
        c = f"v[{S}:{S+15}]" if ks else c0
        return f"v_mfma_f32_32x32x16_bf16 v[{S}:{S+15}], v[{vKf+4*ks}:{vKf+4*ks+3}], a[{aQ+4*ks}:{aQ+4*ks+3}], {c}"

    def max_ops(S):
        ops = [f"v_max3_f32 v{vMax}, v{S}, v{S+1}, v{S+2}"]
        for i in range(3, 15, 2):
            ops.append(f"v_max3_f32 v{vMax}, v{vMax}, v{S+i}, v{S+i+1}")
        ops.append(f"v_max_f32 v{vMax}, v{vMax}, v{S+15}")
        return ops

    lastk = max(i for i, t in enumerate(vq) if t == "k")
    e(f"s_waitcnt vmcnt({len(vq) - 1 - lastk})")
    e("s_barrier")
    for ins, d in k_reads(0):
        a.lds_op(ins, d)
    for ks in range(16):
        a.lds_need(regs(vKf + 4 * ks, 4))
        e(qk_mfma(vS[0], ks, "0"))
    lastz = max(i for i, t in enumerate(vq) if t in ("z", "c21"))
    e(f"s_waitcnt vmcnt({len(vq) - 1 - lastz})")
    e("s_barrier")
    e(f"s_mov_b32 s{sKoff}, {4*16384}")
    emit_dma(dma(SK, vKd, f"s{sKoff}", 0))
    e(f"s_cmp_lt_u32 s{sHead}, 8")
    e("s_cbranch_scc1 L_attn_nosig")
    e(f"s_cmp_lg_u32 s{sWave}, 0")
    e("s_cbranch_scc1 L_attn_nosig")
    e(f"v_mov_b32 v{vT2}, 1")
    e(f"s_lshl_b32 s{sT0}, s{sQb}, 2")
    e(f"v_mov_b32 v{vT3}, s{sT0}")
    e("s_mov_b64 s[64:65], exec")
    e("s_mov_b64 exec, 1")
    e(f"global_atomic_add v{vT3}, v{vT2}, s[62:63] sc1")
    e("s_mov_b64 exec, s[64:65]")
    a.label("L_attn_nosig")
    for ins, d in k_reads(1):
        a.lds_op(ins, d)
    e("s_nop 7")
    for o in max_ops(vS[0]):
        e(o)
    e(f"v_mov_b32 v{vT2}, v{vMax}")
    e("s_nop 1")
    e(f"v_permlane32_swap_b32 v{vT2}, v{vMax}")
    e("s_nop 1")
    e(f"v_max_f32 v{vM}, v{vT2}, v{vMax}")
    for i in range(16):
        e(f"v_sub_f32 v{vS[0]+i}, v{vS[0]+i}, v{vM}")
        e(f"v_sub_f32 v{vNM+i}, 0, v{vM}")
    e(f"v_mov_b32 v{vL}, 0")
    e(f"s_mov_b32 s{sKoff}, {5*16384}")
    e(f"s_mov_b32 s{sVoff}, {3*16384}")
    e(f"s_mov_b32 s{sTrip}, 0")
    st()
    st.cyc()

    a.label("L_attn_loop")
    for u in range(4):
        Sc, Sn = vS[u % 2], vS[(u + 1) % 2]
        e("s_waitcnt vmcnt(15) lgkmcnt(0)")
        a.lds_drained()
        e("s_barrier")
        vr_ = v_reads(u)
        for g in range(16):
            e(qk_mfma(Sn, g, f"v[{vNM}:{vNM+15}]"))
            for k in range(2):
                ins, d = vr_.pop(0)
                a.lds_op(ins, d)
            e(f"v_exp_f32 v{Sc+g}, v{Sc+g}")
            if g >= 2 and g % 2 == 0:
                k = (g - 2) // 2
                e(f"v_cvt_pk_bf16_f32 v{vP+k}, v{Sc+2*k}, v{Sc+2*k+1}")
        kr = k_reads((u + 2) % 4)
        dl = dma(SV, vVd, f"s{sVoff}", VRING + ((u + 3) % 4) * 16384) + dma(SK, vKd, f"s{sKoff}", ((u + 1) % 4) * 16384)
        mx = max_ops(Sn)
        pend_ld = None
        for g in range(16):
            m, db = g // 8, g % 8
            f = g
            a.lds_need(regs(vVf + 4 * f, 4))
            e(f"v_mfma_f32_32x32x16_bf16 a[{aO+16*db}:{aO+16*db+15}], v[{vVf+4*f}:{vVf+4*f+3}], v[{vP+4*m}:{vP+4*m+3}], a[{aO+16*db}:{aO+16*db+15}]")
            if pend_ld:
                e(pend_ld)
                pend_ld = None
            if g == 0:
                e(f"v_cvt_pk_bf16_f32 v{vP+7}, v{Sc+14}, v{Sc+15}")
            if g < 8:
                for k in range(2):
                    ins, d = kr.pop(0)
                    a.lds_op(ins, d)
            if use_dot:
                if g % 2 == 1:
                    e(f"v_dot2_f32_bf16 v{vL}, v{vP+g//2}, v{vOne}, v{vL}")
            else:
                e(f"v_add_f32 v{vL}, v{vL}, v{Sc+g}")
            if 5 <= g < 13:
                e(mx.pop(0))
            if g >= 7 and dl:
                m0i, ld = dl.pop(0)
                e(m0i)
                pend_ld = ld
            if g == 13:
                e(f"v_cmp_lt_f32 vcc, s{sThr}, v{vMax}")
        if pend_ld:
            e(pend_ld)
        assert not dl and not mx and not kr
        e(f"s_add_u32 s{sKoff}, s{sKoff}, 16384")
        e(f"s_add_u32 s{sVoff}, s{sVoff}, 16384")
        e(f"s_cbranch_vccnz L_attn_rare{u}")
        a.label(f"L_attn_back{u}")
    e(f"s_add_u32 s{sTrip}, s{sTrip}, 1")
    e(f"s_cmp_le_u32 s{sTrip}, 4")
    e("s_cbranch_scc1 L_attn_hook")
    e(f"s_cmp_lt_u32 s{sTrip}, 15")
    e("s_cbranch_scc1 L_attn_loop")
    e(f"s_cmp_eq_u32 s{sTrip}, 15")
    e("s_cbranch_scc1 L_attn_hookB")
    st.cyc()
    st()
    TAIL(a, e, st, locals())
    st.dump()
    a.label("L_attn_end")
    e("s_endpgm")

    hP, hA, hZ, hO = 232, 233, 234, 248
    a.label("L_attn_hookB")
    e(f"v_mov_b32 v{hA}, 64")
    e(f"global_load_dword v{hP}, v{hA}, s[62:63] sc0 sc1")
    e("s_load_dwordx2 s[40:41], s[0:1], 32")
    e("s_load_dwordx2 s[42:43], s[0:1], 56")
    e("s_load_dwordx2 s[44:45], s[0:1], 64")
    vOd = 236
    e(f"s_lshl_b32 s{sT0}, s{sWave}, 2")
    for t in range(4):
        e(f"v_xor_b32 v{vOd+t}, {t << 2}, v{vLane}")
        e(f"v_lshlrev_b32 v{vOd+t}, 4, v{vOd+t}")
        e(f"s_add_u32 s{sT1}, s{sT0}, {t}")
        e(f"s_mul_i32 s{sT1}, s{sT1}, 896")
        e(f"v_add_u32 v{vOd+t}, s{sT1}, v{vOd+t}")
    e("s_waitcnt lgkmcnt(0)")
    e(f"s_mul_i32 s{sT0}, s{sHead}, {256*896}")
    e(f"s_add_u32 s{SX}, s40, s{sT0}")
    e(f"s_addc_u32 s{SX+1}, s41, 0")
    e(f"s_sub_u32 s{SX+2}, {4096*896}, s{sT0}")
    e(f"s_mov_b32 s{SX+3}, 0x20000")
    for c in range(2):
        e(f"s_mov_b32 s{sT0}, {c*14336}")
        for t in range(4):
            e(f"s_add_u32 m0, s{sWB}, {98304 + ((c + 2) % 4)*16384 + t*1024}")
            e("s_nop 0")
            e(f"buffer_load_dwordx4 v{vOd+t}, s[{SX}:{SX+3}], s{sT0} offen lds")
    srd(e, SI, 42, 43, 0, 2048 * 4096)
    e(f"s_bfe_u32 s{sT0}, s2, 0x20001")
    e(f"s_lshl_b32 s{sT0}, s{sT0}, 21")
    e(f"s_lshr_b32 s{sT1}, s2, 3")
    e(f"s_lshl_b32 s{sT1}, s{sT1}, 16")
    e(f"s_add_u32 s{sT0}, s{sT0}, s{sT1}")
    e(f"v_lshlrev_b32 v240, 4, v0")
    for i in range(16):
        e(f"buffer_load_dwordx4 v[244:247], v240, s[{SI}:{SI+3}], s{sT0} offen")
        e(f"s_add_u32 s{sT0}, s{sT0}, 4096")
    e("s_branch L_attn_loop")
    a.label("L_attn_hook")
    e(f"s_cmp_eq_u32 s{sTrip}, 2")
    e("s_cbranch_scc1 L_attn_hook2")
    e(f"s_cmp_eq_u32 s{sTrip}, 3")
    e("s_cbranch_scc1 L_attn_hook3")
    e(f"s_cmp_eq_u32 s{sTrip}, 4")
    e("s_cbranch_scc1 L_attn_hook4")
    e(f"s_lshl_b32 s{sT0}, s{sQb}, 2")
    e(f"v_mov_b32 v{hA}, s{sT0}")
    e(f"global_load_dword v{hP}, v{hA}, s[62:63] sc0 sc1")
    e("s_branch L_attn_loop")
    a.label("L_attn_hook2")
    e(f"v_readfirstlane_b32 s{sT1}, v{hP}")
    e(f"s_cmp_ge_u32 s{sT1}, 8")
    e("s_cbranch_scc1 L_attn_h2ok")
    a.label("L_attn_h2poll")
    e("s_sleep 8")
    e(f"global_load_dword v{hP}, v{hA}, s[62:63] sc0 sc1")
    e("s_waitcnt vmcnt(0)")
    e(f"v_readfirstlane_b32 s{sT1}, v{hP}")
    e(f"s_cmp_lt_u32 s{sT1}, 8")
    e("s_cbranch_scc1 L_attn_h2poll")
    a.label("L_attn_h2ok")
    srd(e, SX, 46, 47, WS_Z2, 2048 * 1792)
    e(f"v_lshrrev_b32 v{hO}, 5, v0")
    e(f"v_and_b32 v{hA}, 31, v0")
    e(f"s_lshl_b32 s{sT0}, s2, 3")
    e(f"v_add_u32 v{hO}, s{sT0}, v{hO}")
    e(f"s_movk_i32 s{sT0}, 1792")
    e(f"v_mul_lo_u32 v{hO}, v{hO}, s{sT0}")
    e(f"v_lshl_add_u32 v{hO}, v{hA}, 2, v{hO}")
    for t in range(14):
        e(f"buffer_load_dword v{hZ+t}, v{hO}, s[{SX}:{SX+3}], 0 offen offset:{128*t} sc0 sc1")
    e("s_branch L_attn_loop")
    a.label("L_attn_hook3")
    h0, h1, h2, h3, h4, h5 = 249, 250, 251, 252, 253, 254
    srd(e, SX, 46, 47, WS_Z2N, 16 * 2048 * 128)
    e(f"v_mov_b32 v{h0}, 0")
    e(f"v_mov_b32 v{h1}, 0")
    for t in range(14):
        e(f"v_dot2_f32_bf16 v{h0}, v{hZ+t}, v{vOne}, v{h0}")
        e(f"v_dot2_f32_bf16 v{h1}, v{hZ+t}, v{hZ+t}, v{h1}")
    e("s_nop 3")
    for x in (1, 2, 4, 8, 16):
        e(f"ds_swizzle_b32 v{h2}, v{h0} offset:{(x << 10) | 0x1f}")
        e(f"ds_swizzle_b32 v{h3}, v{h1} offset:{(x << 10) | 0x1f}")
        e("s_waitcnt lgkmcnt(0)")
        e(f"v_add_f32 v{h0}, v{h0}, v{h2}")
        e(f"v_add_f32 v{h1}, v{h1}, v{h3}")
    ln_stats(e, h0, h1, h2, h3, 896)
    e(f"v_lshrrev_b32 v{hO}, 5, v0")
    e(f"s_lshl_b32 s{sT0}, s2, 3")
    e(f"v_add_u32 v{hO}, s{sT0}, v{hO}")
    e(f"v_lshlrev_b32 v{hO}, 7, v{hO}")
    e(f"v_and_b32 v{hA}, 31, v0")
    e(f"s_movk_i32 s{sT0}, 2341")
    for t0_ in range(0, 14, 2):
        ps = [(hZ + t0_, h2, h3), (hZ + t0_ + 1, h4, h5)]
        for z, p, q in ps: e(f"v_lshlrev_b32 v{p}, 16, v{z}")
        for z, p, q in ps: e(f"v_and_b32 v{q}, s{sMask}, v{z}")
        for z, p, q in ps: e(f"v_sub_f32 v{p}, v{p}, v{h0}")
        for z, p, q in ps: e(f"v_sub_f32 v{q}, v{q}, v{h0}")
        for z, p, q in ps: e(f"v_cvt_pk_bf16_f32 v{p}, v{p}, v{q}")
        for z, p, q in ps: e(f"v_and_b32 v{q}, s{sMask}, v{p}")
        for z, p, q in ps: e(f"v_lshlrev_b32 v{p}, 16, v{p}")
        for z, p, q in ps: e(f"v_mul_f32 v{p}, v{p}, v{h1}")
        for z, p, q in ps: e(f"v_mul_f32 v{q}, v{q}, v{h1}")
        for z, p, q in ps: e(f"v_cvt_pk_bf16_f32 v{z}, v{p}, v{q}")
        for k_, (z, p, q) in enumerate(ps):
            e(f"v_add_u32 v{p}, {32*(t0_+k_)}, v{hA}")
            e(f"v_mul_u32_u24 v{q}, s{sT0}, v{p}")
            e(f"v_lshrrev_b32 v{q}, 16, v{q}")
            e(f"v_mul_u32_u24 v255, 28, v{q}")
            e(f"v_sub_u32 v{p}, v{p}, v255")
            e(f"v_lshlrev_b32 v{q}, 18, v{q}")
            e(f"v_lshl_add_u32 v{p}, v{p}, 2, v{q}")
            e(f"v_add_u32 v{p}, v{p}, v{hO}")
            e(f"buffer_store_dword v{z}, v{p}, s[{SX}:{SX+3}], 0 offen sc0 sc1")
    e("s_branch L_attn_loop")
    a.label("L_attn_hook4")
    e(f"s_cmp_lg_u32 s{sWave}, 0")
    e("s_cbranch_scc1 L_attn_loop")
    e(f"v_mov_b32 v{hP}, 1")
    e(f"v_mov_b32 v{hA}, 64")
    e("s_mov_b64 s[64:65], exec")
    e("s_mov_b64 exec, 1")
    e(f"global_atomic_add v{hA}, v{hP}, s[62:63] sc1")
    e("s_mov_b64 exec, s[64:65]")
    e("s_branch L_attn_loop")

    for u in range(4):
        Sn = vS[(u + 1) % 2]
        a.label(f"L_attn_rare{u}")
        if u == 3:
            e(f"s_cmp_eq_u32 s{sTrip}, 15")
            e(f"s_cbranch_scc1 L_attn_back{u}")
        e("s_nop 15")
        e(f"v_mov_b32 v{vT2}, v{vMax}")
        e("s_nop 1")
        e(f"v_permlane32_swap_b32 v{vT2}, v{vMax}")
        e("s_nop 1")
        e(f"v_max3_f32 v{vT2}, v{vT2}, v{vMax}, 0")
        e(f"v_sub_f32 v{vAl}, 0, v{vT2}")
        e(f"v_exp_f32 v{vAl}, v{vAl}")
        for i in range(16):
            e(f"v_sub_f32 v{Sn+i}, v{Sn+i}, v{vT2}")
            e(f"v_sub_f32 v{vNM+i}, v{vNM+i}, v{vT2}")
        e(f"v_mul_f32 v{vL}, v{vL}, v{vAl}")
        tr = [40, 41, 42, 43]
        for r in range(0, 128, 4):
            for i in range(4):
                e(f"v_accvgpr_read_b32 v{tr[i]}, a{aO+r+i}")
            for i in range(4):
                e(f"v_mul_f32 v{tr[i]}, v{tr[i]}, v{vAl}")
            for i in range(4):
                e(f"v_accvgpr_write_b32 a{aO+r+i}, v{tr[i]}")
        e("s_nop 1")
        e(f"s_branch L_attn_back{u}")
    return a.text(), kernel_desc(name, 256 + 240, 256, 100)


def TAIL(a, e, st, L):
    sWave, sHead, sQb, sWB, sT0, sT1, sMask = [L[k] for k in ("sWave", "sHead", "sQb", "sWB", "sT0", "sT1", "sMask")]
    vL, vAl, vT2, vT3, vLane, aO, prefetch = [L[k] for k in ("vL", "vAl", "vT2", "vT3", "vLane", "aO", "prefetch")]
    ORING = 98304
    SWO, SP, SGX, SGW, SZ1, SHM, SB = 16, 8, 12, 4, 20, 48, 52
    sOo, sRow0, sCol0, sRowQ = 28, 29, 30, 31
    vOd = 4
    vOa = 8
    vPo = 12
    vPK = 48
    fbs = [112, 168]
    e("s_waitcnt vmcnt(0)")
    e("s_barrier")
    e(f"v_mov_b32 v{vT2}, v{vL}")
    for t in range(4):
        e(f"v_mov_b32 v{vOd+t}, v{236+t}")
    e(f"v_permlane32_swap_b32 v{vT2}, v{vL}")
    e("s_nop 1")
    e(f"v_add_f32 v{vL}, v{vT2}, v{vL}")
    e(f"v_rcp_f32 v{vAl}, v{vL}")
    vq = ["c0"] * 4 + ["c1"] * 4

    def odma(c):
        out = []
        for t in range(4):
            out.append((f"s_add_u32 m0, s{sWB}, {ORING + ((c + 2) % 4)*16384 + t*1024}",
                        f"buffer_load_dwordx4 v{vOd+t}, s[{SWO}:{SWO+3}], s{sOo} offen lds"))
        return out
    for c in range(2, 4):
        e(f"s_mov_b32 s{sOo}, {c*14336}")
        for m_, l_ in odma(c):
            e(m_)
            e("s_nop 0")
            e(l_)
            vq.append(f"c{c}")
    e(f"v_readfirstlane_b32 s{sT1}, v232")
    e(f"s_cmp_ge_u32 s{sT1}, 256")
    e("s_cbranch_scc1 L_attn_bok")
    a.label("L_attn_bpoll")
    e("s_sleep 8")
    e(f"global_load_dword v232, v233, s[62:63] sc0 sc1")
    e("s_waitcnt vmcnt(0)")
    e(f"v_readfirstlane_b32 s{sT1}, v232")
    e(f"s_cmp_lt_u32 s{sT1}, 256")
    e("s_cbranch_scc1 L_attn_bpoll")
    a.label("L_attn_bok")
    srd(e, SGX, 42, 43, 0, 2048 * 4096)
    srd(e, SZ1, 46, 47, WS_Z1, 2048 * 1792)
    srd(e, SHM, 46, 47, WS_HM, 2048 * 1792)
    srd(e, SB, 44, 45, 0, 4096)
    e(f"s_mul_i32 s{sT0}, s{sHead}, {2048*896}")
    e(f"s_add_u32 s{sT0}, s{sT0}, {WS_SP}")
    srd(e, SP, 46, 47, f"s{sT0}", 2048 * 896)
    e(f"s_lshl_b32 s{sRowQ}, s{sQb}, 7")
    e(f"s_bfe_u32 s{sT0}, s2, 0x20001")
    e(f"s_lshl_b32 s{sT0}, s{sT0}, 2")
    e(f"s_bfe_u32 s{sT1}, s2, 0x20003")
    e(f"s_add_u32 s{sT0}, s{sT0}, s{sT1}")
    e(f"s_lshl_b32 s{sRow0}, s{sT0}, 7")
    e(f"s_and_b32 s{sT0}, s2, 1")
    e(f"s_lshl_b32 s{sT0}, s{sT0}, 3")
    e(f"s_lshr_b32 s{sT1}, s2, 5")
    e(f"s_add_u32 s{sT0}, s{sT0}, s{sT1}")
    e(f"s_mul_i32 s{sCol0}, s{sT0}, 56")
    e(f"s_lshl_b32 s{sT0}, s{sT0}, 18")
    e(f"s_add_u32 s{sT0}, s{sT0}, {WS_Z2N}")
    srd(e, SGW, 46, 47, f"s{sT0}", 2048 * 128)
    e("s_mov_b32 s65, 0")
    e("s_lshr_b32 s66, s2, 3")
    e("s_lshl_b32 s67, s66, 13")
    e("s_lshl_b32 s66, s66, 7")
    fill = []

    def mid():
        for _ in range(24):
            vq.append("g")
        vR, vG, vCq, vH = 42, 43, 44, 45
        e(f"v_bfe_u32 v{vR}, v{vLane}, 2, 2")
        e(f"v_bfe_u32 v{vG}, v{vLane}, 4, 1")
        e(f"v_and_b32 v{vCq}, 3, v{vLane}")
        e(f"v_lshrrev_b32 v{vH}, 5, v{vLane}")
        for d in range(4):
            e(f"v_lshrrev_b32 v{vT2}, 1, v{vCq}")
            e(f"v_lshl_add_u32 v{vT2}, v{vG}, 1, v{vT2}")
            e(f"v_add_u32 v{vT2}, {4*d}, v{vT2}")
            e(f"v_lshlrev_b32 v{vT3}, 2, v{vR}")
            e(f"v_xor_b32 v{vT2}, v{vT2}, v{vT3}")
            e(f"v_lshlrev_b32 v{vT2}, 4, v{vT2}")
            e(f"v_and_b32 v{vT3}, 1, v{vCq}")
            e(f"v_lshl_add_u32 v{vT2}, v{vT3}, 3, v{vT2}")
            e(f"v_lshl_add_u32 v{vT3}, v{vH}, 3, v{vR}")
            e(f"v_lshl_add_u32 v{vT2}, v{vT3}, 10, v{vT2}")
            e(f"v_add_u32 v{vOa+d}, {ORING}, v{vT2}")
        e(f"s_lshl_b32 s{sT0}, s{sQb}, 2")
        e(f"s_add_u32 s{sT0}, s{sT0}, s{sWave}")
        e(f"s_mul_i32 s{sT0}, s{sT0}, 28672")
        e(f"v_lshlrev_b32 v{vPo}, 4, v{vLane}")
        e(f"v_add_u32 v{vPo}, s{sT0}, v{vPo}")
        for db in range(8):
            t = 112 + 16 * (db % 2)
            for i in range(16): e(f"v_accvgpr_read_b32 v{t+i}, a{aO+16*db+i}")
            for i in range(16): e(f"v_mul_f32 v{t+i}, v{t+i}, v{vAl}")
            for i in range(8): e(f"v_cvt_pk_bf16_f32 v{vPK+8*db+i}, v{t+2*i}, v{t+2*i+1}")

        def oreads(c, fb):
            out = []
            for nb in range(14):
                for s_ in range(2):
                    off = ((c + 2) % 4) * 16384 + 4 * s_ * 1024 + (nb >> 2) * 256
                    d = fb + 4 * nb + 2 * s_
                    out.append((f"ds_read_b64_tr_b16 v[{d}:{d+1}], v{vOa + (nb & 3)} offset:{off}", regs(d, 2)))
            return out

        def waitc(c):
            last = max(i for i, t in enumerate(vq) if t == f"c{c}")
            return min(63, len(vq) - 1 - last)
        e(f"s_waitcnt vmcnt({waitc(0)})")
        e("s_barrier")
        for ins, d in oreads(0, fbs[0]):
            a.lds_op(ins, d)
        for c in range(16):
            n = waitc(c + 1) if c + 1 < 16 else 63
            e(f"s_waitcnt vmcnt({n}) lgkmcnt(0)")
            a.lds_drained()
            e("s_barrier")
            dl = []
            if c + 4 < 16:
                e(f"s_mov_b32 s{sOo}, {(c+4)*14336}")
                dl = odma(c + 4)
            rd = oreads(c + 1, fbs[(c + 1) % 2]) if c + 1 < 16 else []
            fb = fbs[c % 2]
            for nb in range(14):
                cc = f"a[{16*nb}:{16*nb+15}]" if c else "0"
                e(f"v_mfma_f32_32x32x16_bf16 a[{16*nb}:{16*nb+15}], v[{fb+4*nb}:{fb+4*nb+3}], v[{vPK+4*c}:{vPK+4*c+3}], {cc}")
                for _ in range(3):
                    if rd:
                        ins, d = rd.pop(0)
                        a.lds_op(ins, d)
                if nb >= 2 and nb % 2 == 0 and dl:
                    m_, l_ = dl.pop(0)
                    e(m_)
                    e("s_nop 0")
                    e(l_)
                    vq.append(f"c{c+4}")
            assert not rd and not dl
        st()
        for nb in range(14):
            t = 176 + 24 * (nb % 2)
            for i in range(16): fill.append(f"v_accvgpr_read_b32 v{t+8+i}, a{16*nb+i}")
            for i in range(8): fill.append(f"v_cvt_pk_bf16_f32 v{t+i}, v{t+8+2*i}, v{t+8+2*i+1}")
            fill.append("s_nop 1")
            for gp in range(2):
                fill.append(f"v_permlane32_swap_b32 v{t+4*gp}, v{t+4*gp+2}")
                fill.append(f"v_permlane32_swap_b32 v{t+4*gp+1}, v{t+4*gp+3}")
            fill.append(f"s_movk_i32 s{sT1}, {nb*2048}")
            for gp in range(2):
                fill.append(f"buffer_store_dwordx4 v[{t+4*gp}:{t+4*gp+3}], v{vPo}, s[{SP}:{SP+3}], s{sT1} offen offset:{gp*1024}")

    g = gemm_core(a, "ag", 128, 64, 4, 1, 2048, 64, 6, SGX, SGW, 4096, 128, sRow0, 65, sWave, 224, 56,
                  fragbase=48, mid_cb=mid, fill=fill, peel=8, nfill=8, rolladdr=True, defer=2, sX0=66, sW0=67, wrap=(0xfff, 0x3ffff))
    assert g.addr_end <= 256
    st()
    vOff, vOffM, vB = g.tmp[1], g.tmp[2], g.tmp[3]
    out_offsets(a, g, sRow0, sCol0, 1792, vOff, sT0)
    t0 = g.tmp[0]
    e(f"v_lshlrev_b32 v{g.tmp[4]}, 1, v{t0}")
    e(f"buffer_load_ushort v{vB}, v{g.tmp[4]}, s[{SB}:{SB+3}], 0 offen")
    e(f"v_lshlrev_b32 v{vOffM}, 30, v{g.vH}")
    e(f"v_add_u32 v{vOffM}, v{vOffM}, v{vOff}")
    f = 48
    for bn in range(2):
        for gp in range(2):
            d = f + 4 * (2 * bn + gp)
            vo = vOffM if (bn == 1 and gp == 1) else vOff
            e(f"buffer_load_dwordx4 v[{d}:{d+3}], v{vo}, s[{SZ1}:{SZ1+3}], 0 offen offset:{(32*bn+16*gp)*2}")
    e("s_waitcnt vmcnt(0)")
    e(f"v_lshlrev_b32 v{vB}, 16, v{vB}")
    w = f + 16
    for bn in range(2):
        acc = g.vAcc + 16 * bn
        for gp in range(2):
            s8 = acc + 8 * gp
            z = f + 4 * (2 * bn + gp)
            for i in range(4):
                e(f"v_cvt_pk_bf16_f32 v{w+i}, v{s8+2*i}, v{s8+2*i+1}")
            e("s_nop 1")
            e(f"v_permlane32_swap_b32 v{w}, v{w+2}")
            e(f"v_permlane32_swap_b32 v{w+1}, v{w+3}")
            for i in range(4):
                e(f"v_lshlrev_b32 v{s8+2*i}, 16, v{w+i}")
                e(f"v_and_b32 v{s8+2*i+1}, s{sMask}, v{w+i}")
            for i in range(8): e(f"v_add_f32 v{s8+i}, v{s8+i}, v{vB}")
            for i in range(4): e(f"v_cvt_pk_bf16_f32 v{w+i}, v{s8+2*i}, v{s8+2*i+1}")
            for i in range(4):
                e(f"v_lshlrev_b32 v{s8+2*i}, 16, v{w+i}")
                e(f"v_and_b32 v{s8+2*i+1}, s{sMask}, v{w+i}")
            for i in range(4):
                e(f"v_lshlrev_b32 v{w+4+2*i}, 16, v{z+i}")
                e(f"v_and_b32 v{w+5+2*i}, s{sMask}, v{z+i}")
            for i in range(8): e(f"v_mul_f32 v{s8+i}, v{s8+i}, v{w+4+i}")
            for i in range(4): e(f"v_cvt_pk_bf16_f32 v{z+i}, v{s8+2*i}, v{s8+2*i+1}")
            vo = vOffM if (bn == 1 and gp == 1) else vOff
            e(f"buffer_store_dwordx4 v[{z}:{z+3}], v{vo}, s[{SHM}:{SHM+3}], 0 offen offset:{(32*bn+16*gp)*2}")
    if prefetch:
        e("s_load_dwordx2 s[44:45], s[0:1], 72")
        e(f"v_lshlrev_b32 v{vT2}, 4, v0")
        e("s_waitcnt lgkmcnt(0)")
        srd(e, 12, 44, 45, 0, 896 * 896)
        e(f"s_mul_i32 s{sT0}, s2, 3136")
        e(f"buffer_load_dwordx4 v[152:155], v{vT2}, s[12:15], s{sT0} offen")
    if st.on:
        e("s_waitcnt vmcnt(0)")
```

```python
from asmlib import *
from gen_attn import f32hex, WS_XN, WS_Z1, WS_Z2, WS_Z2T, WS_O, WS_HM

WS_SP = 0x3000000
WS_S = 0x2800000
WS_Z2N = WS_Z2T


class G:
    pass


def srd(e, s, lo, hi, off, size):
    e(f"s_add_u32 s{s}, s{lo}, {off}")
    e(f"s_addc_u32 s{s+1}, s{hi}, 0")
    e(f"s_mov_b32 s{s+2}, {size}")
    e(f"s_mov_b32 s{s+3}, 0x20000")


def gemm_core(a, pfx, MT, NT, WM, WN, K, KC, NST, SX, SW, xstride, wstride, sRow0, sCol0, sWave,
              vbase, sbase, unroll_all=False, nbn_override=None, sX0=None, sW0=None, acc_agpr=False, fragbase=None, mid_cb=None, fill=None, peel=0, nfill=0, rolladdr=False, defer=0, wrap=None):
    e = a.e
    RM, CN = MT // WM, NT // WN
    nbm, nbn = RM // 32, CN // 32
    if nbn_override:
        nbn = nbn_override
    RBX = KC * 2
    RBW = NT * 2
    XB, WB = MT * RBX, KC * RBW
    STG = XB + WB
    nks = KC // 16
    nX, nW = XB // 4096, WB // 4096
    nst_total = K // KC
    assert STG * NST <= 163840
    sT0, sT1, sXo, sWo, sWBx, sWBw, sTrip, sWm, sWn = [sbase + i for i in range(9)]
    vLane = vbase
    vT0, vT1, vT2, vT3, vR, vG, vCq, vH = [vbase + 1 + i for i in range(8)]
    p = vbase + 9
    vXd = p; p += nX
    vWd = p; p += nW
    nhalf = 2 if (STG * NST > 65536 and not rolladdr) else 1
    vXa = p; p += nks * nhalf
    vWa = p; p += nbn * nhalf
    p = (p + 3) // 4 * 4
    addr_end = p
    if fragbase is not None:
        p = fragbase
    FB = 4 * nbm * nks + 4 * nbn * nks
    vXf = p
    vWf = p + 4 * nbm * nks
    p += 2 * FB
    p = (p + 15) // 16 * 16
    AP = "a" if acc_agpr else "v"
    if acc_agpr:
        vAcc = 0
    else:
        vAcc = p; p += 16 * nbm * nbn
    g = G()
    g.vAcc, g.nbm, g.nbn, g.vend, g.vLane, g.vH = vAcc, nbm, nbn, p, vLane, vH
    g.sWm, g.sWn, g.RM, g.CN = sWm, sWn, RM, CN
    g.tmp = [vT0, vT1, vT2, vT3, vR, vG, vCq]
    g.vfree0 = vXf
    g.vfreeN = vAcc - vXf

    e(f"v_and_b32 v{vLane}, 63, v0")
    e(f"v_lshrrev_b32 v{vH}, 5, v{vLane}")
    if WN == 1:
        e(f"s_mov_b32 s{sWm}, s{sWave}")
        e(f"s_mov_b32 s{sWn}, 0")
    else:
        assert WN == 2
        e(f"s_lshr_b32 s{sWm}, s{sWave}, 1")
        e(f"s_and_b32 s{sWn}, s{sWave}, 1")
    cpr = RBX // 16
    rpi = 64 // cpr
    lc = {4: 2, 8: 3, 16: 4, 32: 5}[cpr]

    def fx(dst, row):
        if cpr == 8:
            e(f"v_bfe_u32 v{dst}, v{row}, 1, 3")
        elif cpr == 16 or cpr == 32:
            e(f"v_and_b32 v{dst}, 15, v{row}")
        else:
            e(f"v_bfe_u32 v{dst}, v{row}, 2, 2")

    e(f"s_mul_i32 s{sT0}, s{sWave}, {nX*rpi}")
    e(f"v_lshrrev_b32 v{vT0}, {lc}, v{vLane}")
    e(f"v_and_b32 v{vT1}, {cpr-1}, v{vLane}")
    e(f"s_mov_b32 s{sT1}, {xstride}")
    for t in range(nX):
        e(f"v_add_u32 v{vT2}, {t*rpi}, v{vT0}")
        e(f"v_add_u32 v{vT2}, s{sT0}, v{vT2}")
        fx(vT3, vT2)
        e(f"v_xor_b32 v{vT3}, v{vT3}, v{vT1}")
        e(f"v_lshlrev_b32 v{vT3}, 4, v{vT3}")
        e(f"v_add_u32 v{vT2}, s{sRow0}, v{vT2}")
        e(f"v_mul_lo_u32 v{vT2}, v{vT2}, s{sT1}")
        e(f"v_add_u32 v{vXd+t}, v{vT2}, v{vT3}")
    cprw = RBW // 16
    rpiw = 64 // cprw
    lcw = {8: 3, 16: 4, 32: 5}[cprw]

    def fw(dst, row):
        if cprw == 8:
            e(f"v_bfe_u32 v{dst}, v{row}, 1, 1")
            e(f"v_lshlrev_b32 v{dst}, 2, v{dst}")
        else:
            e(f"v_and_b32 v{dst}, 3, v{row}")
            e(f"v_lshlrev_b32 v{dst}, 2, v{dst}")

    e(f"s_mul_i32 s{sT0}, s{sWave}, {nW*rpiw}")
    e(f"v_lshrrev_b32 v{vT0}, {lcw}, v{vLane}")
    e(f"v_and_b32 v{vT1}, {cprw-1}, v{vLane}")
    e(f"s_mov_b32 s{sT1}, {wstride}")
    e(f"s_lshl_b32 s{sXo}, s{sCol0}, 1")
    for t in range(nW):
        e(f"v_add_u32 v{vT2}, {t*rpiw}, v{vT0}")
        e(f"v_add_u32 v{vT2}, s{sT0}, v{vT2}")
        fw(vT3, vT2)
        e(f"v_xor_b32 v{vT3}, v{vT3}, v{vT1}")
        e(f"v_lshlrev_b32 v{vT3}, 4, v{vT3}")
        e(f"v_mul_lo_u32 v{vT2}, v{vT2}, s{sT1}")
        e(f"v_add3_u32 v{vWd+t}, v{vT2}, v{vT3}, s{sXo}")
    e(f"s_mul_i32 s{sWBx}, s{sWave}, {nX*1024}")
    e(f"s_mul_i32 s{sWBw}, s{sWave}, {nW*1024}")
    e(f"s_add_u32 s{sWBw}, s{sWBw}, {XB}")
    e(f"v_and_b32 v{vT0}, 31, v{vLane}")
    e(f"s_mul_i32 s{sT0}, s{sWm}, {RM}")
    e(f"v_add_u32 v{vT0}, s{sT0}, v{vT0}")
    fx(vT1, vT0)
    for ks in range(nks):
        e(f"v_add_u32 v{vT2}, {2*ks}, v{vH}")
        e(f"v_xor_b32 v{vT2}, v{vT2}, v{vT1}")
        e(f"v_lshlrev_b32 v{vT2}, 4, v{vT2}")
        e(f"v_mul_u32_u24 v{vT3}, {RBX}, v{vT0}")
        e(f"v_add_u32 v{vXa+ks}, v{vT2}, v{vT3}")
        if nhalf == 2:
            e(f"v_add_u32 v{vXa+nks+ks}, 0x10000, v{vXa+ks}")
    e(f"v_bfe_u32 v{vR}, v{vLane}, 2, 2")
    e(f"v_bfe_u32 v{vG}, v{vLane}, 4, 1")
    e(f"v_and_b32 v{vCq}, 3, v{vLane}")
    fw(vT1, vR)
    e(f"s_mul_i32 s{sT0}, s{sWn}, {nbn}")
    for bn in range(nbn):
        e(f"v_lshrrev_b32 v{vT2}, 1, v{vCq}")
        e(f"v_lshl_add_u32 v{vT2}, v{vG}, 1, v{vT2}")
        e(f"s_add_u32 s{sT1}, s{sT0}, {bn}")
        e(f"s_lshl_b32 s{sT1}, s{sT1}, 2")
        e(f"v_add_u32 v{vT2}, s{sT1}, v{vT2}")
        e(f"v_xor_b32 v{vT2}, v{vT2}, v{vT1}")
        e(f"v_lshlrev_b32 v{vT2}, 4, v{vT2}")
        e(f"v_and_b32 v{vT3}, 1, v{vCq}")
        e(f"v_lshl_add_u32 v{vT2}, v{vT3}, 3, v{vT2}")
        e(f"v_lshl_add_u32 v{vT3}, v{vH}, 3, v{vR}")
        e(f"v_mul_u32_u24 v{vT3}, {RBW}, v{vT3}")
        e(f"v_add3_u32 v{vWa+bn}, v{vT2}, v{vT3}, {XB}" if XB <= 64 else f"v_add_u32 v{vT2}, v{vT2}, v{vT3}\nv_add_u32 v{vWa+bn}, {XB}, v{vT2}")
        if nhalf == 2:
            e(f"v_add_u32 v{vWa+nbn+bn}, 0x10000, v{vWa+bn}")

    def dma_stage(slot):
        out = []
        for t in range(nX):
            out.append((f"s_add_u32 m0, s{sWBx}, {slot*STG + t*1024}",
                        f"buffer_load_dwordx4 v{vXd+t}, s[{SX}:{SX+3}], s{sXo} offen lds"))
        for t in range(nW):
            out.append((f"s_add_u32 m0, s{sWBw}, {slot*STG + t*1024}",
                        f"buffer_load_dwordx4 v{vWd+t}, s[{SW}:{SW+3}], s{sWo} offen lds"))
        return out

    def adv():
        e(f"s_add_u32 s{sXo}, s{sXo}, {KC*2}")
        e(f"s_add_u32 s{sWo}, s{sWo}, {KC*wstride}")
        if wrap:
            e(f"s_and_b32 s{sXo}, s{sXo}, {wrap[0]}")
            e(f"s_and_b32 s{sWo}, s{sWo}, {wrap[1]}")

    e(f"s_mov_b32 s{sXo}, {'s%d' % sX0 if sX0 else 0}")
    e(f"s_mov_b32 s{sWo}, {'s%d' % sW0 if sW0 else 0}")
    for st in range(NST - defer):
        for m0i, ld in dma_stage(st):
            e(m0i)
            e("s_nop 0")
            e(ld)
        adv()
    if mid_cb:
        mid_cb()
    if defer:
        e("s_barrier")
    for st in range(NST - defer, NST):
        for m0i, ld in dma_stage(st):
            e(m0i)
            e("s_nop 0")
            e(ld)
        adv()
    for i in range(16 * nbm * nbn):
        e(f"v_accvgpr_write_b32 a{vAcc+i}, 0" if acc_agpr else f"v_mov_b32 v{vAcc+i}, 0")
    nper = nX + nW
    g.addr_end = addr_end

    cur = {"slot": 0}

    def frag_reads(slot, buf):
        base = slot * STG
        pre = []
        if rolladdr:
            delta = (slot - cur["slot"]) * STG
            cur["slot"] = slot
            base = 0
            if delta:
                for r_ in list(range(vXa, vXa + nks)) + list(range(vWa, vWa + nbn)):
                    pre.append((f"v_add_u32 v{r_}, {delta & 0xffffffff}, v{r_}", None))

        def xaddr(ks, bm):
            off = base + bm * 32 * RBX
            if off >= 65536:
                return vXa + nks + ks, off - 65536
            return vXa + ks, off

        def waddr(bn, ks, s):
            off = base + (16 * ks + 4 * s) * RBW
            if off >= 65536:
                return vWa + nbn + bn, off - 65536
            return vWa + bn, off
        reads = []
        for ks in range(nks):
            for bm in range(nbm):
                r, off = xaddr(ks, bm)
                d = vXf + buf * FB + 4 * (ks * nbm + bm)
                reads.append((f"ds_read_b128 v[{d}:{d+3}], v{r} offset:{off}", regs(d, 4)))
            for bn in range(nbn):
                for s in range(2):
                    r, off = waddr(bn, ks, s)
                    assert off < 65536
                    d = vWf + buf * FB + 4 * (ks * nbn + bn) + 2 * s
                    reads.append((f"ds_read_b64_tr_b16 v[{d}:{d+1}], v{r} offset:{off}", regs(d, 2)))
        return pre + reads

    def emit_read(ins, d):
        if d is None:
            e(ins)
        else:
            a.lds_op(ins, d)

    stf = getattr(a, "stamper", None)
    if stf: stf()
    if not mid_cb:
        e(f"s_waitcnt vmcnt({(NST-1)*nper})")
    e("s_barrier")
    if stf: stf()
    for ins, d in frag_reads(0, 0):
        emit_read(ins, d)

    def stage(slot, buf, last=False):
        e(f"s_waitcnt vmcnt({(NST-2)*nper}) lgkmcnt(0)")
        a.lds_drained()
        e("s_barrier")
        reads = [] if last else frag_reads((slot + 1) % NST, buf ^ 1)
        dl = dma_stage(slot)
        nm = nks * nbm * nbn
        per = (len(dl) + nm - 1) // nm
        perr = (len(reads) + nm - 1) // nm
        for ks in range(nks):
            for bm in range(nbm):
                for bn in range(nbn):
                    xf = vXf + buf * FB + 4 * (ks * nbm + bm)
                    wf = vWf + buf * FB + 4 * (ks * nbn + bn)
                    acc = vAcc + 16 * (bm * nbn + bn)
                    e(f"v_mfma_f32_32x32x16_bf16 {AP}[{acc}:{acc+15}], v[{wf}:{wf+3}], v[{xf}:{xf+3}], {AP}[{acc}:{acc+15}]")
                    for _ in range(perr):
                        if reads:
                            ins, d = reads.pop(0)
                            emit_read(ins, d)
                    for _ in range(per):
                        if dl:
                            m0i, ld = dl.pop(0)
                            e(m0i)
                            e("s_nop 0")
                            e(ld)
                    if fill:
                        for _ in range(nfill):
                            if fill:
                                e(fill.pop(0))
        adv()

    for st_ in range(peel):
        stage(st_ % NST, st_ % 2)
    assert not fill, len(fill)
    nst_total -= peel
    if unroll_all:
        for st in range(nst_total):
            stage(st % NST, st % 2, last=(st == nst_total - 1))
    else:
        assert nst_total % NST == 0 and NST % 2 == 0
        e(f"s_mov_b32 s{sTrip}, 0")
        a.label(f"L_{pfx}_loop")
        for u in range(NST):
            stage((peel + u) % NST, (peel + u) % 2)
        e(f"s_add_u32 s{sTrip}, s{sTrip}, 1")
        e(f"s_cmp_lt_u32 s{sTrip}, {nst_total // NST}")
        e(f"s_cbranch_scc1 L_{pfx}_loop")
    if stf: stf()
    e("s_waitcnt vmcnt(0) lgkmcnt(0)")
    a.lds_drained()
    e("s_nop 15")
    return g


def out_offsets(a, g, sRow0, sCol0, stride, vdst, sT):
    e = a.e
    t0 = g.tmp[0]
    e(f"v_and_b32 v{t0}, 31, v{g.vLane}")
    e(f"s_mul_i32 s{sT}, s{g.sWm}, {g.RM}")
    e(f"s_add_u32 s{sT}, s{sT}, s{sRow0}")
    e(f"v_add_u32 v{t0}, s{sT}, v{t0}")
    e(f"s_mov_b32 s{sT}, {stride}")
    e(f"v_mul_lo_u32 v{vdst}, v{t0}, s{sT}")
    e(f"s_mul_i32 s{sT}, s{g.sWn}, {g.CN}")
    e(f"s_add_u32 s{sT}, s{sT}, s{sCol0}")
    e(f"s_lshl_b32 s{sT}, s{sT}, 1")
    e(f"v_add_u32 v{vdst}, s{sT}, v{vdst}")
    e(f"v_lshl_add_u32 v{vdst}, v{g.vH}, 4, v{vdst}")


def to_rowmajor16(a, src16, tmp):
    pass


def gen_k3(name="gs_kernel", stamp=False):
    a = Asm()
    e = a.e
    e("s_cmp_ge_u32 s2, 256")
    e("s_cbranch_scc1 L_k3_end")
    st = Stamper(a, stamp, 2, 72)
    st()
    e("s_load_dwordx2 s[40:41], s[0:1], 56")
    e("s_load_dwordx2 s[42:43], s[0:1], 64")
    e("s_load_dwordx2 s[44:45], s[0:1], 32")
    e("s_load_dwordx2 s[46:47], s[0:1], 96")
    e("v_lshrrev_b32 v1, 6, v0")
    e("s_and_b32 s50, s2, 7")
    e("s_lshr_b32 s51, s2, 3")
    e("v_readfirstlane_b32 s24, v1")
    e("s_waitcnt lgkmcnt(0)")
    e("s_cmp_lt_u32 s51, 16")
    e("s_cbranch_scc1 L_k3_s")
    e("s_sub_u32 s51, s51, 16")
    e("s_lshr_b32 s52, s50, 1")
    e("s_lshl_b32 s52, s52, 2")
    e("s_and_b32 s54, s51, 3")
    e("s_add_u32 s54, s54, s52")
    e("s_and_b32 s53, s50, 1")
    e("s_lshl_b32 s53, s53, 2")
    e("s_lshr_b32 s52, s51, 2")
    e("s_add_u32 s53, s53, s52")
    e("s_cmp_ge_u32 s53, 7")
    e("s_cbranch_scc1 L_k3_end")
    e("s_lshl_b32 s25, s54, 7")
    e("s_lshl_b32 s26, s53, 7")
    srd(e, 4, 40, 41, 0, 2048 * 4096)
    srd(e, 8, 46, 47, WS_Z2N, 2048 * 1792)
    srd(e, 12, 46, 47, WS_Z1, 2048 * 1792)
    srd(e, 16, 46, 47, WS_HM, 2048 * 1792)
    srd(e, 20, 42, 43, 0, 4096)
    a.stamper = st
    g = gemm_core(a, "k3g", 128, 128, 2, 2, 2048, 64, 4, 4, 8, 4096, 1792, 25, 26, 24, 2, 60)
    vOff = g.tmp[1]
    out_offsets(a, g, 25, 26, 1792, vOff, 55)
    f = g.vfree0
    vB = g.tmp[2]
    t0 = g.tmp[0]
    for bm in range(g.nbm):
        e(f"v_lshlrev_b32 v{g.tmp[3]}, 1, v{t0}")
        e(f"buffer_load_ushort v{vB+0 if bm == 0 else g.tmp[4]}, v{g.tmp[3]}, s[20:23], 0 offen offset:{bm*64}")
    idx = 0
    zl = {}
    for bm in range(g.nbm):
        for bn in range(g.nbn):
            for gp in range(2):
                d = f + 4 * idx
                zl[(bm, bn, gp)] = d
                e(f"s_mov_b32 s56, {bm*32*1792}")
                e(f"buffer_load_dwordx4 v[{d}:{d+3}], v{vOff}, s[12:15], s56 offen offset:{(32*bn+16*gp)*2}")
                idx += 1
    e("s_waitcnt vmcnt(0)")
    e(f"v_lshlrev_b32 v{vB}, 16, v{vB}")
    e(f"v_lshlrev_b32 v{g.tmp[4]}, 16, v{g.tmp[4]}")
    w = f + 4 * idx
    w = (w + 3) // 4 * 4
    for bm in range(g.nbm):
        bb = vB if bm == 0 else g.tmp[4]
        for bn in range(g.nbn):
            acc = g.vAcc + 16 * (bm * g.nbn + bn)
            for gp in range(2):
                s8 = acc + 8 * gp
                for i in range(4):
                    e(f"v_cvt_pk_bf16_f32 v{w+i}, v{s8+2*i}, v{s8+2*i+1}")
                e("s_nop 1")
                e(f"v_permlane32_swap_b32 v{w}, v{w+2}")
                e(f"v_permlane32_swap_b32 v{w+1}, v{w+3}")
                z = zl[(bm, bn, gp)]
                for i in range(4):
                    lo, hi = s8 + 2 * i, s8 + 2 * i + 1
                    e(f"v_lshlrev_b32 v{lo}, 16, v{w+i}")
                    e(f"v_and_b32 v{hi}, 0xffff0000, v{w+i}")
                    e(f"v_add_f32 v{lo}, v{lo}, v{bb}")
                    e(f"v_add_f32 v{hi}, v{hi}, v{bb}")
                    e(f"v_cvt_pk_bf16_f32 v{w+i}, v{lo}, v{hi}")
                    e(f"v_lshlrev_b32 v{lo}, 16, v{w+i}")
                    e(f"v_and_b32 v{hi}, 0xffff0000, v{w+i}")
                    e(f"v_lshlrev_b32 v{w+4}, 16, v{z+i}")
                    e(f"v_and_b32 v{w+5}, 0xffff0000, v{z+i}")
                    e(f"v_mul_f32 v{lo}, v{lo}, v{w+4}")
                    e(f"v_mul_f32 v{hi}, v{hi}, v{w+5}")
                    e(f"v_cvt_pk_bf16_f32 v{z+i}, v{lo}, v{hi}")
                e(f"s_mov_b32 s56, {bm*32*1792}")
                e(f"buffer_store_dwordx4 v[{z}:{z+3}], v{vOff}, s[16:19], s56 offen offset:{(32*bn+16*gp)*2}")
    e("s_waitcnt vmcnt(0)")
    st.dump()
    e("s_endpgm")
    vmax = g.vend
    st.n = 1
    a.label("L_k3_s")
    e("s_lshr_b32 s52, s51, 1")
    e("s_lshl_b32 s52, s52, 1")
    e("s_lshr_b32 s54, s50, 2")
    e("s_add_u32 s54, s54, s52")
    e("s_lshl_b32 s25, s54, 7")
    e("s_and_b32 s53, s51, 1")
    e("s_mul_i32 s26, s53, 224")
    e("s_and_b32 s57, s50, 3")
    e("s_lshl_b32 s58, s57, 11")
    e("s_mul_i32 s59, s57, %d" % (1024 * 896))
    srd(e, 4, 46, 47, WS_O, 2048 * 8192)
    srd(e, 8, 44, 45, 0, 4096 * 896)
    e("s_mul_i32 s57, s57, %d" % (2048 * 1792))
    e("s_add_u32 s57, s57, %d" % WS_SP)
    srd(e, 16, 46, 47, "s57", 2048 * 1792)
    g = gemm_core(a, "k3s", 128, 256, 4, 1, 1024, 32, 4, 4, 8, 8192, 896, 25, 26, 24, 2, 60, nbn_override=7, sX0=58, sW0=59, acc_agpr=True)
    t0, vOff = g.tmp[0], g.tmp[1]
    e(f"v_and_b32 v{t0}, 31, v{g.vLane}")
    e(f"s_lshl_b32 s55, s24, 5")
    e(f"s_add_u32 s55, s55, s25")
    e(f"v_add_u32 v{t0}, s55, v{t0}")
    e(f"s_movk_i32 s55, 1792")
    e(f"v_mul_lo_u32 v{vOff}, v{t0}, s55")
    e(f"s_lshl_b32 s55, s26, 2")
    e(f"v_add_u32 v{vOff}, s55, v{vOff}")
    e(f"v_lshl_add_u32 v{vOff}, v{g.vH}, 4, v{vOff}")
    for bn in range(7):
        for gg in range(4):
            r = g.vAcc + 16 * bn + 4 * gg
            e(f"buffer_store_dwordx4 a[{r}:{r+3}], v{vOff}, s[16:19], 0 offen offset:{(32*bn+8*gg)*4}")
    if stamp:
        e("s_waitcnt vmcnt(0)")
    st.dump()
    a.label("L_k3_end")
    e("s_endpgm")
    vmax = max(vmax, g.vend)
    vmax = (vmax + 7) // 8 * 8
    assert vmax <= 256, vmax
    return a.text(), kernel_desc(name, vmax + 112, vmax, 100), 131072


def gen_k4(name="fin_kernel", np16=False):
    a = Asm()
    e = a.e
    e("s_cmp_ge_u32 s2, 224")
    e("s_cbranch_scc1 L_k4_end")
    e("s_load_dwordx2 s[40:41], s[0:1], 72")
    e("s_load_dwordx2 s[42:43], s[0:1], 0")
    e("s_load_dwordx2 s[44:45], s[0:1], 80")
    e("s_load_dwordx2 s[46:47], s[0:1], 96")
    e("v_lshrrev_b32 v1, 6, v0")
    e("s_and_b32 s50, s2, 7")
    e("s_lshr_b32 s51, s2, 3")
    e("v_readfirstlane_b32 s24, v1")
    e("s_mul_i32 s52, s51, 37")
    e("s_lshr_b32 s52, s52, 8")
    e("s_mul_i32 s53, s52, 7")
    e("s_sub_u32 s53, s51, s53")
    e("s_lshl_b32 s54, s50, 2")
    e("s_add_u32 s54, s54, s52")
    e("s_lshl_b32 s25, s54, 6")
    e("s_lshl_b32 s26, s53, 6")
    e("s_waitcnt lgkmcnt(0)")
    srd(e, 4, 46, 47, WS_HM, 2048 * 1792)
    srd(e, 8, 40, 41, 0, 896 * 896)
    srd(e, 12, 46, 47, WS_SP, 16 * 2048 * 896)
    srd(e, 16, 44, 45, 0, 2048 * 896)
    srd(e, 20, 42, 43, 0, 2048 * 896)
    pb = 112
    vOff = 240
    e("v_and_b32 v241, 31, v0")
    e("s_lshr_b32 s55, s24, 1")
    e("s_lshl_b32 s55, s55, 5")
    e("s_add_u32 s55, s55, s25")
    e("v_add_u32 v241, s55, v241")
    e("s_movk_i32 s55, 896")
    e(f"v_mul_lo_u32 v{vOff}, v241, s55")
    e("s_and_b32 s55, s24, 1")
    e("s_lshl_b32 s55, s55, 5")
    e("s_add_u32 s55, s55, s26")
    e("s_lshl_b32 s55, s55, 1")
    e(f"v_add_u32 v{vOff}, s55, v{vOff}")
    e("v_bfe_u32 v241, v0, 5, 1")
    e(f"v_lshl_add_u32 v{vOff}, v241, 4, v{vOff}")

    e("s_lshr_b32 s55, s25, 5")
    e("s_lshr_b32 s56, s24, 1")
    e("s_add_u32 s55, s55, s56")
    e("s_mul_i32 s55, s55, 28672")
    e("s_lshr_b32 s56, s26, 5")
    e("s_and_b32 s57, s24, 1")
    e("s_add_u32 s56, s56, s57")
    e("s_lshl_b32 s56, s56, 11")
    e("s_add_u32 s55, s55, s56")
    e("v_and_b32 v242, 63, v0")
    e("v_lshlrev_b32 v242, 4, v242")
    e("v_add_u32 v242, s55, v242")

    def early():
        for gp in range(2):
            e(f"buffer_load_dwordx4 v[{244+4*gp}:{247+4*gp}], v{vOff}, s[20:23], 0 offen offset:{32*gp}")
        for hd in range(16):
            e(f"s_mov_b32 s58, {hd*2048*896}")
            for gp in range(2):
                d = pb + 8 * hd + 4 * gp
                e(f"buffer_load_dwordx4 v[{d}:{d+3}], v242, s[12:15], s58 offen offset:{1024*gp}")
        e("s_waitcnt vmcnt(46)")
    g = gemm_core(a, "k4", 64, 64, 2, 2, 896, 64, 4, 4, 8, 1792, 896, 25, 26, 24, 2, 60, unroll_all=True, mid_cb=early)
    assert g.vend <= pb, g.vend
    f = g.vfree0
    acc = g.vAcc
    for gp in range(2):
        for i in range(4):
            e(f"v_mov_b32 v{f+8+4*gp+i}, v{244+4*gp+i}")
    w = f + 16
    sa = f + 32
    e(f"s_mov_b32 s57, {f32hex(-1.4426950408889634)}")
    e("s_mov_b32 s59, 0xffff0000")
    for hd in range(16):
        for i in range(8):
            d = pb + 8 * hd + i
            if hd == 0:
                e(f"v_lshlrev_b32 v{sa+2*i}, 16, v{d}")
                e(f"v_and_b32 v{sa+2*i+1}, s59, v{d}")
            else:
                e(f"v_lshlrev_b32 v{w}, 16, v{d}")
                e(f"v_and_b32 v{d}, s59, v{d}")
                e(f"v_add_f32 v{sa+2*i}, v{sa+2*i}, v{w}")
                e(f"v_add_f32 v{sa+2*i+1}, v{sa+2*i+1}, v{d}")
    for i in range(8):
        e(f"v_cvt_pk_bf16_f32 v{f+i}, v{sa+2*i}, v{sa+2*i+1}")
    for gp in range(2):
        s8 = acc + 8 * gp
        for i in range(4):
            e(f"v_cvt_pk_bf16_f32 v{w+i}, v{s8+2*i}, v{s8+2*i+1}")
        e("s_nop 1")
        e(f"v_permlane32_swap_b32 v{w}, v{w+2}")
        e(f"v_permlane32_swap_b32 v{w+1}, v{w+3}")
        sv, xv = f + 4 * gp, f + 8 + 4 * gp
        for i in range(4):
            for hh in range(2):
                y = s8 + 2 * i + hh
                t = w + 4 + hh
                if hh == 0:
                    e(f"v_lshlrev_b32 v{y}, 16, v{w+i}")
                else:
                    e(f"v_and_b32 v{y}, 0xffff0000, v{w+i}")
                e(f"v_mul_f32 v{t}, s57, v{y}")
                e(f"v_exp_f32 v{t}, v{t}")
                e("s_nop 0")
                e(f"v_add_f32 v{t}, 1.0, v{t}")
                e(f"v_rcp_f32 v{t}, v{t}")
                e("s_nop 0")
                e(f"v_mul_f32 v{y}, v{y}, v{t}")
            lo, hi = s8 + 2 * i, s8 + 2 * i + 1
            e(f"v_cvt_pk_bf16_f32 v{w+i}, v{lo}, v{hi}")
            e(f"v_lshlrev_b32 v{lo}, 16, v{w+i}")
            e(f"v_and_b32 v{hi}, 0xffff0000, v{w+i}")
            e(f"v_lshlrev_b32 v{w+4}, 16, v{sv+i}")
            e(f"v_and_b32 v{w+5}, 0xffff0000, v{sv+i}")
            e(f"v_mul_f32 v{lo}, v{lo}, v{w+4}")
            e(f"v_mul_f32 v{hi}, v{hi}, v{w+5}")
            e(f"v_cvt_pk_bf16_f32 v{w+i}, v{lo}, v{hi}")
            e(f"v_lshlrev_b32 v{lo}, 16, v{w+i}")
            e(f"v_and_b32 v{hi}, 0xffff0000, v{w+i}")
            e(f"v_lshlrev_b32 v{w+4}, 16, v{xv+i}")
            e(f"v_and_b32 v{w+5}, 0xffff0000, v{xv+i}")
            e(f"v_add_f32 v{lo}, v{lo}, v{w+4}")
            e(f"v_add_f32 v{hi}, v{hi}, v{w+5}")
            e(f"v_cvt_pk_bf16_f32 v{sv+i}, v{lo}, v{hi}")
        e(f"buffer_store_dwordx4 v[{sv}:{sv+3}], v{vOff}, s[16:19], 0 offen offset:{32*gp}")
    e("s_waitcnt vmcnt(0)")
    a.label("L_k4_end")
    e("s_endpgm")
    vmax = 256
    return a.text(), kernel_desc(name, vmax, vmax, 96), 65536


def gen_ln2(name="ln2_kernel"):
    a = Asm()
    e = a.e
    e("s_cmp_ge_u32 s2, 256")
    e("s_cbranch_scc1 L_ln2_end")
    e("s_load_dwordx2 s[46:47], s[0:1], 96")
    e("v_lshrrev_b32 v1, 5, v0")
    e("v_and_b32 v2, 31, v0")
    e("s_lshl_b32 s3, s2, 3")
    e("v_add_u32 v1, s3, v1")
    e("s_movk_i32 s3, 1792")
    e("v_mul_lo_u32 v1, v1, s3")
    e("v_lshl_add_u32 v1, v2, 2, v1")
    e("s_waitcnt lgkmcnt(0)")
    srd(e, 4, 46, 47, WS_Z2, 2048 * 1792)
    srd(e, 8, 46, 47, WS_Z2N, 2048 * 1792)
    for t in range(14):
        e(f"buffer_load_dword v{8+t}, v1, s[4:7], 0 offen offset:{128*t}")
    e("v_mov_b32 v4, 0")
    e("v_mov_b32 v5, 0")
    e("s_mov_b32 s12, 0x3f803f80")
    e("v_mov_b32 v6, s12")
    e("s_waitcnt vmcnt(0)")
    for t in range(14):
        e(f"v_dot2_f32_bf16 v4, v{8+t}, v6, v4")
        e(f"v_dot2_f32_bf16 v5, v{8+t}, v{8+t}, v5")
    e("s_nop 3")
    for x in (1, 2, 4, 8, 16):
        e(f"ds_swizzle_b32 v2, v4 offset:{(x << 10) | 0x1f}")
        e(f"ds_swizzle_b32 v3, v5 offset:{(x << 10) | 0x1f}")
        e("s_waitcnt lgkmcnt(0)")
        e("v_add_f32 v4, v4, v2")
        e("v_add_f32 v5, v5, v3")
    ln_stats(e, 4, 5, 2, 3, 896)
    for t in range(14):
        e(f"v_lshlrev_b32 v2, 16, v{8+t}")
        e(f"v_and_b32 v3, 0xffff0000, v{8+t}")
        e("v_sub_f32 v2, v2, v4")
        e("v_sub_f32 v3, v3, v4")
        e("v_cvt_pk_bf16_f32 v2, v2, v3")
        e("v_and_b32 v3, 0xffff0000, v2")
        e("v_lshlrev_b32 v2, 16, v2")
        e("v_mul_f32 v2, v2, v5")
        e("v_mul_f32 v3, v3, v5")
        e(f"v_cvt_pk_bf16_f32 v{8+t}, v2, v3")
        e(f"buffer_store_dword v{8+t}, v1, s[8:11], 0 offen offset:{128*t}")
    e("s_waitcnt vmcnt(0)")
    a.label("L_ln2_end")
    e("s_endpgm")
    return a.text(), kernel_desc(name, 32, 32, 64), 0


def ln_stats(e, vS, vQ, t0, t1, n):
    e(f"v_mul_f32 v{vS}, {f32hex(1.0/n)}, v{vS}")
    e(f"v_mul_f32 v{vQ}, {f32hex(1.0/n)}, v{vQ}")
    e(f"v_fma_f32 v{vQ}, -v{vS}, v{vS}, v{vQ}")
    e(f"v_max_f32 v{vQ}, 0, v{vQ}")
    e(f"v_cvt_pk_bf16_f32 v{t0}, v{vS}, v{vQ}")
    e(f"v_lshlrev_b32 v{vS}, 16, v{t0}")
    e(f"v_and_b32 v{vQ}, 0xffff0000, v{t0}")
    e(f"v_add_f32 v{vQ}, {f32hex(1e-5)}, v{vQ}")
    e(f"v_cvt_pk_bf16_f32 v{t0}, v{vQ}, v{vQ}")
    e(f"v_lshlrev_b32 v{vQ}, 16, v{t0}")
    e(f"v_sqrt_f32 v{vQ}, v{vQ}")
    e("s_nop 0")
    e(f"v_cvt_pk_bf16_f32 v{t0}, v{vQ}, v{vQ}")
    e(f"v_lshlrev_b32 v{vQ}, 16, v{t0}")
    e(f"v_rcp_f32 v{vQ}, v{vQ}")
    e("s_nop 0")


def gen_k1(name="pre_kernel", stamp=False):
    a = Asm()
    e = a.e
    st = Stamper(a, stamp, 0, 70)
    e("s_cmp_ge_u32 s2, 224")
    e("s_cbranch_scc1 L_k1_end")
    st()
    e("s_load_dwordx2 s[40:41], s[0:1], 0")
    e("s_load_dwordx2 s[42:43], s[0:1], 48")
    e("s_load_dwordx2 s[46:47], s[0:1], 96")
    e("v_lshrrev_b32 v1, 6, v0")
    e("s_and_b32 s50, s2, 7")
    e("s_lshr_b32 s51, s2, 3")
    e("v_readfirstlane_b32 s24, v1")
    e("s_cmp_ge_u32 s51, 14")
    e("s_cselect_b32 s52, 1, 0")
    e("s_mul_i32 s53, s52, 14")
    e("s_sub_u32 s53, s51, s53")
    e("s_lshl_b32 s54, s50, 1")
    e("s_add_u32 s54, s54, s52")
    e("s_lshl_b32 s25, s54, 7")
    e("s_lshl_b32 s26, s53, 7")
    e("s_waitcnt lgkmcnt(0)")
    srd(e, 4, 40, 41, 0, 2048 * 896)
    srd(e, 8, 42, 43, 0, 448 * 3584)
    srd(e, 12, 46, 47, WS_XN, 2048 * 896)
    e("s_cmp_ge_u32 s53, 7")
    e(f"s_mov_b32 s55, {WS_Z1}")
    e(f"s_cselect_b32 s55, {WS_Z2}, s55")
    e("s_cselect_b32 s56, 896, 0")
    e("s_sub_u32 s27, s26, s56")
    srd(e, 16, 46, 47, "s55", 2048 * 1792)
    vLane, vH, vT0, vT1, vT2, vT3, vR, vG, vCq = 1, 2, 3, 4, 5, 6, 7, 8, 9
    vXo, vSum, vSq, vOne, vZo = 10, 11, 12, 13, 14
    vWd = 16
    vWa = 20
    vX = 32
    vWf = 144
    vAcc = 208
    vAcc = 144
    vWf = 208
    e(f"v_and_b32 v{vLane}, 63, v0")
    e(f"v_lshrrev_b32 v{vH}, 5, v{vLane}")
    e(f"v_lshrrev_b32 v{vT0}, 4, v{vLane}")
    e(f"v_and_b32 v{vT1}, 15, v{vLane}")
    e("s_lshl_b32 s57, s24, 4")
    e("s_movk_i32 s58, 3584")
    e("s_lshl_b32 s59, s26, 1")
    for t in range(4):
        e(f"v_add_u32 v{vT2}, {4*t}, v{vT0}")
        e(f"v_add_u32 v{vT2}, s57, v{vT2}")
        e(f"v_and_b32 v{vT3}, 3, v{vT2}")
        e(f"v_lshlrev_b32 v{vT3}, 2, v{vT3}")
        e(f"v_xor_b32 v{vT3}, v{vT3}, v{vT1}")
        e(f"v_lshlrev_b32 v{vT3}, 4, v{vT3}")
        e(f"v_mul_lo_u32 v{vT2}, v{vT2}, s58")
        e(f"v_add3_u32 v{vWd+t}, v{vT2}, v{vT3}, s59")
    e(f"v_and_b32 v{vT0}, 31, v{vLane}")
    e("s_lshl_b32 s57, s24, 5")
    e("s_add_u32 s57, s57, s25")
    e(f"v_add_u32 v{vT0}, s57, v{vT0}")
    e("s_movk_i32 s58, 896")
    e(f"v_mul_lo_u32 v{vXo}, v{vT0}, s58")
    e(f"v_lshl_add_u32 v{vXo}, v{vH}, 4, v{vXo}")
    e("s_movk_i32 s58, 1792")
    e(f"v_mul_lo_u32 v{vZo}, v{vT0}, s58")
    e(f"v_lshl_add_u32 v{vZo}, v{vH}, 4, v{vZo}")
    e("s_lshl_b32 s58, s27, 1")
    e(f"v_add_u32 v{vZo}, s58, v{vZo}")
    for ks in range(28):
        e(f"buffer_load_dwordx4 v[{vX+4*ks}:{vX+4*ks+3}], v{vXo}, s[4:7], 0 offen offset:{ks*32}")
    e("s_lshl_b32 s57, s24, 12")
    for ci in range(7):
        e(f"s_mov_b32 s58, {ci*64*3584}")
        for t in range(4):
            e(f"s_add_u32 m0, s57, {ci*16384 + t*1024}")
            e("s_nop 0")
            e(f"buffer_load_dwordx4 v{vWd+t}, s[8:11], s58 offen lds")
    e(f"v_bfe_u32 v{vR}, v{vLane}, 2, 2")
    e(f"v_bfe_u32 v{vG}, v{vLane}, 4, 1")
    e(f"v_and_b32 v{vCq}, 3, v{vLane}")
    for bn in range(4):
        e(f"v_lshrrev_b32 v{vT2}, 1, v{vCq}")
        e(f"v_lshl_add_u32 v{vT2}, v{vG}, 1, v{vT2}")
        e(f"v_add_u32 v{vT2}, {4*bn}, v{vT2}")
        e(f"v_lshlrev_b32 v{vT3}, 2, v{vR}")
        e(f"v_xor_b32 v{vT2}, v{vT2}, v{vT3}")
        e(f"v_lshlrev_b32 v{vT2}, 4, v{vT2}")
        e(f"v_and_b32 v{vT3}, 1, v{vCq}")
        e(f"v_lshl_add_u32 v{vT2}, v{vT3}, 3, v{vT2}")
        e(f"v_lshl_add_u32 v{vT3}, v{vH}, 3, v{vR}")
        e(f"v_lshl_add_u32 v{vWa+bn}, v{vT3}, 8, v{vT2}")
        e(f"v_add_u32 v{vWa+4+bn}, 0x10000, v{vWa+bn}")
    vS2, vQ2 = 28, 29
    vNm, vRd = 30, 24
    vRd = 250
    vTP = 232
    e("s_mov_b32 s58, 0x3f803f80")
    e(f"v_mov_b32 v{vOne}, s58")
    for r in (vSum, vSq, vS2, vQ2):
        e(f"v_mov_b32 v{r}, 0")
    st()
    e("s_waitcnt vmcnt(28)")
    st()
    for i in range(0, 112, 2):
        e(f"v_dot2_f32_bf16 v{vSum}, v{vX+i}, v{vOne}, v{vSum}")
        e(f"v_dot2_f32_bf16 v{vSq}, v{vX+i}, v{vX+i}, v{vSq}")
        e(f"v_dot2_f32_bf16 v{vS2}, v{vX+i+1}, v{vOne}, v{vS2}")
        e(f"v_dot2_f32_bf16 v{vQ2}, v{vX+i+1}, v{vX+i+1}, v{vQ2}")
    e("s_nop 3")
    e(f"v_add_f32 v{vSum}, v{vSum}, v{vS2}")
    e(f"v_add_f32 v{vSq}, v{vSq}, v{vQ2}")
    e(f"v_mov_b32 v{vT0}, v{vSum}")
    e(f"v_mov_b32 v{vT1}, v{vSq}")
    e("s_nop 1")
    e(f"v_permlane32_swap_b32 v{vT0}, v{vSum}")
    e(f"v_permlane32_swap_b32 v{vT1}, v{vSq}")
    e("s_nop 1")
    e(f"v_add_f32 v{vSum}, v{vSum}, v{vT0}")
    e(f"v_add_f32 v{vSq}, v{vSq}, v{vT1}")
    ln_stats(e, vSum, vSq, vT0, vT1, 448)
    e(f"v_sub_f32 v{vNm}, 0, v{vSum}")
    e(f"v_sub_f32 v{vNm+1}, 0, v{vSum}")
    e(f"v_mov_b32 v{vRd}, v{vSq}")
    e(f"v_mov_b32 v{vRd+1}, v{vSq}")
    e("s_mov_b32 s59, 0xffff0000")
    st()
    e("s_waitcnt vmcnt(0)")
    e("s_barrier")
    st()

    def wreads(ks):
        out = []
        fb = vWf + 8 * 0 + 12 * 0 + (16 * (ks % 2) if False else 0)
        return out

    def norm_ops(ks):
        ops = []
        xs = [vX + 4 * ks + i for i in range(4)]
        ts = [vTP + 2 * i for i in range(4)]
        for x, t in zip(xs, ts): ops.append(f"v_lshlrev_b32 v{t}, 16, v{x}")
        for x, t in zip(xs, ts): ops.append(f"v_and_b32 v{t+1}, s59, v{x}")
        for x, t in zip(xs, ts): ops.append(f"v_pk_add_f32 v[{t}:{t+1}], v[{t}:{t+1}], v[{vNm}:{vNm+1}]")
        for x, t in zip(xs, ts): ops.append(f"v_cvt_pk_bf16_f32 v{x}, v{t}, v{t+1}")
        for x, t in zip(xs, ts): ops.append(f"v_lshlrev_b32 v{t}, 16, v{x}")
        for x, t in zip(xs, ts): ops.append(f"v_and_b32 v{t+1}, s59, v{x}")
        for x, t in zip(xs, ts): ops.append(f"v_pk_mul_f32 v[{t}:{t+1}], v[{t}:{t+1}], v[{vRd}:{vRd+1}]")
        for x, t in zip(xs, ts): ops.append(f"v_cvt_pk_bf16_f32 v{x}, v{t}, v{t+1}")
        return ops

    wbuf = [208, 176 + 0]
    wbuf = [208, 16 * 0 + 252 - 36]
    wbuf = [208, 0]
    def wreg(buf, bn):
        if buf == 0:
            return 208 + 4 * bn
        return [224, 228, 240, 244][bn]

    def w_reads(ks):
        out = []
        for bn in range(4):
            for s_ in range(2):
                off = (16 * ks + 4 * s_) * 256
                r = vWa + bn
                if off >= 65536:
                    off -= 65536
                    r += 4
                d = wreg(ks % 2, bn) + 2 * s_
                out.append((f"ds_read_b64_tr_b16 v[{d}:{d+1}], v{r} offset:{off}", regs(d, 2)))
        return out

    for ins, d in w_reads(0):
        a.lds_op(ins, d)
    for o in norm_ops(0):
        e(o)
    for ks in range(28):
        ops = norm_ops(ks + 1) if ks < 27 else []
        rd = w_reads(ks + 1) if ks < 27 else []
        e("s_nop 1")
        for bn in range(4):
            f0 = wreg(ks % 2, bn)
            a.lds_need(regs(f0, 4))
            c = f"v[{vAcc+16*bn}:{vAcc+16*bn+15}]" if ks else "0"
            e(f"v_mfma_f32_32x32x16_bf16 v[{vAcc+16*bn}:{vAcc+16*bn+15}], v[{f0}:{f0+3}], v[{vX+4*ks}:{vX+4*ks+3}], {c}")
            for _ in range(2):
                if rd:
                    ins, d = rd.pop(0)
                    a.lds_op(ins, d)
            for _ in range(8):
                if ops:
                    e(ops.pop(0))
    st()
    e("s_cmp_lg_u32 s53, 0")
    e("s_cbranch_scc1 L_k1_noxn")
    for ks in range(28):
        e(f"buffer_store_dwordx4 v[{vX+4*ks}:{vX+4*ks+3}], v{vXo}, s[12:15], 0 offen offset:{ks*32}")
    a.label("L_k1_noxn")
    e("s_nop 15")
    c1 = -2.0 * 1.4426950408889634 * 0.7978845608028654
    c2 = c1 * 0.044715
    e(f"s_mov_b32 s57, {f32hex(c1)}")
    e(f"s_mov_b32 s58, {f32hex(c2)}")
    e(f"v_mov_b32 v{vOne}, s57")
    tt = 208
    k = 0
    for bn in range(4):
        for gp in range(2):
            s8 = vAcc + 16 * bn + 8 * gp
            o = 216 + 4 * (k % 4)
            k += 1
            for i in range(4):
                e(f"v_cvt_pk_bf16_f32 v{o+i}, v{s8+2*i}, v{s8+2*i+1}")
            for i in range(4):
                e(f"v_lshlrev_b32 v{s8+2*i}, 16, v{o+i}")
                e(f"v_and_b32 v{s8+2*i+1}, s59, v{o+i}")
            for i in range(8): e(f"v_mul_f32 v{tt+i}, v{s8+i}, v{s8+i}")
            for i in range(8): e(f"v_fma_f32 v{tt+i}, v{tt+i}, s58, v{vOne}")
            for i in range(8): e(f"v_mul_f32 v{tt+i}, v{tt+i}, v{s8+i}")
            for i in range(8): e(f"v_exp_f32 v{tt+i}, v{tt+i}")
            for i in range(8): e(f"v_add_f32 v{tt+i}, 1.0, v{tt+i}")
            for i in range(8): e(f"v_rcp_f32 v{tt+i}, v{tt+i}")
            for i in range(8): e(f"v_mul_f32 v{s8+i}, v{s8+i}, v{tt+i}")
            for i in range(4):
                e(f"v_cvt_pk_bf16_f32 v{o+i}, v{s8+2*i}, v{s8+2*i+1}")
            e("s_nop 1")
            e(f"v_permlane32_swap_b32 v{o}, v{o+2}")
            e(f"v_permlane32_swap_b32 v{o+1}, v{o+3}")
            e("s_nop 0")
            e(f"buffer_store_dwordx4 v[{o}:{o+3}], v{vZo}, s[16:19], 0 offen offset:{(32*bn+16*gp)*2}")
    st()
    e("s_waitcnt vmcnt(0)")
    st.dump()
    a.label("L_k1_end")
    e("s_endpgm")
    return a.text(), kernel_desc(name, 256, 256, 100), 114688
```

```python
from asmlib import *
from gen_attn import f32hex, WS_XN, WS_Z1, WS_Z2, WS_Z2T, WS_O, WS_HM
from gen_gemm import ln_stats, srd, WS_Z2N, WS_SP, gemm_core, out_offsets

LOG2E = 1.4426950408889634
SCALE = LOG2E / 16.0
THR = 8.0


def gen_attn3(name="attn_kernel", stamp=False, use_dot=False, prefetch=True):
    a = Asm()
    e = a.e
    st = Stamper(a, stamp, 1, 68)
    SK, SV, SW, SX, SO, SI, SZ = 4, 8, 12, 16, 20, 48, 52
    sWave, sHead, sQb, sWB, sKoff, sVoff, sTrip, sC, sT0, sT1 = 24, 25, 26, 27, 28, 29, 30, 31, 32, 33
    sWoff, sThr, sMask, sG1, sG2 = 36, 37, 38, 39, 56
    vLane = 1
    vT0, vT1, vT2, vT3 = 2, 3, 40, 41
    vKd, vVd, vWd = 4, 8, 12
    vKa, vVa, vWa = 16, 24, 28
    vOne, vZo, vL, vMax, vM, vAl = 32, 33, 34, 35, 36, 37
    vOoff = 38
    vC1 = 39
    vId = 232
    vIa = 236
    vS = [48, 64]
    vNM = 80
    vP = 96
    vKf = 104
    vVf = 168
    vX = 48
    vZ = [48, 64, 80, 240]
    aO, aQ, aX = 0, 128, 128
    VRING = 65536

    e("s_cmp_ge_u32 s2, 256")
    e("s_cbranch_scc1 L_attn_end")
    st()
    e("s_load_dwordx4 s[40:43], s[0:1], 8")
    e("s_load_dwordx2 s[44:45], s[0:1], 24")
    e("s_load_dwordx2 s[46:47], s[0:1], 96")
    e("s_load_dwordx2 s[58:59], s[0:1], 0")
    e("s_load_dwordx2 s[60:61], s[0:1], 48")
    e("s_load_dwordx2 s[62:63], s[0:1], 88")
    e(f"s_and_b32 s{sT0}, s2, 7")
    e(f"s_lshl_b32 s{sT0}, s{sT0}, 1")
    e(f"s_lshr_b32 s{sT1}, s2, 3")
    e(f"s_and_b32 s{sHead}, s{sT1}, 1")
    e(f"s_add_u32 s{sHead}, s{sHead}, s{sT0}")
    e(f"s_lshr_b32 s{sQb}, s2, 4")
    e(f"v_lshrrev_b32 v{vT0}, 6, v0")
    e(f"v_and_b32 v{vLane}, 63, v0")
    e(f"v_readfirstlane_b32 s{sWave}, v{vT0}")
    e(f"s_mov_b32 s{sC}, {f32hex(SCALE)}")
    e(f"s_mov_b32 s{sThr}, {f32hex(THR)}")
    e(f"s_mov_b32 s{sMask}, 0xffff0000")
    e(f"v_lshrrev_b32 v{vT0}, 5, v{vLane}")
    e(f"v_and_b32 v{vT1}, 31, v{vLane}")
    e(f"s_lshl_b32 s{sT0}, s{sQb}, 7")
    e(f"s_lshl_b32 s{sT1}, s{sWave}, 5")
    e(f"s_add_u32 s{sT0}, s{sT0}, s{sT1}")
    e(f"v_add_u32 v{vT2}, s{sT0}, v{vT1}")
    e(f"s_movk_i32 s{sT1}, 896")
    e(f"v_mul_lo_u32 v{vT3}, v{vT2}, s{sT1}")
    e(f"v_lshl_add_u32 v{vT3}, v{vT0}, 4, v{vT3}")
    e("s_waitcnt lgkmcnt(0)")
    srd(e, SX, 58, 59, 0, 2048 * 896)
    for ks in range(28):
        e(f"buffer_load_dwordx4 v[{vX+4*ks}:{vX+4*ks+3}], v{vT3}, s[{SX}:{SX+3}], 0 offen offset:{ks*32}")
    e(f"v_lshlrev_b32 v{vOoff}, 13, v{vT2}")
    e(f"v_lshl_add_u32 v{vOoff}, v{vT0}, 4, v{vOoff}")
    e(f"s_lshl_b32 s{sT0}, s{sHead}, 9")
    e(f"v_add_u32 v{vOoff}, s{sT0}, v{vOoff}")
    e(f"s_movk_i32 s{sT1}, 1792")
    e(f"v_mul_lo_u32 v{vZo}, v{vT2}, s{sT1}")
    e(f"v_lshl_add_u32 v{vZo}, v{vT0}, 4, v{vZo}")
    e(f"s_and_b32 s{sT0}, s{sHead}, 7")
    e(f"s_mul_i32 s{sT0}, s{sT0}, 224")
    e(f"v_add_u32 v{vZo}, s{sT0}, v{vZo}")
    e(f"s_lshl_b32 s{sT0}, s{sHead}, 20")
    srd(e, SK, 40, 41, f"s{sT0}", 0x100000)
    srd(e, SV, 42, 43, f"s{sT0}", 0x100000)
    e(f"s_lshl_b32 s{sT0}, s{sHead}, 9")
    e(f"s_add_u32 s{SW}, s44, s{sT0}")
    e(f"s_addc_u32 s{SW+1}, s45, 0")
    e(f"s_sub_u32 s{SW+2}, {448*8192}, s{sT0}")
    e(f"s_mov_b32 s{SW+3}, 0x20000")
    srd(e, SO, 46, 47, WS_O, 2048 * 8192)
    srd(e, SI, 60, 61, 0, 448 * 3584)
    e(f"s_mov_b32 s{sT0}, {WS_Z1}")
    e(f"s_cmp_ge_u32 s{sHead}, 8")
    e(f"s_cselect_b32 s{sT0}, {WS_Z2}, s{sT0}")
    srd(e, SZ, 46, 47, f"s{sT0}", 2048 * 1792)
    e(f"s_lshl_b32 s{sWB}, s{sWave}, 12")
    e(f"s_mul_i32 s{sT0}, s{sQb}, 28")
    e(f"s_mul_i32 s{sT1}, s{sWave}, 7")
    e(f"s_add_u32 s{sT0}, s{sT0}, s{sT1}")
    e(f"v_lshlrev_b32 v42, 13, v{vT0}")
    e(f"v_lshl_add_u32 v42, v{vT1}, 4, v42")
    e(f"s_lshl_b32 s{sT1}, s{sT0}, 13")
    for i in range(4):
        e(f"buffer_load_dwordx4 v[{192+4*i}:{195+4*i}], v42, s[{SW}:{SW+3}], s{sT1} offen")
        e(f"s_add_u32 s{sT1}, s{sT1}, 16384")
    e(f"v_lshrrev_b32 v42, 4, v{vLane}")
    e(f"s_movk_i32 s{sT1}, 3584")
    e(f"v_mul_lo_u32 v42, v42, s{sT1}")
    e(f"v_and_b32 v43, 15, v{vLane}")
    e(f"v_lshl_add_u32 v42, v43, 4, v42")
    e(f"s_mul_i32 s{sT1}, s{sT0}, 3584")
    e(f"s_mul_i32 s{sG1}, s{sHead}, 224")
    e(f"s_add_u32 s{sT1}, s{sT1}, s{sG1}")
    for i in range(2):
        e(f"buffer_load_dwordx4 v[{208+4*i}:{211+4*i}], v42, s[{SI}:{SI+3}], s{sT1} offen")
        e(f"s_add_u32 s{sT1}, s{sT1}, {4*3584}")
    e(f"v_lshrrev_b32 v42, 4, v{vLane}")
    e(f"v_and_b32 v43, 15, v{vLane}")
    e(f"s_lshl_b32 s{sT0}, s{sWave}, 4")
    e(f"s_movk_i32 s{sT1}, 3584")
    e(f"s_mul_i32 s{sG1}, s{sHead}, 224")
    for t in range(4):
        e(f"v_add_u32 v{vT2}, {4*t}, v42")
        e(f"v_add_u32 v{vT2}, s{sT0}, v{vT2}")
        e(f"v_and_b32 v{vT3}, 3, v{vT2}")
        e(f"v_lshlrev_b32 v{vT3}, 2, v{vT3}")
        e(f"v_xor_b32 v{vT3}, v{vT3}, v43")
        e(f"v_lshlrev_b32 v{vT3}, 4, v{vT3}")
        e(f"v_mul_lo_u32 v{vT2}, v{vT2}, s{sT1}")
        e(f"v_add3_u32 v{vId+t}, v{vT2}, v{vT3}, s{sG1}")

    def dma(srd_, voff, soff, ldsbase):
        out = []
        for t in range(4):
            out.append((f"s_add_u32 m0, s{sWB}, {ldsbase + t*1024}",
                        f"buffer_load_dwordx4 v{voff+t}, s[{srd_}:{srd_+3}], {soff} offen lds"))
        return out

    def emit_dma(lst):
        for m, l in lst:
            e(m)
            e("s_nop 0")
            e(l)

    cslot = lambda c: (c + 3) % 4

    def chunk_dma(c):
        if c <= 6:
            return [f"s_mov_b32 s{sWoff}, {c*64*3584}"], dma(SI, vId, f"s{sWoff}", VRING + cslot(c) * 16384)
        if c <= 20:
            return [f"s_mov_b32 s{sWoff}, {(c-7)*262144}"], dma(SW, vWd, f"s{sWoff}", VRING + cslot(c) * 16384)
        if c <= 23:
            return [f"s_mov_b32 s{sVoff}, {(c-21)*16384}"], dma(SV, vVd, f"s{sVoff}", VRING + cslot(c) * 16384)
        return [], []

    vq = []
    for c in range(2):
        su, dl = chunk_dma(c)
        for s_ in su: e(s_)
        emit_dma(dl)
        vq += [f"c{c}"] * 4

    vR, vG, vCq = 42, 43, 44
    e(f"v_bfe_u32 v{vR}, v{vLane}, 2, 2")
    e(f"v_bfe_u32 v{vG}, v{vLane}, 4, 1")
    e(f"v_and_b32 v{vCq}, 3, v{vLane}")
    for d in range(4):
        e(f"v_lshrrev_b32 v{vT2}, 1, v{vCq}")
        e(f"v_lshl_add_u32 v{vT2}, v{vG}, 1, v{vT2}")
        e(f"v_add_u32 v{vT2}, {4*d}, v{vT2}")
        e(f"v_lshlrev_b32 v{vT3}, 2, v{vR}")
        e(f"v_xor_b32 v{vT2}, v{vT2}, v{vT3}")
        e(f"v_lshlrev_b32 v{vT2}, 4, v{vT2}")
        e(f"v_and_b32 v{vT3}, 1, v{vCq}")
        e(f"v_lshl_add_u32 v{vT2}, v{vT3}, 3, v{vT2}")
        e(f"v_lshl_add_u32 v{vT3}, v{vT0}, 3, v{vR}")
        e(f"v_lshl_add_u32 v45, v{vT3}, 8, v{vT2}")
        e(f"v_add_u32 v{vIa+d}, {VRING}, v45")
    nl0 = len(a.lines)
    e(f"s_lshl_b32 s{sG2}, s{sWave}, 3")
    for t in range(4):
        e(f"v_add_u32 v{vT2}, {2*t}, v{vT0}")
        e(f"v_add_u32 v{vT2}, s{sG2}, v{vT2}")
        e(f"v_and_b32 v{vT3}, 15, v{vT2}")
        e(f"v_xor_b32 v{vT3}, v{vT3}, v{vT1}")
        e(f"v_lshlrev_b32 v{vT3}, 4, v{vT3}")
        e(f"v_lshl_add_u32 v{vKd+t}, v{vT2}, 9, v{vT3}")
        e(f"v_and_b32 v{vT3}, 3, v{vT2}")
        e(f"v_lshlrev_b32 v{vT3}, 2, v{vT3}")
        e(f"v_xor_b32 v{vT3}, v{vT3}, v{vT1}")
        e(f"v_lshlrev_b32 v{vT3}, 4, v{vT3}")
        e(f"v_lshl_add_u32 v{vVd+t}, v{vT2}, 9, v{vT3}")
        e(f"v_lshl_add_u32 v{vWd+t}, v{vT2}, 13, v{vT3}")
    for d in range(4):
        e(f"v_and_b32 v{vT2}, 1, v{vCq}")
        e(f"v_lshl_add_u32 v{vT2}, v{vG}, 1, v{vT2}")
        e(f"v_add_u32 v{vT2}, {4*d}, v{vT2}")
        e(f"v_lshlrev_b32 v{vT3}, 2, v{vR}")
        e(f"v_xor_b32 v{vT2}, v{vT2}, v{vT3}")
        e(f"v_lshlrev_b32 v{vT2}, 4, v{vT2}")
        e(f"v_lshrrev_b32 v{vT3}, 1, v{vCq}")
        e(f"v_lshl_add_u32 v{vT2}, v{vT3}, 3, v{vT2}")
        e(f"v_lshl_add_u32 v{vT3}, v{vT0}, 3, v{vR}")
        e(f"v_lshl_add_u32 v45, v{vT3}, 9, v{vT2}")
        e(f"v_add_u32 v{vWa+d}, {VRING}, v45")
        e(f"v_lshl_add_u32 v{vT3}, v{vT0}, 2, v{vR}")
        e(f"v_lshl_add_u32 v45, v{vT3}, 9, v{vT2}")
        e(f"v_add_u32 v{vVa+d}, {VRING}, v45")
    for i in range(8):
        e(f"v_add_u32 v{vT2}, {2*i}, v{vT0}")
        e(f"v_and_b32 v{vT3}, 15, v{vT1}")
        e(f"v_xor_b32 v{vT2}, v{vT2}, v{vT3}")
        e(f"v_lshlrev_b32 v{vT2}, 4, v{vT2}")
        e(f"v_lshl_add_u32 v{vKa+i}, v{vT1}, 9, v{vT2}")
    addr_fill = [l.strip() for l in a.lines[nl0:]]
    del a.lines[nl0:]

    vSum, vSq, vS2, vQ2 = 160, 161, 162, 163
    vTP = 168
    e(f"s_mov_b32 s{sT0}, 0x3f803f80")
    e(f"v_mov_b32 v{vOne}, s{sT0}")
    for r in (vSum, vSq, vS2, vQ2):
        e(f"v_mov_b32 v{r}, 0")
    st()
    e("s_waitcnt vmcnt(14)")
    st()
    pend = []
    for c in (2, 3):
        su, dl = chunk_dma(c)
        pend += [(x_, None, None) for x_ in su] + [(m_, l_, f"c{c}") for m_, l_ in dl]
    for i in range(0, 112, 2):
        e(f"v_dot2_f32_bf16 v{vSum}, v{vX+i}, v{vOne}, v{vSum}")
        e(f"v_dot2_f32_bf16 v{vSq}, v{vX+i}, v{vX+i}, v{vSq}")
        e(f"v_dot2_f32_bf16 v{vS2}, v{vX+i+1}, v{vOne}, v{vS2}")
        e(f"v_dot2_f32_bf16 v{vQ2}, v{vX+i+1}, v{vX+i+1}, v{vQ2}")
        if pend and (i // 2) % 5 == 4:
            m_, l_, tg = pend.pop(0)
            e(m_)
            if l_:
                e("s_nop 0")
                e(l_)
                vq.append(tg)
    assert not pend
    e("s_nop 3")
    e(f"v_add_f32 v{vSum}, v{vSum}, v{vS2}")
    e(f"v_add_f32 v{vSq}, v{vSq}, v{vQ2}")
    e(f"v_mov_b32 v{vT2}, v{vSum}")
    e(f"v_mov_b32 v{vT3}, v{vSq}")
    e("s_nop 1")
    e(f"v_permlane32_swap_b32 v{vT2}, v{vSum}")
    e(f"v_permlane32_swap_b32 v{vT3}, v{vSq}")
    e("s_nop 1")
    e(f"v_add_f32 v{vSum}, v{vSum}, v{vT2}")
    e(f"v_add_f32 v{vSq}, v{vSq}, v{vT3}")
    ln_stats(e, vSum, vSq, vT2, vT3, 448)
    kd = []
    for j in range(4):
        kd.append((f"s_mov_b32 s{sKoff}, {j*16384}", None))
        kd += dma(SK, vKd, f"s{sKoff}", j * 16384)
    for g4 in range(28):
        xs = [vX + 4 * g4 + i for i in range(4)]
        ts = [vTP + 2 * i for i in range(4)]
        for x, t in zip(xs, ts): e(f"v_lshlrev_b32 v{t}, 16, v{x}")
        for x, t in zip(xs, ts): e(f"v_and_b32 v{t+1}, s{sMask}, v{x}")
        for x, t in zip(xs, ts): e(f"v_sub_f32 v{t}, v{t}, v{vSum}")
        for x, t in zip(xs, ts): e(f"v_sub_f32 v{t+1}, v{t+1}, v{vSum}")
        for x, t in zip(xs, ts): e(f"v_cvt_pk_bf16_f32 v{x}, v{t}, v{t+1}")
        for x, t in zip(xs, ts): e(f"v_lshlrev_b32 v{t}, 16, v{x}")
        for x, t in zip(xs, ts): e(f"v_and_b32 v{t+1}, s{sMask}, v{x}")
        for x, t in zip(xs, ts): e(f"v_mul_f32 v{t}, v{t}, v{vSq}")
        for x, t in zip(xs, ts): e(f"v_mul_f32 v{t+1}, v{t+1}, v{vSq}")
        for x, t in zip(xs, ts): e(f"v_cvt_pk_bf16_f32 v{x}, v{t}, v{t+1}")
        for i, x in enumerate(xs): e(f"v_accvgpr_write_b32 a{aX+4*g4+i}, v{x}")
    st()

    def c_reads(c, fbase):
        out = []
        if c <= 6:
            for ks in range(4):
                for bn in range(4):
                    f = ks * 4 + bn
                    for s_ in range(2):
                        off = cslot(c) * 16384 + (16 * ks + 4 * s_) * 256
                        d = fbase + 4 * f + 2 * s_
                        out.append((f"ds_read_b64_tr_b16 v[{d}:{d+1}], v{vIa + bn} offset:{off}", regs(d, 2)))
        elif c <= 20:
            for m in range(2):
                for db in range(8):
                    f = m * 8 + db
                    for s_ in range(2):
                        off = cslot(c) * 16384 + (16 * m + 4 * s_) * 512 + (db >> 2) * 256
                        d = fbase + 4 * f + 2 * s_
                        out.append((f"ds_read_b64_tr_b16 v[{d}:{d+1}], v{vWa + (db & 3)} offset:{off}", regs(d, 2)))
        return out

    def c_mfmas(c, fbase):
        out = []
        if c <= 6:
            for ks in range(4):
                for bn in range(4):
                    f = ks * 4 + bn
                    kk = 4 * c + ks
                    z = vZ[bn]
                    cc = f"v[{z}:{z+15}]" if kk else "0"
                    out.append(f"v_mfma_f32_32x32x16_bf16 v[{z}:{z+15}], v[{fbase+4*f}:{fbase+4*f+3}], a[{aX+4*kk}:{aX+4*kk+3}], {cc}")
        else:
            ci = c - 7
            for m in range(2):
                for db in range(8):
                    f = m * 8 + db
                    kk = 2 * ci + m
                    cc = f"a[{aO+16*db}:{aO+16*db+15}]" if kk else "0"
                    out.append(f"v_mfma_f32_32x32x16_bf16 a[{aO+16*db}:{aO+16*db+15}], v[{fbase+4*f}:{fbase+4*f+3}], a[{aX+4*kk}:{aX+4*kk+3}], {cc}")
        return out

    c1 = -2.0 * LOG2E * 0.7978845608028654
    c2 = c1 * 0.044715
    gel = [f"s_mov_b32 s{sG1}, {f32hex(c1)}", f"s_mov_b32 s{sG2}, {f32hex(c2)}", f"v_mov_b32 v{vC1}, s{sG1}"]
    tt = 96
    osets = [232, 236]
    k = 0
    zst = []
    for bn in range(4):
        for gp in range(2):
            if bn == 3 and gp == 1:
                continue
            s8 = vZ[bn] + 8 * gp
            o = osets[k % 2]
            k += 1
            for i in range(4): gel.append(f"v_cvt_pk_bf16_f32 v{o+i}, v{s8+2*i}, v{s8+2*i+1}")
            for i in range(4):
                gel.append(f"v_lshlrev_b32 v{s8+2*i}, 16, v{o+i}")
                gel.append(f"v_and_b32 v{s8+2*i+1}, s{sMask}, v{o+i}")
            for i in range(8): gel.append(f"v_mul_f32 v{tt+i}, v{s8+i}, v{s8+i}")
            for i in range(8): gel.append(f"v_fma_f32 v{tt+i}, v{tt+i}, s{sG2}, v{vC1}")
            for i in range(8): gel.append(f"v_mul_f32 v{tt+i}, v{tt+i}, v{s8+i}")
            for i in range(8): gel.append(f"v_exp_f32 v{tt+i}, v{tt+i}")
            for i in range(8): gel.append(f"v_add_f32 v{tt+i}, 1.0, v{tt+i}")
            for i in range(8): gel.append(f"v_rcp_f32 v{tt+i}, v{tt+i}")
            for i in range(8): gel.append(f"v_mul_f32 v{tt+i}, v{s8+i}, v{tt+i}")
            for i in range(4): gel.append(f"v_cvt_pk_bf16_f32 v{s8+i}, v{tt+2*i}, v{tt+2*i+1}")
            gel.append("s_nop 1")
            gel.append(f"v_permlane32_swap_b32 v{s8}, v{s8+2}")
            gel.append(f"v_permlane32_swap_b32 v{s8+1}, v{s8+3}")
            zst.append(f"buffer_store_dwordx4 v[{s8}:{s8+3}], v{vZo}, s[{SZ}:{SZ+3}], 0 offen offset:{(32*bn+16*gp)*2} sc0 sc1")

    fb = [vKf, vVf]

    def wait_chunk(c):
        tag = f"c{c}"
        last = max(i for i, t in enumerate(vq) if t == tag)
        n = len(vq) - 1 - last
        return n

    e(f"s_waitcnt vmcnt({wait_chunk(0)})")
    e("s_barrier")
    for ins, d in c_reads(0, fb[0]):
        a.lds_op(ins, d)
    for c in range(21):
        n = wait_chunk(c + 1) if c + 1 <= 20 else 63
        e(f"s_waitcnt vmcnt({min(n,63)}) lgkmcnt(0)")
        a.lds_drained()
        e("s_barrier")
        su, dl = chunk_dma(c + 4)
        for s_ in su: e(s_)
        rd = c_reads(c + 1, fb[(c + 1) % 2]) if c + 1 <= 20 else []
        ms = c_mfmas(c, fb[c % 2])
        for gi, mi in enumerate(ms):
            e(mi)
            for _ in range(3):
                if rd:
                    ins, d = rd.pop(0)
                    a.lds_op(ins, d)
            if gi >= 2 and gi % 2 == 0 and dl:
                m0i, ld = dl.pop(0)
                e(m0i)
                e("s_nop 0")
                e(ld)
                vq.append(f"c{c+4}")
            if c <= 2:
                for _ in range(4):
                    if addr_fill:
                        e(addr_fill.pop(0))
            if c >= 8 and gi in (11, 13, 15) and kd:
                m0i, ld = kd.pop(0)
                e(m0i)
                if ld is None:
                    m0i, ld = kd.pop(0)
                    e(m0i)
                e("s_nop 0")
                e(ld)
                vq.append("k")
            if c >= 8:
                for _ in range(2 if gi < 11 else 5):
                    if gel:
                        g_ = gel.pop(0)
                        if isinstance(g_, tuple):
                            e(g_[1])
                            vq.append("z")
                        else:
                            e(g_)
        assert not rd and not dl
    assert not gel, len(gel)
    assert not kd and not addr_fill
    for z_ in zst:
        e(z_)
        vq.append("z")
    st()
    e("s_nop 15")
    e("s_nop 7")
    tq = 104
    for db in range(8):
        for i in range(16): e(f"v_accvgpr_read_b32 v{tq+i}, a{aO+16*db+i}")
        for i in range(16): e(f"v_mul_f32 v{tq+i}, s{sC}, v{tq+i}")
        for i in range(8): e(f"v_cvt_pk_bf16_f32 v{tq+16+i}, v{tq+2*i}, v{tq+2*i+1}")
        for i in range(8): e(f"v_accvgpr_write_b32 a{aQ+8*db+i}, v{tq+16+i}")
        for i in range(16): e(f"v_accvgpr_write_b32 a{aO+16*db+i}, 0")

    def k_reads(slot):
        out = []
        for ks in range(16):
            d = vKf + 4 * ks
            off = slot * 16384 + (ks >> 3) * 256
            out.append((f"ds_read_b128 v[{d}:{d+3}], v{vKa + (ks & 7)} offset:{off}", regs(d, 4)))
        return out

    def v_reads(slot):
        out = []
        for m in range(2):
            for db in range(8):
                f = m * 8 + db
                for s_ in range(2):
                    off = slot * 16384 + (16 * m + 8 * s_) * 512 + (db >> 2) * 256
                    d = vVf + 4 * f + 2 * s_
                    out.append((f"ds_read_b64_tr_b16 v[{d}:{d+1}], v{vVa + (db & 3)} offset:{off}", regs(d, 2)))
        return out

    def qk_mfma(S, ks, c0):
        c = f"v[{S}:{S+15}]" if ks else c0
        return f"v_mfma_f32_32x32x16_bf16 v[{S}:{S+15}], v[{vKf+4*ks}:{vKf+4*ks+3}], a[{aQ+4*ks}:{aQ+4*ks+3}], {c}"

    def max_ops(S):
        ops = [f"v_max3_f32 v{vMax}, v{S}, v{S+1}, v{S+2}"]
        for i in range(3, 15, 2):
            ops.append(f"v_max3_f32 v{vMax}, v{vMax}, v{S+i}, v{S+i+1}")
        ops.append(f"v_max_f32 v{vMax}, v{vMax}, v{S+15}")
        return ops

    lastk = max(i for i, t in enumerate(vq) if t == "k")
    e(f"s_waitcnt vmcnt({len(vq) - 1 - lastk})")
    e("s_barrier")
    for ins, d in k_reads(0):
        a.lds_op(ins, d)
    for ks in range(16):
        a.lds_need(regs(vKf + 4 * ks, 4))
        e(qk_mfma(vS[0], ks, "0"))
    lastz = max(i for i, t in enumerate(vq) if t in ("c21",))
    e(f"s_waitcnt vmcnt({len(vq) - 1 - lastz})")
    e("s_barrier")
    e(f"s_mov_b32 s{sKoff}, {4*16384}")
    emit_dma(dma(SK, vKd, f"s{sKoff}", 0))
    for ins, d in k_reads(1):
        a.lds_op(ins, d)
    e("s_nop 7")
    for o in max_ops(vS[0]):
        e(o)
    e(f"v_mov_b32 v{vT2}, v{vMax}")
    e("s_nop 1")
    e(f"v_permlane32_swap_b32 v{vT2}, v{vMax}")
    e("s_nop 1")
    e(f"v_max_f32 v{vM}, v{vT2}, v{vMax}")
    for i in range(16):
        e(f"v_sub_f32 v{vS[0]+i}, v{vS[0]+i}, v{vM}")
        e(f"v_sub_f32 v{vNM+i}, 0, v{vM}")
    e(f"v_mov_b32 v{vL}, 0")
    e(f"s_mov_b32 s{sKoff}, {5*16384}")
    e(f"s_mov_b32 s{sVoff}, {3*16384}")
    e(f"s_mov_b32 s{sTrip}, 0")
    st()
    st.cyc()

    a.label("L_attn_loop")
    for u in range(4):
        Sc, Sn = vS[u % 2], vS[(u + 1) % 2]
        e("s_waitcnt vmcnt(15) lgkmcnt(0)")
        a.lds_drained()
        e("s_barrier")
        vr_ = v_reads(u)
        for g in range(16):
            e(qk_mfma(Sn, g, f"v[{vNM}:{vNM+15}]"))
            for k in range(2):
                ins, d = vr_.pop(0)
                a.lds_op(ins, d)
            e(f"v_exp_f32 v{Sc+g}, v{Sc+g}")
            if g >= 2 and g % 2 == 0:
                k = (g - 2) // 2
                e(f"v_cvt_pk_bf16_f32 v{vP+k}, v{Sc+2*k}, v{Sc+2*k+1}")
        kr = k_reads((u + 2) % 4)
        dl = dma(SV, vVd, f"s{sVoff}", VRING + ((u + 3) % 4) * 16384) + dma(SK, vKd, f"s{sKoff}", ((u + 1) % 4) * 16384)
        mx = max_ops(Sn)
        pend_ld = None
        for g in range(16):
            m, db = g // 8, g % 8
            f = g
            a.lds_need(regs(vVf + 4 * f, 4))
            e(f"v_mfma_f32_32x32x16_bf16 a[{aO+16*db}:{aO+16*db+15}], v[{vVf+4*f}:{vVf+4*f+3}], v[{vP+4*m}:{vP+4*m+3}], a[{aO+16*db}:{aO+16*db+15}]")
            if pend_ld:
                e(pend_ld)
                pend_ld = None
            if g == 0:
                e(f"v_cvt_pk_bf16_f32 v{vP+7}, v{Sc+14}, v{Sc+15}")
            if g < 8:
                for k in range(2):
                    ins, d = kr.pop(0)
                    a.lds_op(ins, d)
            if use_dot:
                if g % 2 == 1:
                    e(f"v_dot2_f32_bf16 v{vL}, v{vP+g//2}, v{vOne}, v{vL}")
            else:
                e(f"v_add_f32 v{vL}, v{vL}, v{Sc+g}")
            if 5 <= g < 13:
                e(mx.pop(0))
            if g >= 7 and dl:
                m0i, ld = dl.pop(0)
                e(m0i)
                pend_ld = ld
            if g == 13:
                e(f"v_cmp_lt_f32 vcc, s{sThr}, v{vMax}")
        if pend_ld:
            e(pend_ld)
        assert not dl and not mx and not kr
        e(f"s_add_u32 s{sKoff}, s{sKoff}, 16384")
        e(f"s_add_u32 s{sVoff}, s{sVoff}, 16384")
        e(f"s_cbranch_vccnz L_attn_rare{u}")
        a.label(f"L_attn_back{u}")
    e(f"s_add_u32 s{sTrip}, s{sTrip}, 1")
    e(f"s_cmp_le_u32 s{sTrip}, 5")
    e("s_cbranch_scc1 L_attn_hook")
    e(f"s_cmp_lt_u32 s{sTrip}, 15")
    e("s_cbranch_scc1 L_attn_loop")
    e(f"s_cmp_eq_u32 s{sTrip}, 15")
    e("s_cbranch_scc1 L_attn_hookB")
    st.cyc()
    st()
    TAIL(a, e, st, locals())
    st.dump()
    a.label("L_attn_end")
    e("s_endpgm")

    hP, hA, hZ, hO = 254, 255, 232, 248
    a.label("L_attn_hookB")
    e(f"v_mov_b32 v{hA}, 64")
    e(f"global_load_dword v{hP}, v{hA}, s[62:63] sc0 sc1")
    e("s_load_dwordx2 s[40:41], s[0:1], 32")
    e("s_load_dwordx2 s[42:43], s[0:1], 56")
    e("s_load_dwordx2 s[44:45], s[0:1], 64")
    vOd = 236
    e(f"s_lshl_b32 s{sT0}, s{sWave}, 2")
    for t in range(4):
        e(f"v_xor_b32 v{vOd+t}, {t << 2}, v{vLane}")
        e(f"v_lshlrev_b32 v{vOd+t}, 4, v{vOd+t}")
        e(f"s_add_u32 s{sT1}, s{sT0}, {t}")
        e(f"s_mul_i32 s{sT1}, s{sT1}, 896")
        e(f"v_add_u32 v{vOd+t}, s{sT1}, v{vOd+t}")
    e("s_waitcnt lgkmcnt(0)")
    e(f"s_mul_i32 s{sT0}, s{sHead}, {256*896}")
    e(f"s_add_u32 s{SX}, s40, s{sT0}")
    e(f"s_addc_u32 s{SX+1}, s41, 0")
    e(f"s_sub_u32 s{SX+2}, {4096*896}, s{sT0}")
    e(f"s_mov_b32 s{SX+3}, 0x20000")
    for c in range(2):
        e(f"s_mov_b32 s{sT0}, {c*14336}")
        for t in range(4):
            e(f"s_add_u32 m0, s{sWB}, {98304 + ((c + 2) % 4)*16384 + t*1024}")
            e("s_nop 0")
            e(f"buffer_load_dwordx4 v{vOd+t}, s[{SX}:{SX+3}], s{sT0} offen lds")
    srd(e, SI, 42, 43, 0, 2048 * 4096)
    e(f"s_bfe_u32 s{sT0}, s2, 0x20001")
    e(f"s_lshl_b32 s{sT0}, s{sT0}, 21")
    e(f"s_lshr_b32 s{sT1}, s2, 3")
    e(f"s_lshl_b32 s{sT1}, s{sT1}, 16")
    e(f"s_add_u32 s{sT0}, s{sT0}, s{sT1}")
    e(f"v_lshlrev_b32 v240, 4, v0")
    for i in range(16):
        e(f"buffer_load_dwordx4 v[244:247], v240, s[{SI}:{SI+3}], s{sT0} offen")
        e(f"s_add_u32 s{sT0}, s{sT0}, 4096")
    e("s_branch L_attn_loop")
    a.label("L_attn_hook")
    e(f"s_cmp_eq_u32 s{sTrip}, 2")
    e("s_cbranch_scc1 L_attn_hook1")
    e(f"s_cmp_eq_u32 s{sTrip}, 3")
    e("s_cbranch_scc1 L_attn_hook2")
    e(f"s_cmp_eq_u32 s{sTrip}, 4")
    e("s_cbranch_scc1 L_attn_hook3")
    e(f"s_cmp_eq_u32 s{sTrip}, 5")
    e("s_cbranch_scc1 L_attn_hook4")
    e(f"s_cmp_lt_u32 s{sHead}, 8")
    e("s_cbranch_scc1 L_attn_loop")
    e(f"s_cmp_lg_u32 s{sWave}, 0")
    e("s_cbranch_scc1 L_attn_loop")
    e(f"v_mov_b32 v{hP}, 1")
    e(f"s_lshl_b32 s{sT0}, s{sQb}, 2")
    e(f"v_mov_b32 v{hA}, s{sT0}")
    e("s_mov_b64 s[64:65], exec")
    e("s_mov_b64 exec, 1")
    e(f"global_atomic_add v{hA}, v{hP}, s[62:63] sc1")
    e("s_mov_b64 exec, s[64:65]")
    e("s_branch L_attn_loop")
    a.label("L_attn_hook1")
    e(f"s_lshl_b32 s{sT0}, s{sQb}, 2")
    e(f"v_mov_b32 v{hA}, s{sT0}")
    e(f"global_load_dword v{hP}, v{hA}, s[62:63] sc0 sc1")
    e("s_branch L_attn_loop")
    a.label("L_attn_hook2")
    e(f"v_readfirstlane_b32 s{sT1}, v{hP}")
    e(f"s_cmp_ge_u32 s{sT1}, 8")
    e("s_cbranch_scc1 L_attn_h2ok")
    a.label("L_attn_h2poll")
    e("s_sleep 8")
    e(f"global_load_dword v{hP}, v{hA}, s[62:63] sc0 sc1")
    e("s_waitcnt vmcnt(0)")
    e(f"v_readfirstlane_b32 s{sT1}, v{hP}")
    e(f"s_cmp_lt_u32 s{sT1}, 8")
    e("s_cbranch_scc1 L_attn_h2poll")
    a.label("L_attn_h2ok")
    hZ = 232
    srd(e, SX, 46, 47, WS_Z2, 2048 * 1792)
    e(f"v_lshrrev_b32 v{hO}, 5, v0")
    e(f"s_lshl_b32 s{sT0}, s2, 3")
    e(f"v_add_u32 v{hO}, s{sT0}, v{hO}")
    e(f"s_movk_i32 s{sT0}, 1792")
    e(f"v_mul_lo_u32 v{hO}, v{hO}, s{sT0}")
    e(f"v_and_b32 v249, 31, v0")
    e(f"v_lshl_add_u32 v{hO}, v249, 4, v{hO}")
    e(f"v_cmp_gt_u32 vcc, 28, v249")
    e(f"v_mov_b32 v250, 0x40000000")
    e("s_nop 1")
    e(f"v_cndmask_b32 v{hO}, v250, v{hO}, vcc")
    for t in range(4):
        e(f"buffer_load_dwordx4 v[{hZ+4*t}:{hZ+4*t+3}], v{hO}, s[{SX}:{SX+3}], 0 offen offset:{448*t} sc0 sc1")
    e("s_branch L_attn_loop")
    a.label("L_attn_hook3")
    h0, h1, h2, h3, h4, h5 = 249, 250, 251, 252, 253, 254
    srd(e, SX, 46, 47, WS_Z2N, 16 * 2048 * 128)
    e(f"v_mov_b32 v{h0}, 0")
    e(f"v_mov_b32 v{h1}, 0")
    for t in range(16):
        e(f"v_dot2_f32_bf16 v{h0}, v{hZ+t}, v{vOne}, v{h0}")
        e(f"v_dot2_f32_bf16 v{h1}, v{hZ+t}, v{hZ+t}, v{h1}")
    e("s_nop 3")
    for x in (1, 2, 4, 8, 16):
        e(f"ds_swizzle_b32 v{h2}, v{h0} offset:{(x << 10) | 0x1f}")
        e(f"ds_swizzle_b32 v{h3}, v{h1} offset:{(x << 10) | 0x1f}")
        e("s_waitcnt lgkmcnt(0)")
        e(f"v_add_f32 v{h0}, v{h0}, v{h2}")
        e(f"v_add_f32 v{h1}, v{h1}, v{h3}")
    ln_stats(e, h0, h1, h2, h3, 896)
    for t0_ in range(0, 16, 2):
        ps = [(hZ + t0_, h2, h3), (hZ + t0_ + 1, h4, h5)]
        for z, p, q in ps: e(f"v_lshlrev_b32 v{p}, 16, v{z}")
        for z, p, q in ps: e(f"v_and_b32 v{q}, s{sMask}, v{z}")
        for z, p, q in ps: e(f"v_sub_f32 v{p}, v{p}, v{h0}")
        for z, p, q in ps: e(f"v_sub_f32 v{q}, v{q}, v{h0}")
        for z, p, q in ps: e(f"v_cvt_pk_bf16_f32 v{p}, v{p}, v{q}")
        for z, p, q in ps: e(f"v_and_b32 v{q}, s{sMask}, v{p}")
        for z, p, q in ps: e(f"v_lshlrev_b32 v{p}, 16, v{p}")
        for z, p, q in ps: e(f"v_mul_f32 v{p}, v{p}, v{h1}")
        for z, p, q in ps: e(f"v_mul_f32 v{q}, v{q}, v{h1}")
        for z, p, q in ps: e(f"v_cvt_pk_bf16_f32 v{z}, v{p}, v{q}")
    e(f"v_lshrrev_b32 v{hO}, 5, v0")
    e(f"s_lshl_b32 s{sT0}, s2, 3")
    e(f"v_add_u32 v{hO}, s{sT0}, v{hO}")
    e(f"v_lshlrev_b32 v{hO}, 7, v{hO}")
    e(f"v_and_b32 v{h2}, 31, v0")
    e(f"v_mul_u32_u24 v{h3}, 37, v{h2}")
    e(f"v_lshrrev_b32 v{h3}, 8, v{h3}")
    e(f"v_mul_u32_u24 v{h4}, 7, v{h3}")
    e(f"v_sub_u32 v{h4}, v{h2}, v{h4}")
    e(f"v_lshl_add_u32 v{hO}, v{h4}, 4, v{hO}")
    e(f"v_lshl_add_u32 v{hO}, v{h3}, 18, v{hO}")
    e(f"v_cmp_gt_u32 vcc, 28, v{h2}")
    e(f"v_mov_b32 v{h5}, 0x40000000")
    e("s_nop 1")
    e(f"v_cndmask_b32 v{hO}, v{h5}, v{hO}, vcc")
    for t in range(4):
        e(f"s_mov_b32 s{sT0}, {t*4*262144}")
        e(f"buffer_store_dwordx4 v[{hZ+4*t}:{hZ+4*t+3}], v{hO}, s[{SX}:{SX+3}], s{sT0} offen sc0 sc1")
    e("s_branch L_attn_loop")
    a.label("L_attn_hook4")
    e(f"s_cmp_lg_u32 s{sWave}, 0")
    e("s_cbranch_scc1 L_attn_loop")
    e(f"v_mov_b32 v{hP}, 1")
    e(f"v_mov_b32 v{hA}, 64")
    e("s_mov_b64 s[64:65], exec")
    e("s_mov_b64 exec, 1")
    e(f"global_atomic_add v{hA}, v{hP}, s[62:63] sc1")
    e("s_mov_b64 exec, s[64:65]")
    e("s_branch L_attn_loop")

    for u in range(4):
        Sn = vS[(u + 1) % 2]
        a.label(f"L_attn_rare{u}")
        if u == 3:
            e(f"s_cmp_eq_u32 s{sTrip}, 15")
            e(f"s_cbranch_scc1 L_attn_back{u}")
        e("s_nop 15")
        e(f"v_mov_b32 v{vT2}, v{vMax}")
        e("s_nop 1")
        e(f"v_permlane32_swap_b32 v{vT2}, v{vMax}")
        e("s_nop 1")
        e(f"v_max3_f32 v{vT2}, v{vT2}, v{vMax}, 0")
        e(f"v_sub_f32 v{vAl}, 0, v{vT2}")
        e(f"v_exp_f32 v{vAl}, v{vAl}")
        for i in range(16):
            e(f"v_sub_f32 v{Sn+i}, v{Sn+i}, v{vT2}")
            e(f"v_sub_f32 v{vNM+i}, v{vNM+i}, v{vT2}")
        e(f"v_mul_f32 v{vL}, v{vL}, v{vAl}")
        tr = [40, 41, 42, 43]
        for r in range(0, 128, 4):
            for i in range(4):
                e(f"v_accvgpr_read_b32 v{tr[i]}, a{aO+r+i}")
            for i in range(4):
                e(f"v_mul_f32 v{tr[i]}, v{tr[i]}, v{vAl}")
            for i in range(4):
                e(f"v_accvgpr_write_b32 a{aO+r+i}, v{tr[i]}")
        e("s_nop 1")
        e(f"s_branch L_attn_back{u}")
    return a.text(), kernel_desc(name, 256 + 240, 256, 100)


def TAIL(a, e, st, L):
    sWave, sHead, sQb, sWB, sT0, sT1, sMask = [L[k] for k in ("sWave", "sHead", "sQb", "sWB", "sT0", "sT1", "sMask")]
    vL, vAl, vT2, vT3, vLane, aO, prefetch = [L[k] for k in ("vL", "vAl", "vT2", "vT3", "vLane", "aO", "prefetch")]
    ORING = 98304
    SWO, SP, SGX, SGW, SZ1, SHM, SB = 16, 8, 12, 4, 20, 48, 52
    sOo, sRow0, sCol0, sRowQ = 28, 29, 30, 31
    vOd = 4
    vOa = 8
    vPo = 12
    vPK = 48
    fbs = [112, 168]
    e("s_waitcnt vmcnt(0)")
    e("s_barrier")
    e(f"v_mov_b32 v{vT2}, v{vL}")
    for t in range(4):
        e(f"v_mov_b32 v{vOd+t}, v{236+t}")
    e(f"v_permlane32_swap_b32 v{vT2}, v{vL}")
    e("s_nop 1")
    e(f"v_add_f32 v{vL}, v{vT2}, v{vL}")
    e(f"v_rcp_f32 v{vAl}, v{vL}")
    vq = ["c0"] * 4 + ["c1"] * 4

    def odma(c):
        out = []
        for t in range(4):
            out.append((f"s_add_u32 m0, s{sWB}, {ORING + ((c + 2) % 4)*16384 + t*1024}",
                        f"buffer_load_dwordx4 v{vOd+t}, s[{SWO}:{SWO+3}], s{sOo} offen lds"))
        return out
    for c in range(2, 4):
        e(f"s_mov_b32 s{sOo}, {c*14336}")
        for m_, l_ in odma(c):
            e(m_)
            e("s_nop 0")
            e(l_)
            vq.append(f"c{c}")
    e(f"v_readfirstlane_b32 s{sT1}, v254")
    e(f"s_cmp_ge_u32 s{sT1}, 256")
    e("s_cbranch_scc1 L_attn_bok")
    a.label("L_attn_bpoll")
    e("s_sleep 8")
    e(f"global_load_dword v254, v255, s[62:63] sc0 sc1")
    e("s_waitcnt vmcnt(0)")
    e(f"v_readfirstlane_b32 s{sT1}, v254")
    e(f"s_cmp_lt_u32 s{sT1}, 256")
    e("s_cbranch_scc1 L_attn_bpoll")
    a.label("L_attn_bok")
    srd(e, SGX, 42, 43, 0, 2048 * 4096)
    srd(e, SZ1, 46, 47, WS_Z1, 2048 * 1792)
    srd(e, SHM, 46, 47, WS_HM, 2048 * 1792)
    srd(e, SB, 44, 45, 0, 4096)
    e(f"s_mul_i32 s{sT0}, s{sHead}, {2048*896}")
    e(f"s_add_u32 s{sT0}, s{sT0}, {WS_SP}")
    srd(e, SP, 46, 47, f"s{sT0}", 2048 * 896)
    e(f"s_lshl_b32 s{sRowQ}, s{sQb}, 7")
    e(f"s_bfe_u32 s{sT0}, s2, 0x20001")
    e(f"s_lshl_b32 s{sT0}, s{sT0}, 2")
    e(f"s_bfe_u32 s{sT1}, s2, 0x20003")
    e(f"s_add_u32 s{sT0}, s{sT0}, s{sT1}")
    e(f"s_lshl_b32 s{sRow0}, s{sT0}, 7")
    e(f"s_and_b32 s{sT0}, s2, 1")
    e(f"s_lshl_b32 s{sT0}, s{sT0}, 3")
    e(f"s_lshr_b32 s{sT1}, s2, 5")
    e(f"s_add_u32 s{sT0}, s{sT0}, s{sT1}")
    e(f"s_mul_i32 s{sCol0}, s{sT0}, 56")
    e(f"s_lshl_b32 s{sT0}, s{sT0}, 18")
    e(f"s_add_u32 s{sT0}, s{sT0}, {WS_Z2N}")
    srd(e, SGW, 46, 47, f"s{sT0}", 2048 * 128)
    e("s_mov_b32 s65, 0")
    e("s_lshr_b32 s66, s2, 3")
    e("s_lshl_b32 s67, s66, 13")
    e("s_lshl_b32 s66, s66, 7")
    fill = []

    def mid():
        for _ in range(24):
            vq.append("g")
        vR, vG, vCq, vH = 42, 43, 44, 45
        e(f"v_bfe_u32 v{vR}, v{vLane}, 2, 2")
        e(f"v_bfe_u32 v{vG}, v{vLane}, 4, 1")
        e(f"v_and_b32 v{vCq}, 3, v{vLane}")
        e(f"v_lshrrev_b32 v{vH}, 5, v{vLane}")
        for d in range(4):
            e(f"v_lshrrev_b32 v{vT2}, 1, v{vCq}")
            e(f"v_lshl_add_u32 v{vT2}, v{vG}, 1, v{vT2}")
            e(f"v_add_u32 v{vT2}, {4*d}, v{vT2}")
            e(f"v_lshlrev_b32 v{vT3}, 2, v{vR}")
            e(f"v_xor_b32 v{vT2}, v{vT2}, v{vT3}")
            e(f"v_lshlrev_b32 v{vT2}, 4, v{vT2}")
            e(f"v_and_b32 v{vT3}, 1, v{vCq}")
            e(f"v_lshl_add_u32 v{vT2}, v{vT3}, 3, v{vT2}")
            e(f"v_lshl_add_u32 v{vT3}, v{vH}, 3, v{vR}")
            e(f"v_lshl_add_u32 v{vT2}, v{vT3}, 10, v{vT2}")
            e(f"v_add_u32 v{vOa+d}, {ORING}, v{vT2}")
        e(f"s_lshl_b32 s{sT0}, s{sQb}, 2")
        e(f"s_add_u32 s{sT0}, s{sT0}, s{sWave}")
        e(f"s_mul_i32 s{sT0}, s{sT0}, 28672")
        e(f"v_lshlrev_b32 v{vPo}, 4, v{vLane}")
        e(f"v_add_u32 v{vPo}, s{sT0}, v{vPo}")
        for db in range(8):
            t = 112 + 16 * (db % 2)
            for i in range(16): e(f"v_accvgpr_read_b32 v{t+i}, a{aO+16*db+i}")
            for i in range(16): e(f"v_mul_f32 v{t+i}, v{t+i}, v{vAl}")
            for i in range(8): e(f"v_cvt_pk_bf16_f32 v{vPK+8*db+i}, v{t+2*i}, v{t+2*i+1}")

        def oreads(c, fb):
            out = []
            for nb in range(14):
                for s_ in range(2):
                    off = ((c + 2) % 4) * 16384 + 4 * s_ * 1024 + (nb >> 2) * 256
                    d = fb + 4 * nb + 2 * s_
                    out.append((f"ds_read_b64_tr_b16 v[{d}:{d+1}], v{vOa + (nb & 3)} offset:{off}", regs(d, 2)))
            return out

        def waitc(c):
            last = max(i for i, t in enumerate(vq) if t == f"c{c}")
            return min(63, len(vq) - 1 - last)
        e(f"s_waitcnt vmcnt({waitc(0)})")
        e("s_barrier")
        for ins, d in oreads(0, fbs[0]):
            a.lds_op(ins, d)
        for c in range(16):
            n = waitc(c + 1) if c + 1 < 16 else 63
            e(f"s_waitcnt vmcnt({n}) lgkmcnt(0)")
            a.lds_drained()
            e("s_barrier")
            dl = []
            if c + 4 < 16:
                e(f"s_mov_b32 s{sOo}, {(c+4)*14336}")
                dl = odma(c + 4)
            rd = oreads(c + 1, fbs[(c + 1) % 2]) if c + 1 < 16 else []
            fb = fbs[c % 2]
            for nb in range(14):
                cc = f"a[{16*nb}:{16*nb+15}]" if c else "0"
                e(f"v_mfma_f32_32x32x16_bf16 a[{16*nb}:{16*nb+15}], v[{fb+4*nb}:{fb+4*nb+3}], v[{vPK+4*c}:{vPK+4*c+3}], {cc}")
                for _ in range(3):
                    if rd:
                        ins, d = rd.pop(0)
                        a.lds_op(ins, d)
                if nb >= 2 and nb % 2 == 0 and dl:
                    m_, l_ = dl.pop(0)
                    e(m_)
                    e("s_nop 0")
                    e(l_)
                    vq.append(f"c{c+4}")
            assert not rd and not dl
        st()
        for nb in range(14):
            t = 176 + 24 * (nb % 2)
            for i in range(16): fill.append(f"v_accvgpr_read_b32 v{t+8+i}, a{16*nb+i}")
            for i in range(8): fill.append(f"v_cvt_pk_bf16_f32 v{t+i}, v{t+8+2*i}, v{t+8+2*i+1}")
            fill.append("s_nop 1")
            for gp in range(2):
                fill.append(f"v_permlane32_swap_b32 v{t+4*gp}, v{t+4*gp+2}")
                fill.append(f"v_permlane32_swap_b32 v{t+4*gp+1}, v{t+4*gp+3}")
            fill.append(f"s_movk_i32 s{sT1}, {nb*2048}")
            for gp in range(2):
                fill.append(f"buffer_store_dwordx4 v[{t+4*gp}:{t+4*gp+3}], v{vPo}, s[{SP}:{SP+3}], s{sT1} offen offset:{gp*1024}")

    g = gemm_core(a, "ag", 128, 64, 4, 1, 2048, 64, 6, SGX, SGW, 4096, 128, sRow0, 65, sWave, 224, 56,
                  fragbase=48, mid_cb=mid, fill=fill, peel=8, nfill=8, rolladdr=True, defer=2, sX0=66, sW0=67, wrap=(0xfff, 0x3ffff))
    assert g.addr_end <= 256
    st()
    vOff, vOffM, vB = g.tmp[1], g.tmp[2], g.tmp[3]
    out_offsets(a, g, sRow0, sCol0, 1792, vOff, sT0)
    t0 = g.tmp[0]
    e(f"v_lshlrev_b32 v{g.tmp[4]}, 1, v{t0}")
    e(f"buffer_load_ushort v{vB}, v{g.tmp[4]}, s[{SB}:{SB+3}], 0 offen")
    e(f"v_lshlrev_b32 v{vOffM}, 30, v{g.vH}")
    e(f"v_add_u32 v{vOffM}, v{vOffM}, v{vOff}")
    f = 48
    for bn in range(2):
        for gp in range(2):
            d = f + 4 * (2 * bn + gp)
            vo = vOffM if (bn == 1 and gp == 1) else vOff
            e(f"buffer_load_dwordx4 v[{d}:{d+3}], v{vo}, s[{SZ1}:{SZ1+3}], 0 offen offset:{(32*bn+16*gp)*2}")
    e("s_waitcnt vmcnt(0)")
    e(f"v_lshlrev_b32 v{vB}, 16, v{vB}")
    w = f + 16
    for bn in range(2):
        acc = g.vAcc + 16 * bn
        for gp in range(2):
            s8 = acc + 8 * gp
            z = f + 4 * (2 * bn + gp)
            for i in range(4):
                e(f"v_cvt_pk_bf16_f32 v{w+i}, v{s8+2*i}, v{s8+2*i+1}")
            e("s_nop 1")
            e(f"v_permlane32_swap_b32 v{w}, v{w+2}")
            e(f"v_permlane32_swap_b32 v{w+1}, v{w+3}")
            for i in range(4):
                e(f"v_lshlrev_b32 v{s8+2*i}, 16, v{w+i}")
                e(f"v_and_b32 v{s8+2*i+1}, s{sMask}, v{w+i}")
            for i in range(8): e(f"v_add_f32 v{s8+i}, v{s8+i}, v{vB}")
            for i in range(4): e(f"v_cvt_pk_bf16_f32 v{w+i}, v{s8+2*i}, v{s8+2*i+1}")
            for i in range(4):
                e(f"v_lshlrev_b32 v{s8+2*i}, 16, v{w+i}")
                e(f"v_and_b32 v{s8+2*i+1}, s{sMask}, v{w+i}")
            for i in range(4):
                e(f"v_lshlrev_b32 v{w+4+2*i}, 16, v{z+i}")
                e(f"v_and_b32 v{w+5+2*i}, s{sMask}, v{z+i}")
            for i in range(8): e(f"v_mul_f32 v{s8+i}, v{s8+i}, v{w+4+i}")
            for i in range(4): e(f"v_cvt_pk_bf16_f32 v{z+i}, v{s8+2*i}, v{s8+2*i+1}")
            vo = vOffM if (bn == 1 and gp == 1) else vOff
            e(f"buffer_store_dwordx4 v[{z}:{z+3}], v{vo}, s[{SHM}:{SHM+3}], 0 offen offset:{(32*bn+16*gp)*2}")
    if prefetch:
        e("s_load_dwordx2 s[44:45], s[0:1], 72")
        e(f"v_lshlrev_b32 v{vT2}, 4, v0")
        e("s_waitcnt lgkmcnt(0)")
        srd(e, 12, 44, 45, 0, 896 * 896)
        e(f"s_mul_i32 s{sT0}, s2, 3136")
        e(f"buffer_load_dwordx4 v[152:155], v{vT2}, s[12:15], s{sT0} offen")
    if st.on:
        e("s_waitcnt vmcnt(0)")
```

```python
from asmlib import *
from gen_attn import f32hex, WS_XN, WS_Z1, WS_Z2, WS_Z2T, WS_O, WS_HM

WS_SP = 0x3000000
WS_S = 0x2800000
WS_Z2N = WS_Z2T


class G:
    pass


def srd(e, s, lo, hi, off, size):
    e(f"s_add_u32 s{s}, s{lo}, {off}")
    e(f"s_addc_u32 s{s+1}, s{hi}, 0")
    e(f"s_mov_b32 s{s+2}, {size}")
    e(f"s_mov_b32 s{s+3}, 0x20000")


def gemm_core(a, pfx, MT, NT, WM, WN, K, KC, NST, SX, SW, xstride, wstride, sRow0, sCol0, sWave,
              vbase, sbase, unroll_all=False, nbn_override=None, sX0=None, sW0=None, acc_agpr=False, fragbase=None, mid_cb=None, fill=None, peel=0, nfill=0, rolladdr=False, defer=0, wrap=None, fill_start=0):
    e = a.e
    RM, CN = MT // WM, NT // WN
    nbm, nbn = RM // 32, CN // 32
    if nbn_override:
        nbn = nbn_override
    RBX = KC * 2
    RBW = NT * 2
    XB, WB = MT * RBX, KC * RBW
    STG = XB + WB
    nks = KC // 16
    nX, nW = XB // 4096, WB // 4096
    nst_total = K // KC
    assert STG * NST <= 163840
    sT0, sT1, sXo, sWo, sWBx, sWBw, sTrip, sWm, sWn = [sbase + i for i in range(9)]
    vLane = vbase
    vT0, vT1, vT2, vT3, vR, vG, vCq, vH = [vbase + 1 + i for i in range(8)]
    p = vbase + 9
    vXd = p; p += nX
    vWd = p; p += nW
    nhalf = 2 if (STG * NST > 65536 and not rolladdr) else 1
    vXa = p; p += nks * nhalf
    vWa = p; p += nbn * nhalf
    p = (p + 3) // 4 * 4
    addr_end = p
    if fragbase is not None:
        p = fragbase
    FB = 4 * nbm * nks + 4 * nbn * nks
    vXf = p
    vWf = p + 4 * nbm * nks
    p += 2 * FB
    p = (p + 15) // 16 * 16
    AP = "a" if acc_agpr else "v"
    if acc_agpr:
        vAcc = 0
    else:
        vAcc = p; p += 16 * nbm * nbn
    g = G()
    g.vAcc, g.nbm, g.nbn, g.vend, g.vLane, g.vH = vAcc, nbm, nbn, p, vLane, vH
    g.sWm, g.sWn, g.RM, g.CN = sWm, sWn, RM, CN
    g.tmp = [vT0, vT1, vT2, vT3, vR, vG, vCq]
    g.vfree0 = vXf
    g.vfreeN = vAcc - vXf

    e(f"v_and_b32 v{vLane}, 63, v0")
    e(f"v_lshrrev_b32 v{vH}, 5, v{vLane}")
    if WN == 1:
        e(f"s_mov_b32 s{sWm}, s{sWave}")
        e(f"s_mov_b32 s{sWn}, 0")
    else:
        assert WN == 2
        e(f"s_lshr_b32 s{sWm}, s{sWave}, 1")
        e(f"s_and_b32 s{sWn}, s{sWave}, 1")
    cpr = RBX // 16
    rpi = 64 // cpr
    lc = {4: 2, 8: 3, 16: 4, 32: 5}[cpr]

    def fx(dst, row):
        if cpr == 8:
            e(f"v_bfe_u32 v{dst}, v{row}, 1, 3")
        elif cpr == 16 or cpr == 32:
            e(f"v_and_b32 v{dst}, 15, v{row}")
        else:
            e(f"v_bfe_u32 v{dst}, v{row}, 2, 2")

    e(f"s_mul_i32 s{sT0}, s{sWave}, {nX*rpi}")
    e(f"v_lshrrev_b32 v{vT0}, {lc}, v{vLane}")
    e(f"v_and_b32 v{vT1}, {cpr-1}, v{vLane}")
    e(f"s_mov_b32 s{sT1}, {xstride}")
    for t in range(nX):
        e(f"v_add_u32 v{vT2}, {t*rpi}, v{vT0}")
        e(f"v_add_u32 v{vT2}, s{sT0}, v{vT2}")
        fx(vT3, vT2)
        e(f"v_xor_b32 v{vT3}, v{vT3}, v{vT1}")
        e(f"v_lshlrev_b32 v{vT3}, 4, v{vT3}")
        e(f"v_add_u32 v{vT2}, s{sRow0}, v{vT2}")
        e(f"v_mul_lo_u32 v{vT2}, v{vT2}, s{sT1}")
        e(f"v_add_u32 v{vXd+t}, v{vT2}, v{vT3}")
    cprw = RBW // 16
    rpiw = 64 // cprw
    lcw = {8: 3, 16: 4, 32: 5}[cprw]

    def fw(dst, row):
        if cprw == 8:
            e(f"v_bfe_u32 v{dst}, v{row}, 1, 1")
            e(f"v_lshlrev_b32 v{dst}, 2, v{dst}")
        else:
            e(f"v_and_b32 v{dst}, 3, v{row}")
            e(f"v_lshlrev_b32 v{dst}, 2, v{dst}")

    e(f"s_mul_i32 s{sT0}, s{sWave}, {nW*rpiw}")
    e(f"v_lshrrev_b32 v{vT0}, {lcw}, v{vLane}")
    e(f"v_and_b32 v{vT1}, {cprw-1}, v{vLane}")
    e(f"s_mov_b32 s{sT1}, {wstride}")
    e(f"s_lshl_b32 s{sXo}, s{sCol0}, 1")
    for t in range(nW):
        e(f"v_add_u32 v{vT2}, {t*rpiw}, v{vT0}")
        e(f"v_add_u32 v{vT2}, s{sT0}, v{vT2}")
        fw(vT3, vT2)
        e(f"v_xor_b32 v{vT3}, v{vT3}, v{vT1}")
        e(f"v_lshlrev_b32 v{vT3}, 4, v{vT3}")
        e(f"v_mul_lo_u32 v{vT2}, v{vT2}, s{sT1}")
        e(f"v_add3_u32 v{vWd+t}, v{vT2}, v{vT3}, s{sXo}")
    e(f"s_mul_i32 s{sWBx}, s{sWave}, {nX*1024}")
    e(f"s_mul_i32 s{sWBw}, s{sWave}, {nW*1024}")
    e(f"s_add_u32 s{sWBw}, s{sWBw}, {XB}")
    e(f"v_and_b32 v{vT0}, 31, v{vLane}")
    e(f"s_mul_i32 s{sT0}, s{sWm}, {RM}")
    e(f"v_add_u32 v{vT0}, s{sT0}, v{vT0}")
    fx(vT1, vT0)
    for ks in range(nks):
        e(f"v_add_u32 v{vT2}, {2*ks}, v{vH}")
        e(f"v_xor_b32 v{vT2}, v{vT2}, v{vT1}")
        e(f"v_lshlrev_b32 v{vT2}, 4, v{vT2}")
        e(f"v_mul_u32_u24 v{vT3}, {RBX}, v{vT0}")
        e(f"v_add_u32 v{vXa+ks}, v{vT2}, v{vT3}")
        if nhalf == 2:
            e(f"v_add_u32 v{vXa+nks+ks}, 0x10000, v{vXa+ks}")
    e(f"v_bfe_u32 v{vR}, v{vLane}, 2, 2")
    e(f"v_bfe_u32 v{vG}, v{vLane}, 4, 1")
    e(f"v_and_b32 v{vCq}, 3, v{vLane}")
    fw(vT1, vR)
    e(f"s_mul_i32 s{sT0}, s{sWn}, {nbn}")
    for bn in range(nbn):
        e(f"v_lshrrev_b32 v{vT2}, 1, v{vCq}")
        e(f"v_lshl_add_u32 v{vT2}, v{vG}, 1, v{vT2}")
        e(f"s_add_u32 s{sT1}, s{sT0}, {bn}")
        e(f"s_lshl_b32 s{sT1}, s{sT1}, 2")
        e(f"v_add_u32 v{vT2}, s{sT1}, v{vT2}")
        e(f"v_xor_b32 v{vT2}, v{vT2}, v{vT1}")
        e(f"v_lshlrev_b32 v{vT2}, 4, v{vT2}")
        e(f"v_and_b32 v{vT3}, 1, v{vCq}")
        e(f"v_lshl_add_u32 v{vT2}, v{vT3}, 3, v{vT2}")
        e(f"v_lshl_add_u32 v{vT3}, v{vH}, 3, v{vR}")
        e(f"v_mul_u32_u24 v{vT3}, {RBW}, v{vT3}")
        e(f"v_add3_u32 v{vWa+bn}, v{vT2}, v{vT3}, {XB}" if XB <= 64 else f"v_add_u32 v{vT2}, v{vT2}, v{vT3}\nv_add_u32 v{vWa+bn}, {XB}, v{vT2}")
        if nhalf == 2:
            e(f"v_add_u32 v{vWa+nbn+bn}, 0x10000, v{vWa+bn}")

    def dma_stage(slot):
        out = []
        for t in range(nX):
            out.append((f"s_add_u32 m0, s{sWBx}, {slot*STG + t*1024}",
                        f"buffer_load_dwordx4 v{vXd+t}, s[{SX}:{SX+3}], s{sXo} offen lds"))
        for t in range(nW):
            out.append((f"s_add_u32 m0, s{sWBw}, {slot*STG + t*1024}",
                        f"buffer_load_dwordx4 v{vWd+t}, s[{SW}:{SW+3}], s{sWo} offen lds"))
        return out

    def adv():
        e(f"s_add_u32 s{sXo}, s{sXo}, {KC*2}")
        e(f"s_add_u32 s{sWo}, s{sWo}, {KC*wstride}")
        if wrap:
            e(f"s_and_b32 s{sXo}, s{sXo}, {wrap[0]}")
            e(f"s_and_b32 s{sWo}, s{sWo}, {wrap[1]}")

    e(f"s_mov_b32 s{sXo}, {'s%d' % sX0 if sX0 else 0}")
    e(f"s_mov_b32 s{sWo}, {'s%d' % sW0 if sW0 else 0}")
    for st in range(NST - defer):
        for m0i, ld in dma_stage(st):
            e(m0i)
            e("s_nop 0")
            e(ld)
        adv()
    if mid_cb:
        mid_cb()
    if defer:
        e("s_barrier")
    for st in range(NST - defer, NST):
        for m0i, ld in dma_stage(st):
            e(m0i)
            e("s_nop 0")
            e(ld)
        adv()
    for i in range(16 * nbm * nbn):
        e(f"v_accvgpr_write_b32 a{vAcc+i}, 0" if acc_agpr else f"v_mov_b32 v{vAcc+i}, 0")
    nper = nX + nW
    g.addr_end = addr_end

    cur = {"slot": 0}

    def frag_reads(slot, buf):
        base = slot * STG
        pre = []
        if rolladdr:
            delta = (slot - cur["slot"]) * STG
            cur["slot"] = slot
            base = 0
            if delta:
                for r_ in list(range(vXa, vXa + nks)) + list(range(vWa, vWa + nbn)):
                    pre.append((f"v_add_u32 v{r_}, {delta & 0xffffffff}, v{r_}", None))

        def xaddr(ks, bm):
            off = base + bm * 32 * RBX
            if off >= 65536:
                return vXa + nks + ks, off - 65536
            return vXa + ks, off

        def waddr(bn, ks, s):
            off = base + (16 * ks + 4 * s) * RBW
            if off >= 65536:
                return vWa + nbn + bn, off - 65536
            return vWa + bn, off
        reads = []
        for ks in range(nks):
            for bm in range(nbm):
                r, off = xaddr(ks, bm)
                d = vXf + buf * FB + 4 * (ks * nbm + bm)
                reads.append((f"ds_read_b128 v[{d}:{d+3}], v{r} offset:{off}", regs(d, 4)))
            for bn in range(nbn):
                for s in range(2):
                    r, off = waddr(bn, ks, s)
                    assert off < 65536
                    d = vWf + buf * FB + 4 * (ks * nbn + bn) + 2 * s
                    reads.append((f"ds_read_b64_tr_b16 v[{d}:{d+1}], v{r} offset:{off}", regs(d, 2)))
        return pre + reads

    def emit_read(ins, d):
        if d is None:
            e(ins)
        else:
            a.lds_op(ins, d)

    stf = getattr(a, "stamper", None)
    if stf: stf()
    if not mid_cb:
        e(f"s_waitcnt vmcnt({(NST-1)*nper})")
    e("s_barrier")
    if stf: stf()
    for ins, d in frag_reads(0, 0):
        emit_read(ins, d)

    def stage(slot, buf, last=False, dofill=True):
        e(f"s_waitcnt vmcnt({(NST-2)*nper}) lgkmcnt(0)")
        a.lds_drained()
        e("s_barrier")
        reads = [] if last else frag_reads((slot + 1) % NST, buf ^ 1)
        dl = dma_stage(slot)
        nm = nks * nbm * nbn
        per = (len(dl) + nm - 1) // nm
        perr = (len(reads) + nm - 1) // nm
        for ks in range(nks):
            for bm in range(nbm):
                for bn in range(nbn):
                    xf = vXf + buf * FB + 4 * (ks * nbm + bm)
                    wf = vWf + buf * FB + 4 * (ks * nbn + bn)
                    acc = vAcc + 16 * (bm * nbn + bn)
                    e(f"v_mfma_f32_32x32x16_bf16 {AP}[{acc}:{acc+15}], v[{wf}:{wf+3}], v[{xf}:{xf+3}], {AP}[{acc}:{acc+15}]")
                    for _ in range(perr):
                        if reads:
                            ins, d = reads.pop(0)
                            emit_read(ins, d)
                    for _ in range(per):
                        if dl:
                            m0i, ld = dl.pop(0)
                            e(m0i)
                            e("s_nop 0")
                            e(ld)
                    if fill and dofill:
                        for _ in range(nfill):
                            if fill:
                                f_ = fill.pop(0)
                                if f_:
                                    e(f_)
        adv()

    for st_ in range(peel):
        stage(st_ % NST, st_ % 2, last=(st_ == nst_total - 1), dofill=(st_ >= fill_start))
    assert not fill, len(fill)
    nst_total -= peel
    if unroll_all:
        for st in range(nst_total):
            stage(st % NST, st % 2, last=(st == nst_total - 1))
    else:
        assert nst_total % NST == 0 and NST % 2 == 0
        e(f"s_mov_b32 s{sTrip}, 0")
        a.label(f"L_{pfx}_loop")
        for u in range(NST):
            stage((peel + u) % NST, (peel + u) % 2)
        e(f"s_add_u32 s{sTrip}, s{sTrip}, 1")
        e(f"s_cmp_lt_u32 s{sTrip}, {nst_total // NST}")
        e(f"s_cbranch_scc1 L_{pfx}_loop")
    if stf: stf()
    e("s_waitcnt vmcnt(0) lgkmcnt(0)")
    a.lds_drained()
    e("s_nop 15")
    return g


def out_offsets(a, g, sRow0, sCol0, stride, vdst, sT):
    e = a.e
    t0 = g.tmp[0]
    e(f"v_and_b32 v{t0}, 31, v{g.vLane}")
    e(f"s_mul_i32 s{sT}, s{g.sWm}, {g.RM}")
    e(f"s_add_u32 s{sT}, s{sT}, s{sRow0}")
    e(f"v_add_u32 v{t0}, s{sT}, v{t0}")
    e(f"s_mov_b32 s{sT}, {stride}")
    e(f"v_mul_lo_u32 v{vdst}, v{t0}, s{sT}")
    e(f"s_mul_i32 s{sT}, s{g.sWn}, {g.CN}")
    e(f"s_add_u32 s{sT}, s{sT}, s{sCol0}")
    e(f"s_lshl_b32 s{sT}, s{sT}, 1")
    e(f"v_add_u32 v{vdst}, s{sT}, v{vdst}")
    e(f"v_lshl_add_u32 v{vdst}, v{g.vH}, 4, v{vdst}")


def to_rowmajor16(a, src16, tmp):
    pass


def gen_k3(name="gs_kernel", stamp=False):
    a = Asm()
    e = a.e
    e("s_cmp_ge_u32 s2, 256")
    e("s_cbranch_scc1 L_k3_end")
    st = Stamper(a, stamp, 2, 72)
    st()
    e("s_load_dwordx2 s[40:41], s[0:1], 56")
    e("s_load_dwordx2 s[42:43], s[0:1], 64")
    e("s_load_dwordx2 s[44:45], s[0:1], 32")
    e("s_load_dwordx2 s[46:47], s[0:1], 96")
    e("v_lshrrev_b32 v1, 6, v0")
    e("s_and_b32 s50, s2, 7")
    e("s_lshr_b32 s51, s2, 3")
    e("v_readfirstlane_b32 s24, v1")
    e("s_waitcnt lgkmcnt(0)")
    e("s_cmp_lt_u32 s51, 16")
    e("s_cbranch_scc1 L_k3_s")
    e("s_sub_u32 s51, s51, 16")
    e("s_lshr_b32 s52, s50, 1")
    e("s_lshl_b32 s52, s52, 2")
    e("s_and_b32 s54, s51, 3")
    e("s_add_u32 s54, s54, s52")
    e("s_and_b32 s53, s50, 1")
    e("s_lshl_b32 s53, s53, 2")
    e("s_lshr_b32 s52, s51, 2")
    e("s_add_u32 s53, s53, s52")
    e("s_cmp_ge_u32 s53, 7")
    e("s_cbranch_scc1 L_k3_end")
    e("s_lshl_b32 s25, s54, 7")
    e("s_lshl_b32 s26, s53, 7")
    srd(e, 4, 40, 41, 0, 2048 * 4096)
    srd(e, 8, 46, 47, WS_Z2N, 2048 * 1792)
    srd(e, 12, 46, 47, WS_Z1, 2048 * 1792)
    srd(e, 16, 46, 47, WS_HM, 2048 * 1792)
    srd(e, 20, 42, 43, 0, 4096)
    a.stamper = st
    g = gemm_core(a, "k3g", 128, 128, 2, 2, 2048, 64, 4, 4, 8, 4096, 1792, 25, 26, 24, 2, 60)
    vOff = g.tmp[1]
    out_offsets(a, g, 25, 26, 1792, vOff, 55)
    f = g.vfree0
    vB = g.tmp[2]
    t0 = g.tmp[0]
    for bm in range(g.nbm):
        e(f"v_lshlrev_b32 v{g.tmp[3]}, 1, v{t0}")
        e(f"buffer_load_ushort v{vB+0 if bm == 0 else g.tmp[4]}, v{g.tmp[3]}, s[20:23], 0 offen offset:{bm*64}")
    idx = 0
    zl = {}
    for bm in range(g.nbm):
        for bn in range(g.nbn):
            for gp in range(2):
                d = f + 4 * idx
                zl[(bm, bn, gp)] = d
                e(f"s_mov_b32 s56, {bm*32*1792}")
                e(f"buffer_load_dwordx4 v[{d}:{d+3}], v{vOff}, s[12:15], s56 offen offset:{(32*bn+16*gp)*2}")
                idx += 1
    e("s_waitcnt vmcnt(0)")
    e(f"v_lshlrev_b32 v{vB}, 16, v{vB}")
    e(f"v_lshlrev_b32 v{g.tmp[4]}, 16, v{g.tmp[4]}")
    w = f + 4 * idx
    w = (w + 3) // 4 * 4
    for bm in range(g.nbm):
        bb = vB if bm == 0 else g.tmp[4]
        for bn in range(g.nbn):
            acc = g.vAcc + 16 * (bm * g.nbn + bn)
            for gp in range(2):
                s8 = acc + 8 * gp
                for i in range(4):
                    e(f"v_cvt_pk_bf16_f32 v{w+i}, v{s8+2*i}, v{s8+2*i+1}")
                e("s_nop 1")
                e(f"v_permlane32_swap_b32 v{w}, v{w+2}")
                e(f"v_permlane32_swap_b32 v{w+1}, v{w+3}")
                z = zl[(bm, bn, gp)]
                for i in range(4):
                    lo, hi = s8 + 2 * i, s8 + 2 * i + 1
                    e(f"v_lshlrev_b32 v{lo}, 16, v{w+i}")
                    e(f"v_and_b32 v{hi}, 0xffff0000, v{w+i}")
                    e(f"v_add_f32 v{lo}, v{lo}, v{bb}")
                    e(f"v_add_f32 v{hi}, v{hi}, v{bb}")
                    e(f"v_cvt_pk_bf16_f32 v{w+i}, v{lo}, v{hi}")
                    e(f"v_lshlrev_b32 v{lo}, 16, v{w+i}")
                    e(f"v_and_b32 v{hi}, 0xffff0000, v{w+i}")
                    e(f"v_lshlrev_b32 v{w+4}, 16, v{z+i}")
                    e(f"v_and_b32 v{w+5}, 0xffff0000, v{z+i}")
                    e(f"v_mul_f32 v{lo}, v{lo}, v{w+4}")
                    e(f"v_mul_f32 v{hi}, v{hi}, v{w+5}")
                    e(f"v_cvt_pk_bf16_f32 v{z+i}, v{lo}, v{hi}")
                e(f"s_mov_b32 s56, {bm*32*1792}")
                e(f"buffer_store_dwordx4 v[{z}:{z+3}], v{vOff}, s[16:19], s56 offen offset:{(32*bn+16*gp)*2}")
    e("s_waitcnt vmcnt(0)")
    st.dump()
    e("s_endpgm")
    vmax = g.vend
    st.n = 1
    a.label("L_k3_s")
    e("s_lshr_b32 s52, s51, 1")
    e("s_lshl_b32 s52, s52, 1")
    e("s_lshr_b32 s54, s50, 2")
    e("s_add_u32 s54, s54, s52")
    e("s_lshl_b32 s25, s54, 7")
    e("s_and_b32 s53, s51, 1")
    e("s_mul_i32 s26, s53, 224")
    e("s_and_b32 s57, s50, 3")
    e("s_lshl_b32 s58, s57, 11")
    e("s_mul_i32 s59, s57, %d" % (1024 * 896))
    srd(e, 4, 46, 47, WS_O, 2048 * 8192)
    srd(e, 8, 44, 45, 0, 4096 * 896)
    e("s_mul_i32 s57, s57, %d" % (2048 * 1792))
    e("s_add_u32 s57, s57, %d" % WS_SP)
    srd(e, 16, 46, 47, "s57", 2048 * 1792)
    g = gemm_core(a, "k3s", 128, 256, 4, 1, 1024, 32, 4, 4, 8, 8192, 896, 25, 26, 24, 2, 60, nbn_override=7, sX0=58, sW0=59, acc_agpr=True)
    t0, vOff = g.tmp[0], g.tmp[1]
    e(f"v_and_b32 v{t0}, 31, v{g.vLane}")
    e(f"s_lshl_b32 s55, s24, 5")
    e(f"s_add_u32 s55, s55, s25")
    e(f"v_add_u32 v{t0}, s55, v{t0}")
    e(f"s_movk_i32 s55, 1792")
    e(f"v_mul_lo_u32 v{vOff}, v{t0}, s55")
    e(f"s_lshl_b32 s55, s26, 2")
    e(f"v_add_u32 v{vOff}, s55, v{vOff}")
    e(f"v_lshl_add_u32 v{vOff}, v{g.vH}, 4, v{vOff}")
    for bn in range(7):
        for gg in range(4):
            r = g.vAcc + 16 * bn + 4 * gg
            e(f"buffer_store_dwordx4 a[{r}:{r+3}], v{vOff}, s[16:19], 0 offen offset:{(32*bn+8*gg)*4}")
    if stamp:
        e("s_waitcnt vmcnt(0)")
    st.dump()
    a.label("L_k3_end")
    e("s_endpgm")
    vmax = max(vmax, g.vend)
    vmax = (vmax + 7) // 8 * 8
    assert vmax <= 256, vmax
    return a.text(), kernel_desc(name, vmax + 112, vmax, 100), 131072


def gen_k4(name="fin_kernel", stamp=False):
    a = Asm()
    e = a.e
    e("s_cmp_ge_u32 s2, 224")
    e("s_cbranch_scc1 L_k4_end")
    st = Stamper(a, stamp, 3, 72)
    a.stamper = st
    st()
    e("s_load_dwordx2 s[40:41], s[0:1], 72")
    e("s_load_dwordx2 s[42:43], s[0:1], 0")
    e("s_load_dwordx2 s[44:45], s[0:1], 80")
    e("s_load_dwordx2 s[46:47], s[0:1], 96")
    e("v_lshrrev_b32 v1, 6, v0")
    e("s_and_b32 s50, s2, 7")
    e("s_lshr_b32 s51, s2, 3")
    e("v_readfirstlane_b32 s24, v1")
    e("s_mul_i32 s52, s51, 37")
    e("s_lshr_b32 s52, s52, 8")
    e("s_mul_i32 s53, s52, 7")
    e("s_sub_u32 s53, s51, s53")
    e("s_lshl_b32 s54, s50, 2")
    e("s_add_u32 s54, s54, s52")
    e("s_lshl_b32 s25, s54, 6")
    e("s_lshl_b32 s26, s53, 6")
    e("s_waitcnt lgkmcnt(0)")
    srd(e, 4, 46, 47, WS_HM, 2048 * 1792)
    srd(e, 8, 40, 41, 0, 896 * 896)
    srd(e, 12, 46, 47, WS_SP, 16 * 2048 * 896)
    srd(e, 16, 44, 45, 0, 2048 * 896)
    srd(e, 20, 42, 43, 0, 2048 * 896)
    pb = 112
    vOff = 240
    e("v_and_b32 v241, 31, v0")
    e("s_lshr_b32 s55, s24, 1")
    e("s_lshl_b32 s55, s55, 5")
    e("s_add_u32 s55, s55, s25")
    e("v_add_u32 v241, s55, v241")
    e("s_movk_i32 s55, 896")
    e(f"v_mul_lo_u32 v{vOff}, v241, s55")
    e("s_and_b32 s55, s24, 1")
    e("s_lshl_b32 s55, s55, 5")
    e("s_add_u32 s55, s55, s26")
    e("s_lshl_b32 s55, s55, 1")
    e(f"v_add_u32 v{vOff}, s55, v{vOff}")
    e("v_bfe_u32 v241, v0, 5, 1")
    e(f"v_lshl_add_u32 v{vOff}, v241, 4, v{vOff}")

    e("s_lshr_b32 s55, s25, 5")
    e("s_lshr_b32 s56, s24, 1")
    e("s_add_u32 s55, s55, s56")
    e("s_mul_i32 s55, s55, 28672")
    e("s_lshr_b32 s56, s26, 5")
    e("s_and_b32 s57, s24, 1")
    e("s_add_u32 s56, s56, s57")
    e("s_lshl_b32 s56, s56, 11")
    e("s_add_u32 s55, s55, s56")
    e("v_and_b32 v242, 63, v0")
    e("v_lshlrev_b32 v242, 4, v242")
    e("v_add_u32 v242, s55, v242")

    lds_ = []
    for gp in range(2):
        lds_.append(f"buffer_load_dwordx4 v[{244+4*gp}:{247+4*gp}], v{vOff}, s[20:23], 0 offen offset:{32*gp}")
    for hd in range(16):
        for gp in range(2):
            d = pb + 8 * hd + 4 * gp
            lds_.append((f"s_mov_b32 s58, {hd*2048*896}\n" if gp == 0 else "") + f"buffer_load_dwordx4 v[{d}:{d+3}], v242, s[12:15], s58 offen offset:{1024*gp}")
    pre = []
    for i in range(0, 34, 2):
        pre += lds_[i:i+2] + [None] * 15
    pre += [None] * (17 * 9)
    fl = ["s_mov_b32 s59, 0xffff0000"]
    for i in range(8):
        d0, d1 = pb + i, pb + 8 + i
        fl.append(f"v_lshlrev_b32 v243, 16, v{d0}")
        fl.append(f"v_lshlrev_b32 v252, 16, v{d1}")
        fl.append(f"v_and_b32 v253, s59, v{d0}")
        fl.append(f"v_and_b32 v{d1}, s59, v{d1}")
        fl.append(f"v_add_f32 v{d0}, v243, v252")
        fl.append(f"v_add_f32 v{d1}, v253, v{d1}")
    for hd in range(2, 16):
        for i in range(8):
            d = pb + 8 * hd + i
            fl.append(f"v_lshlrev_b32 v243, 16, v{d}")
            fl.append(f"v_and_b32 v{d}, s59, v{d}")
            fl.append(f"v_add_f32 v{pb+i}, v{pb+i}, v243")
            fl.append(f"v_add_f32 v{pb+8+i}, v{pb+8+i}, v{d}")
    g = gemm_core(a, "k4", 64, 64, 2, 2, 896, 64, 4, 4, 8, 1792, 896, 25, 26, 24, 2, 60, unroll_all=True,
                  fill=pre + fl, peel=14, nfill=17, fill_start=0)

    assert g.vend <= pb, g.vend
    f = g.vfree0
    acc = g.vAcc
    for gp in range(2):
        for i in range(4):
            e(f"v_mov_b32 v{f+8+4*gp+i}, v{244+4*gp+i}")
    w = f + 16
    e(f"s_mov_b32 s57, {f32hex(-1.4426950408889634)}")
    for i in range(8):
        e(f"v_cvt_pk_bf16_f32 v{f+i}, v{pb+i}, v{pb+8+i}")
    for gp in range(2):
        s8 = acc + 8 * gp
        for i in range(4):
            e(f"v_cvt_pk_bf16_f32 v{w+i}, v{s8+2*i}, v{s8+2*i+1}")
        e("s_nop 1")
        e(f"v_permlane32_swap_b32 v{w}, v{w+2}")
        e(f"v_permlane32_swap_b32 v{w+1}, v{w+3}")
        sv, xv = f + 4 * gp, f + 8 + 4 * gp
        for i in range(4):
            for hh in range(2):
                y = s8 + 2 * i + hh
                t = w + 4 + hh
                if hh == 0:
                    e(f"v_lshlrev_b32 v{y}, 16, v{w+i}")
                else:
                    e(f"v_and_b32 v{y}, 0xffff0000, v{w+i}")
                e(f"v_mul_f32 v{t}, s57, v{y}")
                e(f"v_exp_f32 v{t}, v{t}")
                e("s_nop 0")
                e(f"v_add_f32 v{t}, 1.0, v{t}")
                e(f"v_rcp_f32 v{t}, v{t}")
                e("s_nop 0")
                e(f"v_mul_f32 v{y}, v{y}, v{t}")
            lo, hi = s8 + 2 * i, s8 + 2 * i + 1
            e(f"v_cvt_pk_bf16_f32 v{w+i}, v{lo}, v{hi}")
            e(f"v_lshlrev_b32 v{lo}, 16, v{w+i}")
            e(f"v_and_b32 v{hi}, 0xffff0000, v{w+i}")
            e(f"v_lshlrev_b32 v{w+4}, 16, v{sv+i}")
            e(f"v_and_b32 v{w+5}, 0xffff0000, v{sv+i}")
            e(f"v_mul_f32 v{lo}, v{lo}, v{w+4}")
            e(f"v_mul_f32 v{hi}, v{hi}, v{w+5}")
            e(f"v_cvt_pk_bf16_f32 v{w+i}, v{lo}, v{hi}")
            e(f"v_lshlrev_b32 v{lo}, 16, v{w+i}")
            e(f"v_and_b32 v{hi}, 0xffff0000, v{w+i}")
            e(f"v_lshlrev_b32 v{w+4}, 16, v{xv+i}")
            e(f"v_and_b32 v{w+5}, 0xffff0000, v{xv+i}")
            e(f"v_add_f32 v{lo}, v{lo}, v{w+4}")
            e(f"v_add_f32 v{hi}, v{hi}, v{w+5}")
            e(f"v_cvt_pk_bf16_f32 v{sv+i}, v{lo}, v{hi}")
        e(f"buffer_store_dwordx4 v[{sv}:{sv+3}], v{vOff}, s[16:19], 0 offen offset:{32*gp}")
    st()
    e("s_waitcnt vmcnt(0)")
    st.dump(vtmp=100)
    a.label("L_k4_end")
    e("s_endpgm")
    vmax = 256
    return a.text(), kernel_desc(name, vmax, vmax, 100), 65536


def gen_ln2(name="ln2_kernel"):
    a = Asm()
    e = a.e
    e("s_cmp_ge_u32 s2, 256")
    e("s_cbranch_scc1 L_ln2_end")
    e("s_load_dwordx2 s[46:47], s[0:1], 96")
    e("v_lshrrev_b32 v1, 5, v0")
    e("v_and_b32 v2, 31, v0")
    e("s_lshl_b32 s3, s2, 3")
    e("v_add_u32 v1, s3, v1")
    e("s_movk_i32 s3, 1792")
    e("v_mul_lo_u32 v1, v1, s3")
    e("v_lshl_add_u32 v1, v2, 2, v1")
    e("s_waitcnt lgkmcnt(0)")
    srd(e, 4, 46, 47, WS_Z2, 2048 * 1792)
    srd(e, 8, 46, 47, WS_Z2N, 2048 * 1792)
    for t in range(14):
        e(f"buffer_load_dword v{8+t}, v1, s[4:7], 0 offen offset:{128*t}")
    e("v_mov_b32 v4, 0")
    e("v_mov_b32 v5, 0")
    e("s_mov_b32 s12, 0x3f803f80")
    e("v_mov_b32 v6, s12")
    e("s_waitcnt vmcnt(0)")
    for t in range(14):
        e(f"v_dot2_f32_bf16 v4, v{8+t}, v6, v4")
        e(f"v_dot2_f32_bf16 v5, v{8+t}, v{8+t}, v5")
    e("s_nop 3")
    for x in (1, 2, 4, 8, 16):
        e(f"ds_swizzle_b32 v2, v4 offset:{(x << 10) | 0x1f}")
        e(f"ds_swizzle_b32 v3, v5 offset:{(x << 10) | 0x1f}")
        e("s_waitcnt lgkmcnt(0)")
        e("v_add_f32 v4, v4, v2")
        e("v_add_f32 v5, v5, v3")
    ln_stats(e, 4, 5, 2, 3, 896)
    for t in range(14):
        e(f"v_lshlrev_b32 v2, 16, v{8+t}")
        e(f"v_and_b32 v3, 0xffff0000, v{8+t}")
        e("v_sub_f32 v2, v2, v4")
        e("v_sub_f32 v3, v3, v4")
        e("v_cvt_pk_bf16_f32 v2, v2, v3")
        e("v_and_b32 v3, 0xffff0000, v2")
        e("v_lshlrev_b32 v2, 16, v2")
        e("v_mul_f32 v2, v2, v5")
        e("v_mul_f32 v3, v3, v5")
        e(f"v_cvt_pk_bf16_f32 v{8+t}, v2, v3")
        e(f"buffer_store_dword v{8+t}, v1, s[8:11], 0 offen offset:{128*t}")
    e("s_waitcnt vmcnt(0)")
    a.label("L_ln2_end")
    e("s_endpgm")
    return a.text(), kernel_desc(name, 32, 32, 64), 0


def ln_stats(e, vS, vQ, t0, t1, n):
    e(f"v_mul_f32 v{vS}, {f32hex(1.0/n)}, v{vS}")
    e(f"v_mul_f32 v{vQ}, {f32hex(1.0/n)}, v{vQ}")
    e(f"v_fma_f32 v{vQ}, -v{vS}, v{vS}, v{vQ}")
    e(f"v_max_f32 v{vQ}, 0, v{vQ}")
    e(f"v_cvt_pk_bf16_f32 v{t0}, v{vS}, v{vQ}")
    e(f"v_lshlrev_b32 v{vS}, 16, v{t0}")
    e(f"v_and_b32 v{vQ}, 0xffff0000, v{t0}")
    e(f"v_add_f32 v{vQ}, {f32hex(1e-5)}, v{vQ}")
    e(f"v_cvt_pk_bf16_f32 v{t0}, v{vQ}, v{vQ}")
    e(f"v_lshlrev_b32 v{vQ}, 16, v{t0}")
    e(f"v_sqrt_f32 v{vQ}, v{vQ}")
    e("s_nop 0")
    e(f"v_cvt_pk_bf16_f32 v{t0}, v{vQ}, v{vQ}")
    e(f"v_lshlrev_b32 v{vQ}, 16, v{t0}")
    e(f"v_rcp_f32 v{vQ}, v{vQ}")
    e("s_nop 0")


def gen_k1(name="pre_kernel", stamp=False):
    a = Asm()
    e = a.e
    st = Stamper(a, stamp, 0, 70)
    e("s_cmp_ge_u32 s2, 224")
    e("s_cbranch_scc1 L_k1_end")
    st()
    e("s_load_dwordx2 s[40:41], s[0:1], 0")
    e("s_load_dwordx2 s[42:43], s[0:1], 48")
    e("s_load_dwordx2 s[46:47], s[0:1], 96")
    e("v_lshrrev_b32 v1, 6, v0")
    e("s_and_b32 s50, s2, 7")
    e("s_lshr_b32 s51, s2, 3")
    e("v_readfirstlane_b32 s24, v1")
    e("s_cmp_ge_u32 s51, 14")
    e("s_cselect_b32 s52, 1, 0")
    e("s_mul_i32 s53, s52, 14")
    e("s_sub_u32 s53, s51, s53")
    e("s_lshl_b32 s54, s50, 1")
    e("s_add_u32 s54, s54, s52")
    e("s_lshl_b32 s25, s54, 7")
    e("s_lshl_b32 s26, s53, 7")
    e("s_waitcnt lgkmcnt(0)")
    srd(e, 4, 40, 41, 0, 2048 * 896)
    srd(e, 8, 42, 43, 0, 448 * 3584)
    srd(e, 12, 46, 47, WS_XN, 2048 * 896)
    e("s_cmp_ge_u32 s53, 7")
    e(f"s_mov_b32 s55, {WS_Z1}")
    e(f"s_cselect_b32 s55, {WS_Z2}, s55")
    e("s_cselect_b32 s56, 896, 0")
    e("s_sub_u32 s27, s26, s56")
    srd(e, 16, 46, 47, "s55", 2048 * 1792)
    vLane, vH, vT0, vT1, vT2, vT3, vR, vG, vCq = 1, 2, 3, 4, 5, 6, 7, 8, 9
    vXo, vSum, vSq, vOne, vZo = 10, 11, 12, 13, 14
    vWd = 16
    vWa = 20
    vX = 32
    vWf = 144
    vAcc = 208
    vAcc = 144
    vWf = 208
    e(f"v_and_b32 v{vLane}, 63, v0")
    e(f"v_lshrrev_b32 v{vH}, 5, v{vLane}")
    e(f"v_lshrrev_b32 v{vT0}, 4, v{vLane}")
    e(f"v_and_b32 v{vT1}, 15, v{vLane}")
    e("s_lshl_b32 s57, s24, 4")
    e("s_movk_i32 s58, 3584")
    e("s_lshl_b32 s59, s26, 1")
    for t in range(4):
        e(f"v_add_u32 v{vT2}, {4*t}, v{vT0}")
        e(f"v_add_u32 v{vT2}, s57, v{vT2}")
        e(f"v_and_b32 v{vT3}, 3, v{vT2}")
        e(f"v_lshlrev_b32 v{vT3}, 2, v{vT3}")
        e(f"v_xor_b32 v{vT3}, v{vT3}, v{vT1}")
        e(f"v_lshlrev_b32 v{vT3}, 4, v{vT3}")
        e(f"v_mul_lo_u32 v{vT2}, v{vT2}, s58")
        e(f"v_add3_u32 v{vWd+t}, v{vT2}, v{vT3}, s59")
    e(f"v_and_b32 v{vT0}, 31, v{vLane}")
    e("s_lshl_b32 s57, s24, 5")
    e("s_add_u32 s57, s57, s25")
    e(f"v_add_u32 v{vT0}, s57, v{vT0}")
    e("s_movk_i32 s58, 896")
    e(f"v_mul_lo_u32 v{vXo}, v{vT0}, s58")
    e(f"v_lshl_add_u32 v{vXo}, v{vH}, 4, v{vXo}")
    e("s_movk_i32 s58, 1792")
    e(f"v_mul_lo_u32 v{vZo}, v{vT0}, s58")
    e(f"v_lshl_add_u32 v{vZo}, v{vH}, 4, v{vZo}")
    e("s_lshl_b32 s58, s27, 1")
    e(f"v_add_u32 v{vZo}, s58, v{vZo}")
    for ks in range(28):
        e(f"buffer_load_dwordx4 v[{vX+4*ks}:{vX+4*ks+3}], v{vXo}, s[4:7], 0 offen offset:{ks*32}")
    e("s_lshl_b32 s57, s24, 12")
    for ci in range(7):
        e(f"s_mov_b32 s58, {ci*64*3584}")
        for t in range(4):
            e(f"s_add_u32 m0, s57, {ci*16384 + t*1024}")
            e("s_nop 0")
            e(f"buffer_load_dwordx4 v{vWd+t}, s[8:11], s58 offen lds")
    e(f"v_bfe_u32 v{vR}, v{vLane}, 2, 2")
    e(f"v_bfe_u32 v{vG}, v{vLane}, 4, 1")
    e(f"v_and_b32 v{vCq}, 3, v{vLane}")
    for bn in range(4):
        e(f"v_lshrrev_b32 v{vT2}, 1, v{vCq}")
        e(f"v_lshl_add_u32 v{vT2}, v{vG}, 1, v{vT2}")
        e(f"v_add_u32 v{vT2}, {4*bn}, v{vT2}")
        e(f"v_lshlrev_b32 v{vT3}, 2, v{vR}")
        e(f"v_xor_b32 v{vT2}, v{vT2}, v{vT3}")
        e(f"v_lshlrev_b32 v{vT2}, 4, v{vT2}")
        e(f"v_and_b32 v{vT3}, 1, v{vCq}")
        e(f"v_lshl_add_u32 v{vT2}, v{vT3}, 3, v{vT2}")
        e(f"v_lshl_add_u32 v{vT3}, v{vH}, 3, v{vR}")
        e(f"v_lshl_add_u32 v{vWa+bn}, v{vT3}, 8, v{vT2}")
        e(f"v_add_u32 v{vWa+4+bn}, 0x10000, v{vWa+bn}")
    vS2, vQ2 = 28, 29
    vNm, vRd = 30, 24
    vRd = 250
    vTP = 232
    e("s_mov_b32 s58, 0x3f803f80")
    e(f"v_mov_b32 v{vOne}, s58")
    for r in (vSum, vSq, vS2, vQ2):
        e(f"v_mov_b32 v{r}, 0")
    st()
    e("s_waitcnt vmcnt(28)")
    st()
    for i in range(0, 112, 2):
        e(f"v_dot2_f32_bf16 v{vSum}, v{vX+i}, v{vOne}, v{vSum}")
        e(f"v_dot2_f32_bf16 v{vSq}, v{vX+i}, v{vX+i}, v{vSq}")
        e(f"v_dot2_f32_bf16 v{vS2}, v{vX+i+1}, v{vOne}, v{vS2}")
        e(f"v_dot2_f32_bf16 v{vQ2}, v{vX+i+1}, v{vX+i+1}, v{vQ2}")
    e("s_nop 3")
    e(f"v_add_f32 v{vSum}, v{vSum}, v{vS2}")
    e(f"v_add_f32 v{vSq}, v{vSq}, v{vQ2}")
    e(f"v_mov_b32 v{vT0}, v{vSum}")
    e(f"v_mov_b32 v{vT1}, v{vSq}")
    e("s_nop 1")
    e(f"v_permlane32_swap_b32 v{vT0}, v{vSum}")
    e(f"v_permlane32_swap_b32 v{vT1}, v{vSq}")
    e("s_nop 1")
    e(f"v_add_f32 v{vSum}, v{vSum}, v{vT0}")
    e(f"v_add_f32 v{vSq}, v{vSq}, v{vT1}")
    ln_stats(e, vSum, vSq, vT0, vT1, 448)
    e(f"v_sub_f32 v{vNm}, 0, v{vSum}")
    e(f"v_sub_f32 v{vNm+1}, 0, v{vSum}")
    e(f"v_mov_b32 v{vRd}, v{vSq}")
    e(f"v_mov_b32 v{vRd+1}, v{vSq}")
    e("s_mov_b32 s59, 0xffff0000")
    st()
    e("s_waitcnt vmcnt(0)")
    e("s_barrier")
    st()

    def wreads(ks):
        out = []
        fb = vWf + 8 * 0 + 12 * 0 + (16 * (ks % 2) if False else 0)
        return out

    def norm_ops(ks):
        ops = []
        xs = [vX + 4 * ks + i for i in range(4)]
        ts = [vTP + 2 * i for i in range(4)]
        for x, t in zip(xs, ts): ops.append(f"v_lshlrev_b32 v{t}, 16, v{x}")
        for x, t in zip(xs, ts): ops.append(f"v_and_b32 v{t+1}, s59, v{x}")
        for x, t in zip(xs, ts): ops.append(f"v_pk_add_f32 v[{t}:{t+1}], v[{t}:{t+1}], v[{vNm}:{vNm+1}]")
        for x, t in zip(xs, ts): ops.append(f"v_cvt_pk_bf16_f32 v{x}, v{t}, v{t+1}")
        for x, t in zip(xs, ts): ops.append(f"v_lshlrev_b32 v{t}, 16, v{x}")
        for x, t in zip(xs, ts): ops.append(f"v_and_b32 v{t+1}, s59, v{x}")
        for x, t in zip(xs, ts): ops.append(f"v_pk_mul_f32 v[{t}:{t+1}], v[{t}:{t+1}], v[{vRd}:{vRd+1}]")
        for x, t in zip(xs, ts): ops.append(f"v_cvt_pk_bf16_f32 v{x}, v{t}, v{t+1}")
        return ops

    wbuf = [208, 176 + 0]
    wbuf = [208, 16 * 0 + 252 - 36]
    wbuf = [208, 0]
    def wreg(buf, bn):
        if buf == 0:
            return 208 + 4 * bn
        return [224, 228, 240, 244][bn]

    def w_reads(ks):
        out = []
        for bn in range(4):
            for s_ in range(2):
                off = (16 * ks + 4 * s_) * 256
                r = vWa + bn
                if off >= 65536:
                    off -= 65536
                    r += 4
                d = wreg(ks % 2, bn) + 2 * s_
                out.append((f"ds_read_b64_tr_b16 v[{d}:{d+1}], v{r} offset:{off}", regs(d, 2)))
        return out

    for ins, d in w_reads(0):
        a.lds_op(ins, d)
    for o in norm_ops(0):
        e(o)
    for ks in range(28):
        ops = norm_ops(ks + 1) if ks < 27 else []
        rd = w_reads(ks + 1) if ks < 27 else []
        e("s_nop 1")
        for bn in range(4):
            f0 = wreg(ks % 2, bn)
            a.lds_need(regs(f0, 4))
            c = f"v[{vAcc+16*bn}:{vAcc+16*bn+15}]" if ks else "0"
            e(f"v_mfma_f32_32x32x16_bf16 v[{vAcc+16*bn}:{vAcc+16*bn+15}], v[{f0}:{f0+3}], v[{vX+4*ks}:{vX+4*ks+3}], {c}")
            for _ in range(2):
                if rd:
                    ins, d = rd.pop(0)
                    a.lds_op(ins, d)
            for _ in range(8):
                if ops:
                    e(ops.pop(0))
    st()
    e("s_cmp_lg_u32 s53, 0")
    e("s_cbranch_scc1 L_k1_noxn")
    for ks in range(28):
        e(f"buffer_store_dwordx4 v[{vX+4*ks}:{vX+4*ks+3}], v{vXo}, s[12:15], 0 offen offset:{ks*32}")
    a.label("L_k1_noxn")
    e("s_nop 15")
    c1 = -2.0 * 1.4426950408889634 * 0.7978845608028654
    c2 = c1 * 0.044715
    e(f"s_mov_b32 s57, {f32hex(c1)}")
    e(f"s_mov_b32 s58, {f32hex(c2)}")
    e(f"v_mov_b32 v{vOne}, s57")
    tt = 208
    k = 0
    for bn in range(4):
        for gp in range(2):
            s8 = vAcc + 16 * bn + 8 * gp
            o = 216 + 4 * (k % 4)
            k += 1
            for i in range(4):
                e(f"v_cvt_pk_bf16_f32 v{o+i}, v{s8+2*i}, v{s8+2*i+1}")
            for i in range(4):
                e(f"v_lshlrev_b32 v{s8+2*i}, 16, v{o+i}")
                e(f"v_and_b32 v{s8+2*i+1}, s59, v{o+i}")
            for i in range(8): e(f"v_mul_f32 v{tt+i}, v{s8+i}, v{s8+i}")
            for i in range(8): e(f"v_fma_f32 v{tt+i}, v{tt+i}, s58, v{vOne}")
            for i in range(8): e(f"v_mul_f32 v{tt+i}, v{tt+i}, v{s8+i}")
            for i in range(8): e(f"v_exp_f32 v{tt+i}, v{tt+i}")
            for i in range(8): e(f"v_add_f32 v{tt+i}, 1.0, v{tt+i}")
            for i in range(8): e(f"v_rcp_f32 v{tt+i}, v{tt+i}")
            for i in range(8): e(f"v_mul_f32 v{s8+i}, v{s8+i}, v{tt+i}")
            for i in range(4):
                e(f"v_cvt_pk_bf16_f32 v{o+i}, v{s8+2*i}, v{s8+2*i+1}")
            e("s_nop 1")
            e(f"v_permlane32_swap_b32 v{o}, v{o+2}")
            e(f"v_permlane32_swap_b32 v{o+1}, v{o+3}")
            e("s_nop 0")
            e(f"buffer_store_dwordx4 v[{o}:{o+3}], v{vZo}, s[16:19], 0 offen offset:{(32*bn+16*gp)*2}")
    st()
    e("s_waitcnt vmcnt(0)")
    st.dump()
    a.label("L_k1_end")
    e("s_endpgm")
    return a.text(), kernel_desc(name, 256, 256, 100), 114688
```

```python
from asmlib import *
from gen_attn import f32hex, WS_XN, WS_Z1, WS_Z2, WS_Z2T, WS_O, WS_HM
from gen_gemm import ln_stats, srd, WS_Z2N, WS_SP, gemm_core, out_offsets

LOG2E = 1.4426950408889634
SCALE = LOG2E / 16.0
THR = 8.0


def gen_attn7(name="attn_kernel", stamp=False, use_dot=False, prefetch=True):
    a = Asm()
    e = a.e
    st = Stamper(a, stamp, 1, 68)
    SK, SV, SW, SX, SO, SI, SZ = 4, 8, 12, 16, 20, 48, 52
    sWave, sHead, sQb, sWB, sKoff, sVoff, sTrip, sC, sT0, sT1 = 24, 25, 26, 27, 28, 29, 30, 31, 32, 33
    sWoff, sThr, sMask, sG1, sG2 = 36, 37, 38, 39, 56
    vLane = 1
    vT0, vT1, vT2, vT3 = 2, 3, 40, 41
    vKd, vVd, vWd = 4, 8, 12
    vKa, vVa, vWa = 16, 24, 28
    vOne, vZo, vL, vMax, vM, vAl = 32, 33, 34, 35, 36, 37
    vOoff = 38
    vC1 = 39
    vId = 232
    vIa = 236
    vS = [48, 64]
    vNM = 80
    vP = 96
    vKf = 104
    vVf = 168
    vX = 48
    vZ = [48, 64, 80, 240]
    aO, aQ, aX = 0, 128, 128
    VRING = 65536

    e("s_cmp_ge_u32 s2, 256")
    e("s_cbranch_scc1 L_attn_end")
    st()
    e("s_load_dwordx4 s[40:43], s[0:1], 8")
    e("s_load_dwordx2 s[44:45], s[0:1], 24")
    e("s_load_dwordx2 s[46:47], s[0:1], 96")
    e("s_load_dwordx2 s[58:59], s[0:1], 0")
    e("s_load_dwordx2 s[60:61], s[0:1], 48")
    e("s_load_dwordx2 s[62:63], s[0:1], 88")
    e(f"s_and_b32 s{sT0}, s2, 7")
    e(f"s_lshl_b32 s{sT0}, s{sT0}, 1")
    e(f"s_lshr_b32 s{sT1}, s2, 3")
    e(f"s_and_b32 s{sHead}, s{sT1}, 1")
    e(f"s_add_u32 s{sHead}, s{sHead}, s{sT0}")
    e(f"s_lshr_b32 s{sQb}, s2, 4")
    e(f"v_lshrrev_b32 v{vT0}, 6, v0")
    e(f"v_and_b32 v{vLane}, 63, v0")
    e(f"v_readfirstlane_b32 s{sWave}, v{vT0}")
    e(f"s_mov_b32 s{sC}, {f32hex(SCALE)}")
    e(f"s_mov_b32 s{sThr}, {f32hex(THR)}")
    e(f"s_mov_b32 s{sMask}, 0xffff0000")
    e(f"v_lshrrev_b32 v{vT0}, 5, v{vLane}")
    e(f"v_and_b32 v{vT1}, 31, v{vLane}")
    e(f"s_lshl_b32 s{sT0}, s{sQb}, 7")
    e(f"s_lshl_b32 s{sT1}, s{sWave}, 5")
    e(f"s_add_u32 s{sT0}, s{sT0}, s{sT1}")
    e(f"v_add_u32 v{vT2}, s{sT0}, v{vT1}")
    e(f"s_movk_i32 s{sT1}, 896")
    e(f"v_mul_lo_u32 v{vT3}, v{vT2}, s{sT1}")
    e(f"v_lshl_add_u32 v{vT3}, v{vT0}, 4, v{vT3}")
    e("s_waitcnt lgkmcnt(0)")
    srd(e, SX, 58, 59, 0, 2048 * 896)
    for ks in range(28):
        e(f"buffer_load_dwordx4 v[{vX+4*ks}:{vX+4*ks+3}], v{vT3}, s[{SX}:{SX+3}], 0 offen offset:{ks*32}")
    e(f"v_lshlrev_b32 v{vOoff}, 13, v{vT2}")
    e(f"v_lshl_add_u32 v{vOoff}, v{vT0}, 4, v{vOoff}")
    e(f"s_lshl_b32 s{sT0}, s{sHead}, 9")
    e(f"v_add_u32 v{vOoff}, s{sT0}, v{vOoff}")
    e(f"s_movk_i32 s{sT1}, 1792")
    e(f"v_mul_lo_u32 v{vZo}, v{vT2}, s{sT1}")
    e(f"v_lshl_add_u32 v{vZo}, v{vT0}, 4, v{vZo}")
    e(f"s_and_b32 s{sT0}, s{sHead}, 7")
    e(f"s_mul_i32 s{sT0}, s{sT0}, 224")
    e(f"v_add_u32 v{vZo}, s{sT0}, v{vZo}")
    e(f"s_lshl_b32 s{sT0}, s{sHead}, 20")
    srd(e, SK, 40, 41, f"s{sT0}", 0x100000)
    srd(e, SV, 42, 43, f"s{sT0}", 0x100000)
    e(f"s_lshl_b32 s{sT0}, s{sHead}, 9")
    e(f"s_add_u32 s{SW}, s44, s{sT0}")
    e(f"s_addc_u32 s{SW+1}, s45, 0")
    e(f"s_sub_u32 s{SW+2}, {448*8192}, s{sT0}")
    e(f"s_mov_b32 s{SW+3}, 0x20000")
    srd(e, SO, 46, 47, WS_O, 2048 * 8192)
    srd(e, SI, 60, 61, 0, 448 * 3584)
    e(f"s_mov_b32 s{sT0}, {WS_Z1}")
    e(f"s_cmp_ge_u32 s{sHead}, 8")
    e(f"s_cselect_b32 s{sT0}, {WS_Z2}, s{sT0}")
    srd(e, SZ, 46, 47, f"s{sT0}", 2048 * 1792)
    e(f"s_lshl_b32 s{sWB}, s{sWave}, 12")
    e(f"s_mul_i32 s{sT0}, s{sQb}, 28")
    e(f"s_mul_i32 s{sT1}, s{sWave}, 7")
    e(f"s_add_u32 s{sT0}, s{sT0}, s{sT1}")
    e(f"v_lshlrev_b32 v42, 13, v{vT0}")
    e(f"v_lshl_add_u32 v42, v{vT1}, 4, v42")
    e(f"s_lshl_b32 s{sT1}, s{sT0}, 13")
    for i in range(4):
        e(f"buffer_load_dwordx4 v[{192+4*i}:{195+4*i}], v42, s[{SW}:{SW+3}], s{sT1} offen")
        e(f"s_add_u32 s{sT1}, s{sT1}, 16384")
    e(f"v_lshrrev_b32 v42, 4, v{vLane}")
    e(f"s_movk_i32 s{sT1}, 3584")
    e(f"v_mul_lo_u32 v42, v42, s{sT1}")
    e(f"v_and_b32 v43, 15, v{vLane}")
    e(f"v_lshl_add_u32 v42, v43, 4, v42")
    e(f"s_mul_i32 s{sT1}, s{sT0}, 3584")
    e(f"s_mul_i32 s{sG1}, s{sHead}, 224")
    e(f"s_add_u32 s{sT1}, s{sT1}, s{sG1}")
    for i in range(2):
        e(f"buffer_load_dwordx4 v[{208+4*i}:{211+4*i}], v42, s[{SI}:{SI+3}], s{sT1} offen")
        e(f"s_add_u32 s{sT1}, s{sT1}, {4*3584}")
    e(f"v_lshrrev_b32 v42, 4, v{vLane}")
    e(f"v_and_b32 v43, 15, v{vLane}")
    e(f"s_lshl_b32 s{sT0}, s{sWave}, 4")
    e(f"s_movk_i32 s{sT1}, 3584")
    e(f"s_mul_i32 s{sG1}, s{sHead}, 224")
    for t in range(4):
        e(f"v_add_u32 v{vT2}, {4*t}, v42")
        e(f"v_add_u32 v{vT2}, s{sT0}, v{vT2}")
        e(f"v_and_b32 v{vT3}, 3, v{vT2}")
        e(f"v_lshlrev_b32 v{vT3}, 2, v{vT3}")
        e(f"v_xor_b32 v{vT3}, v{vT3}, v43")
        e(f"v_lshlrev_b32 v{vT3}, 4, v{vT3}")
        e(f"v_mul_lo_u32 v{vT2}, v{vT2}, s{sT1}")
        e(f"v_add3_u32 v{vId+t}, v{vT2}, v{vT3}, s{sG1}")

    def dma(srd_, voff, soff, ldsbase):
        out = []
        for t in range(4):
            out.append((f"s_add_u32 m0, s{sWB}, {ldsbase + t*1024}",
                        f"buffer_load_dwordx4 v{voff+t}, s[{srd_}:{srd_+3}], {soff} offen lds"))
        return out

    def emit_dma(lst):
        for m, l in lst:
            e(m)
            e("s_nop 0")
            e(l)

    cslot = lambda c: (c + 3) % 4

    def chunk_dma(c):
        if c <= 6:
            return [f"s_mov_b32 s{sWoff}, {c*64*3584}"], dma(SI, vId, f"s{sWoff}", VRING + cslot(c) * 16384)
        if c <= 20:
            return [f"s_mov_b32 s{sWoff}, {(c-7)*262144}"], dma(SW, vWd, f"s{sWoff}", VRING + cslot(c) * 16384)
        if c <= 23:
            return [f"s_mov_b32 s{sVoff}, {(c-21)*16384}"], dma(SV, vVd, f"s{sVoff}", VRING + cslot(c) * 16384)
        return [], []

    vq = []
    for c in range(2):
        su, dl = chunk_dma(c)
        for s_ in su: e(s_)
        emit_dma(dl)
        vq += [f"c{c}"] * 4

    vR, vG, vCq = 42, 43, 44
    e(f"v_bfe_u32 v{vR}, v{vLane}, 2, 2")
    e(f"v_bfe_u32 v{vG}, v{vLane}, 4, 1")
    e(f"v_and_b32 v{vCq}, 3, v{vLane}")
    for d in range(4):
        e(f"v_lshrrev_b32 v{vT2}, 1, v{vCq}")
        e(f"v_lshl_add_u32 v{vT2}, v{vG}, 1, v{vT2}")
        e(f"v_add_u32 v{vT2}, {4*d}, v{vT2}")
        e(f"v_lshlrev_b32 v{vT3}, 2, v{vR}")
        e(f"v_xor_b32 v{vT2}, v{vT2}, v{vT3}")
        e(f"v_lshlrev_b32 v{vT2}, 4, v{vT2}")
        e(f"v_and_b32 v{vT3}, 1, v{vCq}")
        e(f"v_lshl_add_u32 v{vT2}, v{vT3}, 3, v{vT2}")
        e(f"v_lshl_add_u32 v{vT3}, v{vT0}, 3, v{vR}")
        e(f"v_lshl_add_u32 v45, v{vT3}, 8, v{vT2}")
        e(f"v_add_u32 v{vIa+d}, {VRING}, v45")
    nl0 = len(a.lines)
    e(f"s_lshl_b32 s{sG2}, s{sWave}, 3")
    for t in range(4):
        e(f"v_add_u32 v{vT2}, {2*t}, v{vT0}")
        e(f"v_add_u32 v{vT2}, s{sG2}, v{vT2}")
        e(f"v_and_b32 v{vT3}, 15, v{vT2}")
        e(f"v_xor_b32 v{vT3}, v{vT3}, v{vT1}")
        e(f"v_lshlrev_b32 v{vT3}, 4, v{vT3}")
        e(f"v_lshl_add_u32 v{vKd+t}, v{vT2}, 9, v{vT3}")
        e(f"v_and_b32 v{vT3}, 3, v{vT2}")
        e(f"v_lshlrev_b32 v{vT3}, 2, v{vT3}")
        e(f"v_xor_b32 v{vT3}, v{vT3}, v{vT1}")
        e(f"v_lshlrev_b32 v{vT3}, 4, v{vT3}")
        e(f"v_lshl_add_u32 v{vVd+t}, v{vT2}, 9, v{vT3}")
        e(f"v_lshl_add_u32 v{vWd+t}, v{vT2}, 13, v{vT3}")
    for d in range(4):
        e(f"v_and_b32 v{vT2}, 1, v{vCq}")
        e(f"v_lshl_add_u32 v{vT2}, v{vG}, 1, v{vT2}")
        e(f"v_add_u32 v{vT2}, {4*d}, v{vT2}")
        e(f"v_lshlrev_b32 v{vT3}, 2, v{vR}")
        e(f"v_xor_b32 v{vT2}, v{vT2}, v{vT3}")
        e(f"v_lshlrev_b32 v{vT2}, 4, v{vT2}")
        e(f"v_lshrrev_b32 v{vT3}, 1, v{vCq}")
        e(f"v_lshl_add_u32 v{vT2}, v{vT3}, 3, v{vT2}")
        e(f"v_lshl_add_u32 v{vT3}, v{vT0}, 3, v{vR}")
        e(f"v_lshl_add_u32 v45, v{vT3}, 9, v{vT2}")
        e(f"v_add_u32 v{vWa+d}, {VRING}, v45")
        e(f"v_lshl_add_u32 v{vT3}, v{vT0}, 2, v{vR}")
        e(f"v_lshl_add_u32 v45, v{vT3}, 9, v{vT2}")
        e(f"v_add_u32 v{vVa+d}, {VRING}, v45")
    for i in range(8):
        e(f"v_add_u32 v{vT2}, {2*i}, v{vT0}")
        e(f"v_and_b32 v{vT3}, 15, v{vT1}")
        e(f"v_xor_b32 v{vT2}, v{vT2}, v{vT3}")
        e(f"v_lshlrev_b32 v{vT2}, 4, v{vT2}")
        e(f"v_lshl_add_u32 v{vKa+i}, v{vT1}, 9, v{vT2}")
    addr_fill = [l.strip() for l in a.lines[nl0:]]
    del a.lines[nl0:]

    vSum, vSq, vS2, vQ2 = 160, 161, 162, 163
    vTP = 168
    e(f"s_mov_b32 s{sT0}, 0x3f803f80")
    e(f"v_mov_b32 v{vOne}, s{sT0}")
    for r in (vSum, vSq, vS2, vQ2):
        e(f"v_mov_b32 v{r}, 0")
    st()
    e("s_waitcnt vmcnt(14)")
    st()
    pend = []
    for c in (2, 3):
        su, dl = chunk_dma(c)
        pend += [(x_, None, None) for x_ in su] + [(m_, l_, f"c{c}") for m_, l_ in dl]
    for i in range(0, 112, 2):
        e(f"v_dot2_f32_bf16 v{vSum}, v{vX+i}, v{vOne}, v{vSum}")
        e(f"v_dot2_f32_bf16 v{vSq}, v{vX+i}, v{vX+i}, v{vSq}")
        e(f"v_dot2_f32_bf16 v{vS2}, v{vX+i+1}, v{vOne}, v{vS2}")
        e(f"v_dot2_f32_bf16 v{vQ2}, v{vX+i+1}, v{vX+i+1}, v{vQ2}")
        if pend and (i // 2) % 5 == 4:
            m_, l_, tg = pend.pop(0)
            e(m_)
            if l_:
                e("s_nop 0")
                e(l_)
                vq.append(tg)
    assert not pend
    e("s_nop 3")
    e(f"v_add_f32 v{vSum}, v{vSum}, v{vS2}")
    e(f"v_add_f32 v{vSq}, v{vSq}, v{vQ2}")
    e(f"v_mov_b32 v{vT2}, v{vSum}")
    e(f"v_mov_b32 v{vT3}, v{vSq}")
    e("s_nop 1")
    e(f"v_permlane32_swap_b32 v{vT2}, v{vSum}")
    e(f"v_permlane32_swap_b32 v{vT3}, v{vSq}")
    e("s_nop 1")
    e(f"v_add_f32 v{vSum}, v{vSum}, v{vT2}")
    e(f"v_add_f32 v{vSq}, v{vSq}, v{vT3}")
    ln_stats(e, vSum, vSq, vT2, vT3, 448)
    kd = []
    for j in range(4):
        kd.append((f"s_mov_b32 s{sKoff}, {j*16384}", None))
        kd += dma(SK, vKd, f"s{sKoff}", j * 16384)
    for g4 in range(28):
        xs = [vX + 4 * g4 + i for i in range(4)]
        ts = [vTP + 2 * i for i in range(4)]
        for x, t in zip(xs, ts): e(f"v_lshlrev_b32 v{t}, 16, v{x}")
        for x, t in zip(xs, ts): e(f"v_and_b32 v{t+1}, s{sMask}, v{x}")
        for x, t in zip(xs, ts): e(f"v_sub_f32 v{t}, v{t}, v{vSum}")
        for x, t in zip(xs, ts): e(f"v_sub_f32 v{t+1}, v{t+1}, v{vSum}")
        for x, t in zip(xs, ts): e(f"v_cvt_pk_bf16_f32 v{x}, v{t}, v{t+1}")
        for x, t in zip(xs, ts): e(f"v_lshlrev_b32 v{t}, 16, v{x}")
        for x, t in zip(xs, ts): e(f"v_and_b32 v{t+1}, s{sMask}, v{x}")
        for x, t in zip(xs, ts): e(f"v_mul_f32 v{t}, v{t}, v{vSq}")
        for x, t in zip(xs, ts): e(f"v_mul_f32 v{t+1}, v{t+1}, v{vSq}")
        for x, t in zip(xs, ts): e(f"v_cvt_pk_bf16_f32 v{x}, v{t}, v{t+1}")
        for i, x in enumerate(xs): e(f"v_accvgpr_write_b32 a{aX+4*g4+i}, v{x}")
    st()

    def c_reads(c, fbase):
        out = []
        if c <= 6:
            for ks in range(4):
                for bn in range(4):
                    f = ks * 4 + bn
                    for s_ in range(2):
                        off = cslot(c) * 16384 + (16 * ks + 4 * s_) * 256
                        d = fbase + 4 * f + 2 * s_
                        out.append((f"ds_read_b64_tr_b16 v[{d}:{d+1}], v{vIa + bn} offset:{off}", regs(d, 2)))
        elif c <= 20:
            for m in range(2):
                for db in range(8):
                    f = m * 8 + db
                    for s_ in range(2):
                        off = cslot(c) * 16384 + (16 * m + 4 * s_) * 512 + (db >> 2) * 256
                        d = fbase + 4 * f + 2 * s_
                        out.append((f"ds_read_b64_tr_b16 v[{d}:{d+1}], v{vWa + (db & 3)} offset:{off}", regs(d, 2)))
        return out

    def c_mfmas(c, fbase):
        out = []
        if c <= 6:
            for ks in range(4):
                for bn in range(4):
                    f = ks * 4 + bn
                    kk = 4 * c + ks
                    z = vZ[bn]
                    cc = f"v[{z}:{z+15}]" if kk else "0"
                    out.append(f"v_mfma_f32_32x32x16_bf16 v[{z}:{z+15}], v[{fbase+4*f}:{fbase+4*f+3}], a[{aX+4*kk}:{aX+4*kk+3}], {cc}")
        else:
            ci = c - 7
            for m in range(2):
                for db in range(8):
                    f = m * 8 + db
                    kk = 2 * ci + m
                    cc = f"a[{aO+16*db}:{aO+16*db+15}]" if kk else "0"
                    out.append(f"v_mfma_f32_32x32x16_bf16 a[{aO+16*db}:{aO+16*db+15}], v[{fbase+4*f}:{fbase+4*f+3}], a[{aX+4*kk}:{aX+4*kk+3}], {cc}")
        return out

    c1 = -2.0 * LOG2E * 0.7978845608028654
    c2 = c1 * 0.044715
    gel = [f"s_mov_b32 s{sG1}, {f32hex(c1)}", f"s_mov_b32 s{sG2}, {f32hex(c2)}", f"v_mov_b32 v{vC1}, s{sG1}"]
    tt = 96
    osets = [232, 236]
    k = 0
    zst = []
    for bn in range(4):
        for gp in range(2):
            if bn == 3 and gp == 1:
                continue
            s8 = vZ[bn] + 8 * gp
            o = osets[k % 2]
            k += 1
            for i in range(4): gel.append(f"v_cvt_pk_bf16_f32 v{o+i}, v{s8+2*i}, v{s8+2*i+1}")
            for i in range(4):
                gel.append(f"v_lshlrev_b32 v{s8+2*i}, 16, v{o+i}")
                gel.append(f"v_and_b32 v{s8+2*i+1}, s{sMask}, v{o+i}")
            for i in range(8): gel.append(f"v_mul_f32 v{tt+i}, v{s8+i}, v{s8+i}")
            for i in range(8): gel.append(f"v_fma_f32 v{tt+i}, v{tt+i}, s{sG2}, v{vC1}")
            for i in range(8): gel.append(f"v_mul_f32 v{tt+i}, v{tt+i}, v{s8+i}")
            for i in range(8): gel.append(f"v_exp_f32 v{tt+i}, v{tt+i}")
            for i in range(8): gel.append(f"v_add_f32 v{tt+i}, 1.0, v{tt+i}")
            for i in range(8): gel.append(f"v_rcp_f32 v{tt+i}, v{tt+i}")
            for i in range(8): gel.append(f"v_mul_f32 v{tt+i}, v{s8+i}, v{tt+i}")
            for i in range(4): gel.append(f"v_cvt_pk_bf16_f32 v{s8+i}, v{tt+2*i}, v{tt+2*i+1}")
            gel.append("s_nop 1")
            gel.append(f"v_permlane32_swap_b32 v{s8}, v{s8+2}")
            gel.append(f"v_permlane32_swap_b32 v{s8+1}, v{s8+3}")
            zst.append(f"buffer_store_dwordx4 v[{s8}:{s8+3}], v{vZo}, s[{SZ}:{SZ+3}], 0 offen offset:{(32*bn+16*gp)*2} sc0 sc1")

    fb = [vKf, vVf]

    def wait_chunk(c):
        tag = f"c{c}"
        last = max(i for i, t in enumerate(vq) if t == tag)
        n = len(vq) - 1 - last
        return n

    e(f"s_waitcnt vmcnt({wait_chunk(0)})")
    e("s_barrier")
    for ins, d in c_reads(0, fb[0]):
        a.lds_op(ins, d)
    for c in range(21):
        n = wait_chunk(c + 1) if c + 1 <= 20 else 63
        e(f"s_waitcnt vmcnt({min(n,63)}) lgkmcnt(0)")
        a.lds_drained()
        e("s_barrier")
        su, dl = chunk_dma(c + 4)
        for s_ in su: e(s_)
        rd = c_reads(c + 1, fb[(c + 1) % 2]) if c + 1 <= 20 else []
        ms = c_mfmas(c, fb[c % 2])
        for gi, mi in enumerate(ms):
            e(mi)
            for _ in range(3):
                if rd:
                    ins, d = rd.pop(0)
                    a.lds_op(ins, d)
            if gi >= 2 and gi % 2 == 0 and dl:
                m0i, ld = dl.pop(0)
                e(m0i)
                e("s_nop 0")
                e(ld)
                vq.append(f"c{c+4}")
            if c <= 2:
                for _ in range(4):
                    if addr_fill:
                        e(addr_fill.pop(0))
            if c >= 8 and gi in (11, 13, 15) and kd:
                m0i, ld = kd.pop(0)
                e(m0i)
                if ld is None:
                    m0i, ld = kd.pop(0)
                    e(m0i)
                e("s_nop 0")
                e(ld)
                vq.append("k")
            if c >= 8:
                for _ in range(2 if gi < 11 else 5):
                    if gel:
                        g_ = gel.pop(0)
                        if isinstance(g_, tuple):
                            e(g_[1])
                            vq.append("z")
                        else:
                            e(g_)
        assert not rd and not dl
    assert not gel, len(gel)
    assert not kd and not addr_fill
    for z_ in zst:
        e(z_)
        vq.append("z")
    st()
    e("s_nop 15")
    e("s_nop 7")
    tq = 104
    for db in range(8):
        for i in range(16): e(f"v_accvgpr_read_b32 v{tq+i}, a{aO+16*db+i}")
        for i in range(16): e(f"v_mul_f32 v{tq+i}, s{sC}, v{tq+i}")
        for i in range(8): e(f"v_cvt_pk_bf16_f32 v{tq+16+i}, v{tq+2*i}, v{tq+2*i+1}")
        for i in range(8): e(f"v_accvgpr_write_b32 a{aQ+8*db+i}, v{tq+16+i}")
        for i in range(16): e(f"v_accvgpr_write_b32 a{aO+16*db+i}, 0")

    def k_reads(slot):
        out = []
        for ks in range(16):
            d = vKf + 4 * ks
            off = slot * 16384 + (ks >> 3) * 256
            out.append((f"ds_read_b128 v[{d}:{d+3}], v{vKa + (ks & 7)} offset:{off}", regs(d, 4)))
        return out

    def v_reads(slot):
        out = []
        for m in range(2):
            for db in range(8):
                f = m * 8 + db
                for s_ in range(2):
                    off = slot * 16384 + (16 * m + 8 * s_) * 512 + (db >> 2) * 256
                    d = vVf + 4 * f + 2 * s_
                    out.append((f"ds_read_b64_tr_b16 v[{d}:{d+1}], v{vVa + (db & 3)} offset:{off}", regs(d, 2)))
        return out

    def qk_mfma(S, ks, c0):
        c = f"v[{S}:{S+15}]" if ks else c0
        return f"v_mfma_f32_32x32x16_bf16 v[{S}:{S+15}], v[{vKf+4*ks}:{vKf+4*ks+3}], a[{aQ+4*ks}:{aQ+4*ks+3}], {c}"

    def max_ops(S):
        ops = [f"v_max3_f32 v{vMax}, v{S}, v{S+1}, v{S+2}"]
        for i in range(3, 15, 2):
            ops.append(f"v_max3_f32 v{vMax}, v{vMax}, v{S+i}, v{S+i+1}")
        ops.append(f"v_max_f32 v{vMax}, v{vMax}, v{S+15}")
        return ops

    lastk = max(i for i, t in enumerate(vq) if t == "k")
    e(f"s_waitcnt vmcnt({len(vq) - 1 - lastk})")
    e("s_barrier")
    for ins, d in k_reads(0):
        a.lds_op(ins, d)
    for ks in range(16):
        a.lds_need(regs(vKf + 4 * ks, 4))
        e(qk_mfma(vS[0], ks, "0"))
    lastz = max(i for i, t in enumerate(vq) if t in ("c21",))
    e(f"s_waitcnt vmcnt({len(vq) - 1 - lastz})")
    e("s_barrier")
    e(f"s_mov_b32 s{sKoff}, {4*16384}")
    emit_dma(dma(SK, vKd, f"s{sKoff}", 0))
    for ins, d in k_reads(1):
        a.lds_op(ins, d)
    e("s_nop 7")
    for o in max_ops(vS[0]):
        e(o)
    e(f"v_mov_b32 v{vT2}, v{vMax}")
    e("s_nop 1")
    e(f"v_permlane32_swap_b32 v{vT2}, v{vMax}")
    e("s_nop 1")
    e(f"v_max_f32 v{vM}, v{vT2}, v{vMax}")
    for i in range(16):
        e(f"v_sub_f32 v{vS[0]+i}, v{vS[0]+i}, v{vM}")
        e(f"v_sub_f32 v{vNM+i}, 0, v{vM}")
    e(f"v_mov_b32 v{vL}, 0")
    e(f"s_mov_b32 s{sKoff}, {5*16384}")
    e(f"s_mov_b32 s{sVoff}, {3*16384}")
    e(f"s_mov_b32 s{sTrip}, 0")
    st()
    st.cyc()

    a.label("L_attn_loop")
    for u in range(4):
        Sc, Sn = vS[u % 2], vS[(u + 1) % 2]
        e("s_waitcnt vmcnt(15) lgkmcnt(0)")
        a.lds_drained()
        e("s_barrier")
        vr_ = v_reads(u)
        dl = dma(SV, vVd, f"s{sVoff}", VRING + ((u + 3) % 4) * 16384) + dma(SK, vKd, f"s{sKoff}", ((u + 1) % 4) * 16384)
        pend_ld = None
        for g in range(16):
            e(qk_mfma(Sn, g, f"v[{vNM}:{vNM+15}]"))
            if pend_ld:
                e(pend_ld)
                pend_ld = None
            for k in range(2):
                ins, d = vr_.pop(0)
                a.lds_op(ins, d)
            e(f"v_exp_f32 v{Sc+g}, v{Sc+g}")
            if g >= 2 and g % 2 == 0:
                k = (g - 2) // 2
                e(f"v_cvt_pk_bf16_f32 v{vP+k}, v{Sc+2*k}, v{Sc+2*k+1}")
            if g in (2, 6, 10, 14):
                m0i, pend_ld = dl.pop(0)
                e(m0i)
        kr = k_reads((u + 2) % 4)
        mx = max_ops(Sn)
        pend_ld = None
        for g in range(16):
            m, db = g // 8, g % 8
            f = g
            a.lds_need(regs(vVf + 4 * f, 4))
            e(f"v_mfma_f32_32x32x16_bf16 a[{aO+16*db}:{aO+16*db+15}], v[{vVf+4*f}:{vVf+4*f+3}], v[{vP+4*m}:{vP+4*m+3}], a[{aO+16*db}:{aO+16*db+15}]")
            if pend_ld:
                e(pend_ld)
                pend_ld = None
            if g == 0:
                e(f"v_cvt_pk_bf16_f32 v{vP+7}, v{Sc+14}, v{Sc+15}")
            if g < 8:
                for k in range(2):
                    ins, d = kr.pop(0)
                    a.lds_op(ins, d)
            if use_dot:
                if g % 2 == 1:
                    e(f"v_dot2_f32_bf16 v{vL}, v{vP+g//2}, v{vOne}, v{vL}")
            else:
                e(f"v_add_f32 v{vL}, v{vL}, v{Sc+g}")
            if 5 <= g < 13:
                e(mx.pop(0))
            if g in (8, 10, 12, 14) and dl:
                m0i, ld = dl.pop(0)
                e(m0i)
                pend_ld = ld
            if g == 13:
                e(f"v_cmp_lt_f32 vcc, s{sThr}, v{vMax}")
        if pend_ld:
            e(pend_ld)
        assert not dl and not mx and not kr
        e(f"s_add_u32 s{sKoff}, s{sKoff}, 16384")
        e(f"s_add_u32 s{sVoff}, s{sVoff}, 16384")
        e(f"s_cbranch_vccnz L_attn_rare{u}")
        a.label(f"L_attn_back{u}")
    e(f"s_add_u32 s{sTrip}, s{sTrip}, 1")
    e(f"s_cmp_le_u32 s{sTrip}, 5")
    e("s_cbranch_scc1 L_attn_hook")
    e(f"s_cmp_lt_u32 s{sTrip}, 15")
    e("s_cbranch_scc1 L_attn_loop")
    e(f"s_cmp_eq_u32 s{sTrip}, 15")
    e("s_cbranch_scc1 L_attn_hookB")
    st.cyc()
    st()
    TAIL(a, e, st, locals())
    st.dump()
    a.label("L_attn_end")
    e("s_endpgm")

    hP, hA, hZ, hO = 254, 255, 232, 248
    a.label("L_attn_hookB")
    e(f"v_mov_b32 v{hA}, 64")
    e(f"global_load_dword v{hP}, v{hA}, s[62:63] sc0 sc1")
    e("s_load_dwordx2 s[40:41], s[0:1], 32")
    e("s_load_dwordx2 s[42:43], s[0:1], 56")
    e("s_load_dwordx2 s[44:45], s[0:1], 64")
    vOd = 236
    e(f"s_lshl_b32 s{sT0}, s{sWave}, 2")
    for t in range(4):
        e(f"v_xor_b32 v{vOd+t}, {t << 2}, v{vLane}")
        e(f"v_lshlrev_b32 v{vOd+t}, 4, v{vOd+t}")
        e(f"s_add_u32 s{sT1}, s{sT0}, {t}")
        e(f"s_mul_i32 s{sT1}, s{sT1}, 896")
        e(f"v_add_u32 v{vOd+t}, s{sT1}, v{vOd+t}")
    e("s_waitcnt lgkmcnt(0)")
    e(f"s_mul_i32 s{sT0}, s{sHead}, {256*896}")
    e(f"s_add_u32 s{SX}, s40, s{sT0}")
    e(f"s_addc_u32 s{SX+1}, s41, 0")
    e(f"s_sub_u32 s{SX+2}, {4096*896}, s{sT0}")
    e(f"s_mov_b32 s{SX+3}, 0x20000")
    for c in range(2):
        e(f"s_mov_b32 s{sT0}, {c*14336}")
        for t in range(4):
            e(f"s_add_u32 m0, s{sWB}, {98304 + ((c + 2) % 4)*16384 + t*1024}")
            e("s_nop 0")
            e(f"buffer_load_dwordx4 v{vOd+t}, s[{SX}:{SX+3}], s{sT0} offen lds")
    srd(e, SI, 42, 43, 0, 2048 * 4096)
    e(f"s_bfe_u32 s{sT0}, s2, 0x20001")
    e(f"s_lshl_b32 s{sT0}, s{sT0}, 21")
    e(f"s_lshr_b32 s{sT1}, s2, 3")
    e(f"s_lshl_b32 s{sT1}, s{sT1}, 16")
    e(f"s_add_u32 s{sT0}, s{sT0}, s{sT1}")
    e(f"v_lshlrev_b32 v240, 4, v0")
    for i in range(16):
        e(f"buffer_load_dwordx4 v[244:247], v240, s[{SI}:{SI+3}], s{sT0} offen")
        e(f"s_add_u32 s{sT0}, s{sT0}, 4096")
    e("s_branch L_attn_loop")
    a.label("L_attn_hook")
    e(f"s_cmp_eq_u32 s{sTrip}, 2")
    e("s_cbranch_scc1 L_attn_hook1")
    e(f"s_cmp_eq_u32 s{sTrip}, 3")
    e("s_cbranch_scc1 L_attn_hook2")
    e(f"s_cmp_eq_u32 s{sTrip}, 4")
    e("s_cbranch_scc1 L_attn_hook3")
    e(f"s_cmp_eq_u32 s{sTrip}, 5")
    e("s_cbranch_scc1 L_attn_hook4")
    e(f"s_cmp_lt_u32 s{sHead}, 8")
    e("s_cbranch_scc1 L_attn_loop")
    e(f"s_cmp_lg_u32 s{sWave}, 0")
    e("s_cbranch_scc1 L_attn_loop")
    e(f"v_mov_b32 v{hP}, 1")
    e(f"s_lshl_b32 s{sT0}, s{sQb}, 2")
    e(f"v_mov_b32 v{hA}, s{sT0}")
    e("s_mov_b64 s[64:65], exec")
    e("s_mov_b64 exec, 1")
    e(f"global_atomic_add v{hA}, v{hP}, s[62:63] sc1")
    e("s_mov_b64 exec, s[64:65]")
    e("s_branch L_attn_loop")
    a.label("L_attn_hook1")
    e(f"s_lshl_b32 s{sT0}, s{sQb}, 2")
    e(f"v_mov_b32 v{hA}, s{sT0}")
    e(f"global_load_dword v{hP}, v{hA}, s[62:63] sc0 sc1")
    e("s_branch L_attn_loop")
    a.label("L_attn_hook2")
    e(f"v_readfirstlane_b32 s{sT1}, v{hP}")
    e(f"s_cmp_ge_u32 s{sT1}, 8")
    e("s_cbranch_scc1 L_attn_h2ok")
    a.label("L_attn_h2poll")
    e("s_sleep 8")
    e(f"global_load_dword v{hP}, v{hA}, s[62:63] sc0 sc1")
    e("s_waitcnt vmcnt(0)")
    e(f"v_readfirstlane_b32 s{sT1}, v{hP}")
    e(f"s_cmp_lt_u32 s{sT1}, 8")
    e("s_cbranch_scc1 L_attn_h2poll")
    a.label("L_attn_h2ok")
    hZ = 232
    srd(e, SX, 46, 47, WS_Z2, 2048 * 1792)
    e(f"v_lshrrev_b32 v{hO}, 5, v0")
    e(f"s_lshl_b32 s{sT0}, s2, 3")
    e(f"v_add_u32 v{hO}, s{sT0}, v{hO}")
    e(f"s_movk_i32 s{sT0}, 1792")
    e(f"v_mul_lo_u32 v{hO}, v{hO}, s{sT0}")
    e(f"v_and_b32 v249, 31, v0")
    e(f"v_lshl_add_u32 v{hO}, v249, 4, v{hO}")
    e(f"v_cmp_gt_u32 vcc, 28, v249")
    e(f"v_mov_b32 v250, 0x40000000")
    e("s_nop 1")
    e(f"v_cndmask_b32 v{hO}, v250, v{hO}, vcc")
    for t in range(4):
        e(f"buffer_load_dwordx4 v[{hZ+4*t}:{hZ+4*t+3}], v{hO}, s[{SX}:{SX+3}], 0 offen offset:{448*t} sc0 sc1")
    e("s_branch L_attn_loop")
    a.label("L_attn_hook3")
    h0, h1, h2, h3, h4, h5 = 249, 250, 251, 252, 253, 254
    srd(e, SX, 46, 47, WS_Z2N, 16 * 2048 * 128)
    e(f"v_mov_b32 v{h0}, 0")
    e(f"v_mov_b32 v{h1}, 0")
    for t in range(16):
        e(f"v_dot2_f32_bf16 v{h0}, v{hZ+t}, v{vOne}, v{h0}")
        e(f"v_dot2_f32_bf16 v{h1}, v{hZ+t}, v{hZ+t}, v{h1}")
    e("s_nop 3")
    for x in (1, 2, 4, 8, 16):
        e(f"ds_swizzle_b32 v{h2}, v{h0} offset:{(x << 10) | 0x1f}")
        e(f"ds_swizzle_b32 v{h3}, v{h1} offset:{(x << 10) | 0x1f}")
        e("s_waitcnt lgkmcnt(0)")
        e(f"v_add_f32 v{h0}, v{h0}, v{h2}")
        e(f"v_add_f32 v{h1}, v{h1}, v{h3}")
    ln_stats(e, h0, h1, h2, h3, 896)
    for t0_ in range(0, 16, 2):
        ps = [(hZ + t0_, h2, h3), (hZ + t0_ + 1, h4, h5)]
        for z, p, q in ps: e(f"v_lshlrev_b32 v{p}, 16, v{z}")
        for z, p, q in ps: e(f"v_and_b32 v{q}, s{sMask}, v{z}")
        for z, p, q in ps: e(f"v_sub_f32 v{p}, v{p}, v{h0}")
        for z, p, q in ps: e(f"v_sub_f32 v{q}, v{q}, v{h0}")
        for z, p, q in ps: e(f"v_cvt_pk_bf16_f32 v{p}, v{p}, v{q}")
        for z, p, q in ps: e(f"v_and_b32 v{q}, s{sMask}, v{p}")
        for z, p, q in ps: e(f"v_lshlrev_b32 v{p}, 16, v{p}")
        for z, p, q in ps: e(f"v_mul_f32 v{p}, v{p}, v{h1}")
        for z, p, q in ps: e(f"v_mul_f32 v{q}, v{q}, v{h1}")
        for z, p, q in ps: e(f"v_cvt_pk_bf16_f32 v{z}, v{p}, v{q}")
    e(f"v_lshrrev_b32 v{hO}, 5, v0")
    e(f"s_lshl_b32 s{sT0}, s2, 3")
    e(f"v_add_u32 v{hO}, s{sT0}, v{hO}")
    e(f"v_lshlrev_b32 v{hO}, 7, v{hO}")
    e(f"v_and_b32 v{h2}, 31, v0")
    e(f"v_mul_u32_u24 v{h3}, 37, v{h2}")
    e(f"v_lshrrev_b32 v{h3}, 8, v{h3}")
    e(f"v_mul_u32_u24 v{h4}, 7, v{h3}")
    e(f"v_sub_u32 v{h4}, v{h2}, v{h4}")
    e(f"v_lshl_add_u32 v{hO}, v{h4}, 4, v{hO}")
    e(f"v_lshl_add_u32 v{hO}, v{h3}, 18, v{hO}")
    e(f"v_cmp_gt_u32 vcc, 28, v{h2}")
    e(f"v_mov_b32 v{h5}, 0x40000000")
    e("s_nop 1")
    e(f"v_cndmask_b32 v{hO}, v{h5}, v{hO}, vcc")
    for t in range(4):
        e(f"s_mov_b32 s{sT0}, {t*4*262144}")
        e(f"buffer_store_dwordx4 v[{hZ+4*t}:{hZ+4*t+3}], v{hO}, s[{SX}:{SX+3}], s{sT0} offen sc0 sc1")
    e("s_branch L_attn_loop")
    a.label("L_attn_hook4")
    e(f"s_cmp_lg_u32 s{sWave}, 0")
    e("s_cbranch_scc1 L_attn_loop")
    e(f"v_mov_b32 v{hP}, 1")
    e(f"v_mov_b32 v{hA}, 64")
    e("s_mov_b64 s[64:65], exec")
    e("s_mov_b64 exec, 1")
    e(f"global_atomic_add v{hA}, v{hP}, s[62:63] sc1")
    e("s_mov_b64 exec, s[64:65]")
    e("s_branch L_attn_loop")

    for u in range(4):
        Sn = vS[(u + 1) % 2]
        a.label(f"L_attn_rare{u}")
        if u == 3:
            e(f"s_cmp_eq_u32 s{sTrip}, 15")
            e(f"s_cbranch_scc1 L_attn_back{u}")
        e("s_nop 15")
        e(f"v_mov_b32 v{vT2}, v{vMax}")
        e("s_nop 1")
        e(f"v_permlane32_swap_b32 v{vT2}, v{vMax}")
        e("s_nop 1")
        e(f"v_max3_f32 v{vT2}, v{vT2}, v{vMax}, 0")
        e(f"v_sub_f32 v{vAl}, 0, v{vT2}")
        e(f"v_exp_f32 v{vAl}, v{vAl}")
        for i in range(16):
            e(f"v_sub_f32 v{Sn+i}, v{Sn+i}, v{vT2}")
            e(f"v_sub_f32 v{vNM+i}, v{vNM+i}, v{vT2}")
        e(f"v_mul_f32 v{vL}, v{vL}, v{vAl}")
        tr = [40, 41, 42, 43]
        for r in range(0, 128, 4):
            for i in range(4):
                e(f"v_accvgpr_read_b32 v{tr[i]}, a{aO+r+i}")
            for i in range(4):
                e(f"v_mul_f32 v{tr[i]}, v{tr[i]}, v{vAl}")
            for i in range(4):
                e(f"v_accvgpr_write_b32 a{aO+r+i}, v{tr[i]}")
        e("s_nop 1")
        e(f"s_branch L_attn_back{u}")
    return a.text(), kernel_desc(name, 256 + 240, 256, 100)


def TAIL(a, e, st, L):
    sWave, sHead, sQb, sWB, sT0, sT1, sMask = [L[k] for k in ("sWave", "sHead", "sQb", "sWB", "sT0", "sT1", "sMask")]
    vL, vAl, vT2, vT3, vLane, aO, prefetch = [L[k] for k in ("vL", "vAl", "vT2", "vT3", "vLane", "aO", "prefetch")]
    ORING = 98304
    SWO, SP, SGX, SGW, SZ1, SHM, SB = 16, 8, 12, 4, 20, 48, 52
    sOo, sRow0, sCol0, sRowQ = 28, 29, 30, 31
    vOd = 4
    vOa = 8
    vPo = 12
    vPK = 48
    fbs = [112, 168]
    e("s_waitcnt vmcnt(0)")
    e("s_barrier")
    e(f"v_mov_b32 v{vT2}, v{vL}")
    for t in range(4):
        e(f"v_mov_b32 v{vOd+t}, v{236+t}")
    e(f"v_permlane32_swap_b32 v{vT2}, v{vL}")
    e("s_nop 1")
    e(f"v_add_f32 v{vL}, v{vT2}, v{vL}")
    e(f"v_rcp_f32 v{vAl}, v{vL}")
    vq = ["c0"] * 4 + ["c1"] * 4

    def odma(c):
        out = []
        for t in range(4):
            out.append((f"s_add_u32 m0, s{sWB}, {ORING + ((c + 2) % 4)*16384 + t*1024}",
                        f"buffer_load_dwordx4 v{vOd+t}, s[{SWO}:{SWO+3}], s{sOo} offen lds"))
        return out
    for c in range(2, 4):
        e(f"s_mov_b32 s{sOo}, {c*14336}")
        for m_, l_ in odma(c):
            e(m_)
            e("s_nop 0")
            e(l_)
            vq.append(f"c{c}")
    e(f"v_readfirstlane_b32 s{sT1}, v254")
    e(f"s_cmp_ge_u32 s{sT1}, 256")
    e("s_cbranch_scc1 L_attn_bok")
    a.label("L_attn_bpoll")
    e("s_sleep 8")
    e(f"global_load_dword v254, v255, s[62:63] sc0 sc1")
    e("s_waitcnt vmcnt(0)")
    e(f"v_readfirstlane_b32 s{sT1}, v254")
    e(f"s_cmp_lt_u32 s{sT1}, 256")
    e("s_cbranch_scc1 L_attn_bpoll")
    a.label("L_attn_bok")
    srd(e, SGX, 42, 43, 0, 2048 * 4096)
    srd(e, SZ1, 46, 47, WS_Z1, 2048 * 1792)
    srd(e, SHM, 46, 47, WS_HM, 2048 * 1792)
    srd(e, SB, 44, 45, 0, 4096)
    e(f"s_mul_i32 s{sT0}, s{sHead}, {2048*896}")
    e(f"s_add_u32 s{sT0}, s{sT0}, {WS_SP}")
    srd(e, SP, 46, 47, f"s{sT0}", 2048 * 896)
    e(f"s_lshl_b32 s{sRowQ}, s{sQb}, 7")
    e(f"s_bfe_u32 s{sT0}, s2, 0x20001")
    e(f"s_lshl_b32 s{sT0}, s{sT0}, 2")
    e(f"s_bfe_u32 s{sT1}, s2, 0x20003")
    e(f"s_add_u32 s{sT0}, s{sT0}, s{sT1}")
    e(f"s_lshl_b32 s{sRow0}, s{sT0}, 7")
    e(f"s_and_b32 s{sT0}, s2, 1")
    e(f"s_lshl_b32 s{sT0}, s{sT0}, 3")
    e(f"s_lshr_b32 s{sT1}, s2, 5")
    e(f"s_add_u32 s{sT0}, s{sT0}, s{sT1}")
    e(f"s_mul_i32 s{sCol0}, s{sT0}, 56")
    e(f"s_lshl_b32 s{sT0}, s{sT0}, 18")
    e(f"s_add_u32 s{sT0}, s{sT0}, {WS_Z2N}")
    srd(e, SGW, 46, 47, f"s{sT0}", 2048 * 128)
    e("s_mov_b32 s65, 0")
    e("s_lshr_b32 s66, s2, 3")
    e("s_lshl_b32 s67, s66, 13")
    e("s_lshl_b32 s66, s66, 7")
    fill = []

    def mid():
        for _ in range(24):
            vq.append("g")
        vR, vG, vCq, vH = 42, 43, 44, 45
        e(f"v_bfe_u32 v{vR}, v{vLane}, 2, 2")
        e(f"v_bfe_u32 v{vG}, v{vLane}, 4, 1")
        e(f"v_and_b32 v{vCq}, 3, v{vLane}")
        e(f"v_lshrrev_b32 v{vH}, 5, v{vLane}")
        for d in range(4):
            e(f"v_lshrrev_b32 v{vT2}, 1, v{vCq}")
            e(f"v_lshl_add_u32 v{vT2}, v{vG}, 1, v{vT2}")
            e(f"v_add_u32 v{vT2}, {4*d}, v{vT2}")
            e(f"v_lshlrev_b32 v{vT3}, 2, v{vR}")
            e(f"v_xor_b32 v{vT2}, v{vT2}, v{vT3}")
            e(f"v_lshlrev_b32 v{vT2}, 4, v{vT2}")
            e(f"v_and_b32 v{vT3}, 1, v{vCq}")
            e(f"v_lshl_add_u32 v{vT2}, v{vT3}, 3, v{vT2}")
            e(f"v_lshl_add_u32 v{vT3}, v{vH}, 3, v{vR}")
            e(f"v_lshl_add_u32 v{vT2}, v{vT3}, 10, v{vT2}")
            e(f"v_add_u32 v{vOa+d}, {ORING}, v{vT2}")
        e(f"s_lshl_b32 s{sT0}, s{sQb}, 2")
        e(f"s_add_u32 s{sT0}, s{sT0}, s{sWave}")
        e(f"s_mul_i32 s{sT0}, s{sT0}, 28672")
        e(f"v_lshlrev_b32 v{vPo}, 4, v{vLane}")
        e(f"v_add_u32 v{vPo}, s{sT0}, v{vPo}")
        for db in range(8):
            t = 112 + 16 * (db % 2)
            for i in range(16): e(f"v_accvgpr_read_b32 v{t+i}, a{aO+16*db+i}")
            for i in range(16): e(f"v_mul_f32 v{t+i}, v{t+i}, v{vAl}")
            for i in range(8): e(f"v_cvt_pk_bf16_f32 v{vPK+8*db+i}, v{t+2*i}, v{t+2*i+1}")

        def oreads(c, fb):
            out = []
            for nb in range(14):
                for s_ in range(2):
                    off = ((c + 2) % 4) * 16384 + 4 * s_ * 1024 + (nb >> 2) * 256
                    d = fb + 4 * nb + 2 * s_
                    out.append((f"ds_read_b64_tr_b16 v[{d}:{d+1}], v{vOa + (nb & 3)} offset:{off}", regs(d, 2)))
            return out

        def waitc(c):
            last = max(i for i, t in enumerate(vq) if t == f"c{c}")
            return min(63, len(vq) - 1 - last)
        e(f"s_waitcnt vmcnt({waitc(0)})")
        e("s_barrier")
        for ins, d in oreads(0, fbs[0]):
            a.lds_op(ins, d)
        for c in range(16):
            n = waitc(c + 1) if c + 1 < 16 else 63
            e(f"s_waitcnt vmcnt({n}) lgkmcnt(0)")
            a.lds_drained()
            e("s_barrier")
            dl = []
            if c + 4 < 16:
                e(f"s_mov_b32 s{sOo}, {(c+4)*14336}")
                dl = odma(c + 4)
            rd = oreads(c + 1, fbs[(c + 1) % 2]) if c + 1 < 16 else []
            fb = fbs[c % 2]
            for nb in range(14):
                cc = f"a[{16*nb}:{16*nb+15}]" if c else "0"
                e(f"v_mfma_f32_32x32x16_bf16 a[{16*nb}:{16*nb+15}], v[{fb+4*nb}:{fb+4*nb+3}], v[{vPK+4*c}:{vPK+4*c+3}], {cc}")
                for _ in range(3):
                    if rd:
                        ins, d = rd.pop(0)
                        a.lds_op(ins, d)
                if nb >= 2 and nb % 2 == 0 and dl:
                    m_, l_ = dl.pop(0)
                    e(m_)
                    e("s_nop 0")
                    e(l_)
                    vq.append(f"c{c+4}")
            assert not rd and not dl
        st()
        for nb in range(14):
            t = 176 + 24 * (nb % 2)
            for i in range(16): fill.append(f"v_accvgpr_read_b32 v{t+8+i}, a{16*nb+i}")
            for i in range(8): fill.append(f"v_cvt_pk_bf16_f32 v{t+i}, v{t+8+2*i}, v{t+8+2*i+1}")
            fill.append("s_nop 1")
            for gp in range(2):
                fill.append(f"v_permlane32_swap_b32 v{t+4*gp}, v{t+4*gp+2}")
                fill.append(f"v_permlane32_swap_b32 v{t+4*gp+1}, v{t+4*gp+3}")
            fill.append(f"s_movk_i32 s{sT1}, {nb*2048}")
            for gp in range(2):
                fill.append(f"buffer_store_dwordx4 v[{t+4*gp}:{t+4*gp+3}], v{vPo}, s[{SP}:{SP+3}], s{sT1} offen offset:{gp*1024}")

    g = gemm_core(a, "ag", 128, 64, 4, 1, 2048, 64, 6, SGX, SGW, 4096, 128, sRow0, 65, sWave, 224, 56,
                  fragbase=48, mid_cb=mid, fill=fill, peel=8, nfill=8, rolladdr=True, defer=2, sX0=66, sW0=67, wrap=(0xfff, 0x3ffff))
    assert g.addr_end <= 256
    st()
    vOff, vOffM, vB = g.tmp[1], g.tmp[2], g.tmp[3]
    out_offsets(a, g, sRow0, sCol0, 1792, vOff, sT0)
    t0 = g.tmp[0]
    e(f"v_lshlrev_b32 v{g.tmp[4]}, 1, v{t0}")
    e(f"buffer_load_ushort v{vB}, v{g.tmp[4]}, s[{SB}:{SB+3}], 0 offen")
    e(f"v_lshlrev_b32 v{vOffM}, 30, v{g.vH}")
    e(f"v_add_u32 v{vOffM}, v{vOffM}, v{vOff}")
    f = 48
    for bn in range(2):
        for gp in range(2):
            d = f + 4 * (2 * bn + gp)
            vo = vOffM if (bn == 1 and gp == 1) else vOff
            e(f"buffer_load_dwordx4 v[{d}:{d+3}], v{vo}, s[{SZ1}:{SZ1+3}], 0 offen offset:{(32*bn+16*gp)*2}")
    e("s_waitcnt vmcnt(0)")
    e(f"v_lshlrev_b32 v{vB}, 16, v{vB}")
    w = f + 16
    for bn in range(2):
        acc = g.vAcc + 16 * bn
        for gp in range(2):
            s8 = acc + 8 * gp
            z = f + 4 * (2 * bn + gp)
            for i in range(4):
                e(f"v_cvt_pk_bf16_f32 v{w+i}, v{s8+2*i}, v{s8+2*i+1}")
            e("s_nop 1")
            e(f"v_permlane32_swap_b32 v{w}, v{w+2}")
            e(f"v_permlane32_swap_b32 v{w+1}, v{w+3}")
            for i in range(4):
                e(f"v_lshlrev_b32 v{s8+2*i}, 16, v{w+i}")
                e(f"v_and_b32 v{s8+2*i+1}, s{sMask}, v{w+i}")
            for i in range(8): e(f"v_add_f32 v{s8+i}, v{s8+i}, v{vB}")
            for i in range(4): e(f"v_cvt_pk_bf16_f32 v{w+i}, v{s8+2*i}, v{s8+2*i+1}")
            for i in range(4):
                e(f"v_lshlrev_b32 v{s8+2*i}, 16, v{w+i}")
                e(f"v_and_b32 v{s8+2*i+1}, s{sMask}, v{w+i}")
            for i in range(4):
                e(f"v_lshlrev_b32 v{w+4+2*i}, 16, v{z+i}")
                e(f"v_and_b32 v{w+5+2*i}, s{sMask}, v{z+i}")
            for i in range(8): e(f"v_mul_f32 v{s8+i}, v{s8+i}, v{w+4+i}")
            for i in range(4): e(f"v_cvt_pk_bf16_f32 v{z+i}, v{s8+2*i}, v{s8+2*i+1}")
            vo = vOffM if (bn == 1 and gp == 1) else vOff
            e(f"buffer_store_dwordx4 v[{z}:{z+3}], v{vo}, s[{SHM}:{SHM+3}], 0 offen offset:{(32*bn+16*gp)*2}")
    if prefetch:
        e("s_load_dwordx2 s[44:45], s[0:1], 72")
        e(f"v_lshlrev_b32 v{vT2}, 4, v0")
        e("s_waitcnt lgkmcnt(0)")
        srd(e, 12, 44, 45, 0, 896 * 896)
        e(f"s_mul_i32 s{sT0}, s2, 3136")
        e(f"buffer_load_dwordx4 v[152:155], v{vT2}, s[12:15], s{sT0} offen")
    if st.on:
        e("s_waitcnt vmcnt(0)")
```

```python
from build import *
from gen_gemm import *
from gen_attn7 import *
import sys
out = sys.argv[1] if len(sys.argv) > 1 else "recurrent_scan__mha_block_cached__mixer_gmlp__prompt.s"
stamp = len(sys.argv) > 2
ba, da = gen_attn7(stamp=stamp)
b4, d4, l4 = gen_k4(stamp=stamp)
assemble([("attn_kernel", 256, 256, 163840, ba, da),
          ("fin_kernel", 224, 256, l4, b4, d4)], out)
```
